```python
import torch

def _softmax(x, axis=-1):
    return torch.softmax(x, dim=axis)
def _gelu(x):
    return torch.nn.functional.gelu(x, approximate="tanh")
def _silu(x):
    return torch.nn.functional.silu(x)
def _sigmoid(x):
    return torch.sigmoid(x)
def _layernorm(x, axis=-1, eps=1e-5):
    m = x.mean(dim=axis, keepdim=True)
    v = x.var(dim=axis, keepdim=True, unbiased=False)
    return (x - m) / torch.sqrt(v + eps)
def _scatter_add(tgt, idx, src, axis=0):
    return tgt.clone().index_add_(axis, idx, src)
def _segment_sum(src, seg, n):
    out = torch.zeros((n,) + src.shape[1:], dtype=src.dtype)
    return out.index_add_(0, seg, src)
def _pad(x, pw):
    flat = tuple(v for pair in reversed(pw) for v in pair)
    return torch.nn.functional.pad(x, flat)

kernel_name = 'recurrent_scan__mha_block_cached__dense_activation_squared_relu__decode'

def setup_inputs():

    _w = (lambda a: (lambda t: t.to(torch.bfloat16) if t.is_floating_point() else t)(torch.as_tensor(a)))
    def _A_setup():
        B, Sq, D = 4, 1, 448
        H, Sk, Dh = 16, 4096, 256
        return {
            "x": _w((lambda *s: torch.randn(*s, dtype=torch.bfloat16) * 0.05)(B, Sq, D)),
            "k_cache": _w((lambda *s: torch.randn(*s, dtype=torch.bfloat16) * 0.8)(B, H, Sk, Dh)),
            "v_cache": _w((lambda *s: torch.randn(*s, dtype=torch.bfloat16) * 0.2)(B, H, Sk, Dh)),
            "wq": _w((lambda *s: torch.randn(*s, dtype=torch.bfloat16) * 0.8)(D, H * Dh) * (D ** -0.5)),
            "wo": _w((lambda *s: torch.randn(*s, dtype=torch.bfloat16) * 0.2)(H * Dh, D) * ((H * Dh) ** -0.5)),
        }
    _A_in = _A_setup()

    def _B_setup():
        B, S, D, F = 4, 1, 448, 1792
        return {
            "x": _w((lambda *s: torch.randn(*s, dtype=torch.bfloat16) * 0.05)(B, S, D)),
            "w1": _w((lambda *s: torch.randn(*s, dtype=torch.bfloat16) * 0.1)(D, F)),
            "b1": _w((lambda *s: torch.randn(*s, dtype=torch.bfloat16) * 0.1)(F)),
            "w2": _w((lambda *s: torch.randn(*s, dtype=torch.bfloat16) * 0.1)(F, D)),
            "b2": _w((lambda *s: torch.randn(*s, dtype=torch.bfloat16) * 0.1)(D)),
        }
    _B_in = _B_setup()

    return {
        "A_x": _A_in["x"],
        "A_k_cache": _A_in["k_cache"],
        "A_v_cache": _A_in["v_cache"],
        "A_wq": _A_in["wq"],
        "A_wo": _A_in["wo"],
        "B_x": _B_in["x"],
        "B_w1": _B_in["w1"],
        "B_b1": _B_in["b1"],
        "B_w2": _B_in["w2"],
        "B_b2": _B_in["b2"],
    }

def reference(A_x, A_k_cache, A_v_cache, A_wq, A_wo, B_x, B_w1, B_b1, B_w2, B_b2):
    def _A_ref(x, k_cache, v_cache, wq, wo):
        B, Sq, D = x.shape
        H, Dh = 16, 256
        q = (lambda x, *d: x.permute(*d))((x @ wq).reshape(B, Sq, H, Dh), 0, 2, 1, 3)
        scores = torch.einsum("bhqd,bhkd->bhqk", q, k_cache) * (Dh ** -0.5)
        p = _softmax(scores, axis=-1)
        o = torch.einsum("bhqk,bhkd->bhqd", p, v_cache)
        return (lambda x, *d: x.permute(*d))(o, 0, 2, 1, 3).reshape(B, Sq, H * Dh) @ wo

    def _B_ref(x, w1, b1, w2, b2):
        h = torch.einsum("bsd,df->bsf", x, w1) + b1
        zero = torch.zeros_like(h)
        r = torch.where(h > zero, h, zero)
        h = r * r
        out = torch.einsum("bsf,fd->bsd", h, w2) + b2
        return out

    x = A_x
    xn = _layernorm(x, axis=-1)
    s = _A_ref(xn, A_k_cache, A_v_cache, A_wq, A_wo)
    g = _silu(_B_ref(xn, B_w1, B_b1, B_w2, B_b2))
    return x + s * g
```

```python
import sys, struct
from asmlib import build
NAME="recurrent_scan__mha_block_cached__dense_activation_squared_relu__decode"

def f2u(x): return struct.unpack("<I", struct.pack("<f", x))[0]
LOG2E=1.4426950408889634
CSC=f2u(LOG2E/16.0)

class E:
    def __init__(s): s.o=[]
    def __call__(s, t):
        for ln in t.split("\n"):
            ln=ln.strip()
            if ln: s.o.append(("" if ln.endswith(":") else "    ")+ln)
    def text(s): return "\n".join(s.o)+"\n"

V_TID=0; V_LANE=1; V_OFF=2; V_OFF2=3
MK=4; MK2=8; QR=12; OA=16; LA=20; VM=21
XT=24
PA=22; PB=23
BA=32; BB=36
KST=40; VST=72
RC=104
CT=108
V_LDSR=115
W1D=116; W2D=144; GA=172
V_WO=200
V_T=204
V_B1=201; V_WQ=202; V_W1=203
V_ZA0=236; V_ZA1=237; V_ZA2=238
V_OW=239; V_OR=240; V_RR=241; V_RS=242
NV=244
S_W=3; S_K=4; S_V=6; S_LB=8; S_RO=9; S_IT=10; S_M=11; S_T=12; S_H=13; S_B=14; S_SP=15
P_X=16;P_K=18;P_V=20;P_WQ=22;P_WO=24;P_W1=28;P_B1=30;P_W2=32;P_B2=34;P_OUT=36;P_DBG=38;P_WS=40
S_NU=42; S_FS=43; S_C=44; S_T2=45; S_T3=46; S_RET=48; S_DST=50; S_WOP=52; S_MEAN=54; S_RD=55; S_C16K=56; S_REM=57
S_ST=64
RING=0
SCR=131072
L_Q=SCR
L_H=SCR+4096
L_ML=SCR+4608
L_O=SCR+5120
L_Z=SCR+9216
L_DUMP=L_Z+4*3584
LDS_TOTAL=L_DUMP+2560
ZOFF=0x100000

def gen_main(label, stamps=False, NU=16):
    A=E()
    nst=[0]
    def stamp():
        if stamps:
            A(f"s_memrealtime s[{S_ST+2*nst[0]}:{S_ST+2*nst[0]+1}]"); nst[0]+=1
    A(f".globl {label}\n.p2align 8\n.type {label},@function\n{label}:")
    A(f"s_cmp_ge_u32 s2, 256\ns_cbranch_scc1 {label}_end")
    stamp()
    A("s_load_dwordx16 s[16:31], s[0:1], 0\ns_load_dwordx8 s[32:39], s[0:1], 64\ns_load_dwordx2 s[40:41], s[0:1], 96")
    A(f"v_lshrrev_b32 v{XT}, 6, v0\nv_and_b32 v{V_LANE}, 63, v0\nv_lshlrev_b32 v{V_OFF}, 4, v{V_LANE}")
    A(f"v_readfirstlane_b32 s{S_W}, v{XT}")
    A(f"""s_and_b32 s{S_H}, s2, 7
    s_lshl_b32 s{S_H}, s{S_H}, 1
    s_bfe_u32 s{S_T}, s2, 0x10003
    s_or_b32 s{S_H}, s{S_H}, s{S_T}
    s_bfe_u32 s{S_B}, s2, 0x20004
    s_lshr_b32 s{S_SP}, s2, 6""")
    A(f"v_add_u32 v{V_OFF2}, 0x1000, v{V_OFF}")
    A(f"s_mul_i32 s{S_T}, s{S_B}, 896")
    A(f"v_add_u32 v{V_T}, s{S_T}, v{V_OFF}")
    A(f"s_mul_i32 s{S_T2}, s{S_W}, 224\ns_add_u32 s{S_T2}, s{S_T2}, s{S_T}")
    A(f"""v_and_b32 v{V_T+1}, 15, v{V_LANE}
    v_lshlrev_b32 v{V_T+1}, 2, v{V_T+1}
    v_lshrrev_b32 v{V_T+2}, 5, v{V_LANE}
    v_lshl_add_u32 v{V_T+1}, v{V_T+2}, 1, v{V_T+1}
    v_add_u32 v{V_T+1}, s{S_T2}, v{V_T+1}
    s_add_u32 s{S_T3}, s{S_T}, 894
    v_add_u32 v{V_T+3}, 192, v{V_T+1}
    v_min_u32 v{V_T+3}, s{S_T3}, v{V_T+3}
    v_lshrrev_b32 v{V_T+4}, 2, v{V_LANE}
    v_lshlrev_b32 v{V_T+4}, 1, v{V_T+4}
    v_add_u32 v{V_T+4}, s{S_T2}, v{V_T+4}""")
    A(f"""v_and_b32 v{V_WQ}, 31, v{V_LANE}
    v_lshlrev_b32 v{V_WQ}, 4, v{V_WQ}
    v_lshl_add_u32 v{V_WQ}, v{V_T+2}, 13, v{V_WQ}
    s_mul_i32 s{S_T}, s{S_W}, {112*8192}
    s_lshl_b32 s{S_T3}, s{S_H}, 9
    s_add_u32 s{S_T}, s{S_T}, s{S_T3}
    v_add_u32 v{V_WQ}, s{S_T}, v{V_WQ}
    s_mov_b32 s{S_C16K}, 0x4000""")
    A(f"""s_lshl_b32 s{S_T}, s{S_B}, 4
    s_add_u32 s{S_T}, s{S_T}, s{S_H}
    s_lshl_b32 s{S_T}, s{S_T}, 21
    s_lshl_b32 s{S_T2}, s{S_SP}, 6
    s_add_u32 s{S_T2}, s{S_T2}, s{S_W}
    s_lshl_b32 s{S_T2}, s{S_T2}, 13
    s_add_u32 s{S_T}, s{S_T}, s{S_T2}
    s_lshl_b32 s{S_LB}, s{S_W}, 15
    s_mov_b32 s{S_RO}, 0""")
    for j in range(4): A(f"v_mov_b32 v{XT+j}, 0")
    A("s_waitcnt lgkmcnt(0)")
    A(f"""s_add_u32 s{S_K}, s{P_K}, s{S_T}
    s_addc_u32 s{S_K+1}, s{P_K+1}, 0
    s_add_u32 s{S_V}, s{P_V}, s{S_T}
    s_addc_u32 s{S_V+1}, s{P_V+1}, 0""")
    vq=[]
    def issue(tag, txt): A(txt); vq.append(tag)
    A("s_mov_b32 exec_hi, 0x00ffffff")
    issue("xs", f"global_load_dwordx4 v[{XT}:{XT+3}], v{V_T}, s[{P_X}:{P_X+1}]")
    A("s_mov_b64 exec, -1")
    for c in range(3): issue("xr", f"global_load_ushort v{RC+c}, v{V_T+1}, s[{P_X}:{P_X+1}] offset:{64*c}")
    issue("xr", f"global_load_ushort v{RC+3}, v{V_T+3}, s[{P_X}:{P_X+1}]")
    for t in range(7): issue("xr", f"global_load_ushort v{CT+t}, v{V_T+4}, s[{P_X}:{P_X+1}] offset:{32*t}")
    UST=4*8192
    sops=[]
    def direct(reg, sb):
        for j in range(8):
            vo = V_OFF if j<4 else V_OFF2
            post = f"\ns_add_u32 s{sb}, s{sb}, {UST}\ns_addc_u32 s{sb+1}, s{sb+1}, 0" if j==7 else ""
            sops.append(f"global_load_dwordx4 v[{reg+4*j}:{reg+4*j+3}], v{vo}, s[{sb}:{sb+1}] offset:{(j%4)*1024} nt{post}")
    def dma_ops(sb, slot_const=None):
        r=[]
        for j in range(8):
            vo = V_OFF if j<4 else V_OFF2
            pre=""
            if j==0:
                pre = (f"s_add_u32 m0, s{S_LB}, {slot_const}\ns_nop 0\n" if slot_const is not None else f"s_add_u32 m0, s{S_LB}, s{S_RO}\ns_nop 0\n")
            if j==4: pre="s_add_u32 m0, m0, 0x1000\ns_nop 0\n"
            post = f"\ns_add_u32 s{sb}, s{sb}, {UST}\ns_addc_u32 s{sb+1}, s{sb+1}, 0" if j==7 else ""
            r.append(f"{pre}global_load_lds_dwordx4 v{vo}, s[{sb}:{sb+1}] offset:{(j%4)*1024} nt{post}")
        return r
    direct(KST,S_K); direct(VST,S_V)
    for i in range(4): sops += dma_ops(S_K if i%2==0 else S_V, i*8192)
    si=0
    def ln_block():
        n_after = len(vq)-12
        A(f"s_waitcnt vmcnt({min(63,n_after)})")
        T=V_T+8
        for j in range(4):
            A(f"v_lshlrev_b32 v{T+2*j}, 16, v{XT+j}\nv_and_b32 v{T+2*j+1}, 0xffff0000, v{XT+j}")
        S=V_T+16
        A(f"v_add_f32 v{S}, v{T}, v{T+1}\nv_add_f32 v{S+1}, v{T+2}, v{T+3}\nv_add_f32 v{S+2}, v{T+4}, v{T+5}\nv_add_f32 v{S+3}, v{T+6}, v{T+7}")
        A(f"v_add_f32 v{S}, v{S}, v{S+1}\nv_add_f32 v{S+2}, v{S+2}, v{S+3}\nv_add_f32 v{S}, v{S}, v{S+2}")
        def wsum(r, sdst):
            for k in (8,4,2,1): A(f"s_nop 1\nv_add_f32_dpp v{r}, v{r}, v{r} row_ror:{k} row_mask:0xf bank_mask:0xf")
            A(f"s_nop 1\nv_add_f32_dpp v{r}, v{r}, v{r} row_bcast:15 row_mask:0xa bank_mask:0xf")
            A(f"s_nop 1\nv_add_f32_dpp v{r}, v{r}, v{r} row_bcast:31 row_mask:0xc bank_mask:0xf")
        wsum(S,None)
        A(f"v_mul_f32 v{S}, {hex(f2u(1.0/448))}, v{S}\nv_mov_b32 v{S+1}, 0\nv_readlane_b32 s{S_MEAN}, v{S}, 63")
        A("s_mov_b32 exec_hi, 0x00ffffff\ns_nop 1")
        for j in range(8): A(f"v_subrev_f32 v{T+j}, s{S_MEAN}, v{T+j}")
        for j in range(8): A(f"v_fmac_f32 v{S+1}, v{T+j}, v{T+j}")
        A("s_mov_b64 exec, -1")
        wsum(S+1,None)
        A(f"""v_mul_f32 v{S+1}, {hex(f2u(1.0/448))}, v{S+1}
        v_cvt_pk_bf16_f32 v{S+1}, v{S+1}, v{S}
        v_and_b32 v{S}, 0xffff0000, v{S+1}
        v_lshlrev_b32 v{S+1}, 16, v{S+1}
        v_add_f32 v{S+1}, {hex(f2u(1e-5))}, v{S+1}
        v_cvt_pk_bf16_f32 v{S+1}, v{S+1}, v{S+1}
        v_lshlrev_b32 v{S+1}, 16, v{S+1}
        v_sqrt_f32 v{S+1}, v{S+1}
        s_nop 0
        v_cvt_pk_bf16_f32 v{S+1}, v{S+1}, v{S+1}
        v_lshlrev_b32 v{S+1}, 16, v{S+1}
        v_rcp_f32 v{S+1}, v{S+1}
        v_readlane_b32 s{S_MEAN}, v{S}, 63
        s_nop 0
        v_readlane_b32 s{S_RD}, v{S+1}, 63
        s_nop 1""")
        regs=[RC+c for c in range(4)]+[CT+t for t in range(7)]
        for r in regs: A(f"v_lshlrev_b32 v{r}, 16, v{r}")
        for r in regs: A(f"v_subrev_f32 v{r}, s{S_MEAN}, v{r}")
        for r in regs: A(f"v_cvt_pk_bf16_f32 v{r}, v{r}, v{r}")
        for r in regs: A(f"v_lshlrev_b32 v{r}, 16, v{r}")
        for r in regs: A(f"v_mul_f32 v{r}, s{S_RD}, v{r}")
        for r in regs: A(f"v_cvt_pk_bf16_f32 v{r}, v{r}, v{r}")
    def mask_block():
        T=V_T+8
        A(f"""v_and_b32 v{T}, 1, v{V_LANE}
        v_mov_b32 v{T+1}, 0xffff
        v_lshlrev_b32 v{T}, 4, v{T}
        v_lshlrev_b32 v{T+1}, v{T}, v{T+1}
        v_bfe_u32 v{T+2}, v{V_LANE}, 1, 2
        v_lshrrev_b32 v{T+3}, 1, v{V_LANE}
        v_xor_b32 v{T+3}, v{T+3}, v{V_LANE}
        v_and_b32 v{T+3}, 8, v{T+3}""")
        for j in range(4):
            A(f"v_cmp_eq_u32 vcc, {j}, v{T+2}\ns_nop 1\nv_cndmask_b32 v{MK2+j}, 0, v{T+1}, vcc")
        A(f"v_cmp_eq_u32 vcc, 0, v{T+3}\ns_nop 1")
        for j in range(4): A(f"v_cndmask_b32 v{MK+j}, 0, v{MK2+j}, vcc")
        A(f"""v_add_u32 v{V_LDSR}, s{S_LB}, v{V_OFF}
        v_lshrrev_b32 v{T}, 4, v{V_LANE}
        v_mul_u32_u24 v{V_WO}, 1792, v{T}
        v_and_b32 v{T+1}, 15, v{V_LANE}
        v_lshl_add_u32 v{V_WO}, v{T+1}, 4, v{V_WO}""")
        A(f"""v_and_b32 v{T+2}, 7, v{V_LANE}
        v_mul_u32_u24 v{T+2}, 448, v{T+2}
        v_lshl_add_u32 v{T+2}, v{T}, 4, v{T+2}
        s_mul_i32 s{S_T}, s{S_W}, 3584
        s_add_u32 s{S_T}, s{S_T}, {L_Z}
        v_add_u32 v{T+2}, s{S_T}, v{T+2}
        v_mov_b32 v{T+3}, {L_DUMP}
        v_lshl_add_u32 v{T+3}, v{T+1}, 4, v{T+3}
        s_mov_b32 vcc_lo, 0x00ff00ff
        s_mov_b32 vcc_hi, 0x00ff00ff
        v_cndmask_b32 v{V_ZA0}, v{T+3}, v{T+2}, vcc
        v_cndmask_b32 v{V_ZA2}, v{T+2}, v{T+3}, vcc
        s_mov_b32 vcc_hi, 0xff00ff00
        v_cndmask_b32 v{V_ZA1}, v{T+3}, v{T+2}, vcc""")
        A(f"""v_bfe_u32 v{T+2}, v{V_LANE}, 3, 1
        v_lshlrev_b32 v{T+2}, 9, v{T+2}
        v_lshrrev_b32 v{T+3}, 5, v{V_LANE}
        v_lshl_add_u32 v{T+2}, v{T+3}, 8, v{T+2}
        v_and_b32 v{T+3}, 7, v{V_LANE}
        v_lshl_add_u32 v{T+2}, v{T+3}, 5, v{T+2}
        v_and_b32 v{T+3}, 1, v{T}
        v_lshl_add_u32 v{T+2}, v{T+3}, 4, v{T+2}
        s_lshl_b32 s{S_T}, s{S_W}, 10
        s_add_u32 s{S_T}, s{S_T}, {L_O}
        v_add_u32 v{V_OW}, s{S_T}, v{T+2}""")
        A(f"""v_lshrrev_b32 v{T+2}, 3, v{V_LANE}
        v_lshlrev_b32 v{T+2}, 5, v{T+2}
        s_lshl_b32 s{S_T}, s{S_W}, 8
        s_add_u32 s{S_T}, s{S_T}, {L_O}
        v_add_u32 v{V_OR}, s{S_T}, v{T+2}""")
        A(f"""v_mul_u32_u24 v{T+2}, 4682, v{V_TID}
        v_lshrrev_b32 v{T+2}, 16, v{T+2}
        v_mul_u32_u24 v{T+3}, 14, v{T+2}
        v_sub_u32 v{T+3}, v{V_TID}, v{T+3}
        v_lshlrev_b32 v{T+3}, 4, v{T+3}
        v_mul_u32_u24 v{V_RR}, 448, v{T+2}
        v_add_u32 v{V_RR}, v{V_RR}, v{T+3}
        v_add_u32 v{V_RR}, {L_Z}, v{V_RR}
        v_mul_u32_u24 v{V_RS}, 224, v{T+2}
        v_add_u32 v{V_RS}, v{V_RS}, v{T+3}""")
        A(f"v_mov_b32 v{LA}, 0\nv_mov_b32 v{VM}, 0xff7fffff\ns_mov_b32 s{S_M}, 0xff7fffff\ns_mov_b32 s{S_C}, {hex(CSC)}")
        for j in range(4): A(f"v_mov_b32 v{OA+j}, 0")
    wq_pos=[]
    for t in range(56):
        issue("wq", f"global_load_dwordx4 a[{4*t}:{4*t+3}], v{V_WQ}, s[{P_WQ}:{P_WQ+1}]")
        wq_pos.append(len(vq)-1)
        if t<55: A(f"v_add_u32 v{V_WQ}, s{S_C16K}, v{V_WQ}")
        if t%3==0 and si<len(sops):
            issue("s", sops[si]); si+=1
        if t==20: mask_block()
        if t==40: ln_block()
    while si<len(sops):
        issue("s", sops[si]); si+=1
    stamp()
    QA=XT
    for j in range(4): A(f"v_mov_b32 v{QA+j}, 0")
    def build_b(dst, src, k, mk):
        for j in range(4): A(f"v_and_b32_dpp v{dst+j}, v{src}, v{mk+j} row_newbcast:{k} row_mask:0xf bank_mask:0xf")
    build_b(BA, RC, 0, MK)
    for t in range(56):
        cur = BA if t%2==0 else BB
        nxt = BB if t%2==0 else BA
        if t+1<56: build_b(nxt, RC+(t+1)//16, (t+1)%16, MK)
        else: A("s_nop 1")
        if t%4==0:
            tt=min(t+3,55)
            n=len(vq)-1-wq_pos[tt]
            if n<63: A(f"s_waitcnt vmcnt({n})")
        A(f"v_mfma_f32_16x16x32_bf16 v[{QA}:{QA+3}], a[{4*t}:{4*t+3}], v[{cur}:{cur+3}], v[{QA}:{QA+3}]")
    T=V_T
    A(f"""v_bfe_u32 v{T}, v{V_LANE}, 3, 1
    v_lshlrev_b32 v{T}, 9, v{T}
    v_lshrrev_b32 v{T+1}, 4, v{V_LANE}
    v_lshl_add_u32 v{T}, v{T+1}, 7, v{T}
    v_and_b32 v{T+1}, 7, v{V_LANE}
    v_lshl_add_u32 v{T}, v{T+1}, 2, v{T}
    s_lshl_b32 s{S_T}, s{S_W}, 10
    s_add_u32 s{S_T}, s{S_T}, {L_Q}
    v_add_u32 v{T}, s{S_T}, v{T}
    v_and_b32 v{T+1}, 31, v{V_LANE}
    v_lshlrev_b32 v{T+1}, 5, v{T+1}
    v_add_u32 v{T+1}, {L_Q}, v{T+1}""")
    for r in range(4): A(f"ds_write_b32 v{T}, v{QA+r} offset:{32*r}")
    A("s_waitcnt lgkmcnt(0)\ns_barrier")
    R=W1D
    for w in range(4):
        A(f"ds_read_b128 v[{R+8*w}:{R+8*w+3}], v{T+1} offset:{1024*w}\nds_read_b128 v[{R+8*w+4}:{R+8*w+7}], v{T+1} offset:{1024*w+16}")
    A("s_waitcnt lgkmcnt(0)")
    for e in range(8): A(f"v_add_f32 v{R+e}, v{R+e}, v{R+8+e}\nv_add_f32 v{R+16+e}, v{R+16+e}, v{R+24+e}")
    for e in range(8): A(f"v_add_f32 v{R+e}, v{R+e}, v{R+16+e}")
    for j in range(4): A(f"v_cvt_pk_bf16_f32 v{QR+j}, v{R+2*j}, v{R+2*j+1}")
    stamp()
    A(f"""s_lshl_b32 s{S_FS}, s{S_H}, 2
    s_add_u32 s{S_FS}, s{S_FS}, s{S_SP}
    s_lshl_b32 s{S_T}, s{S_H}, 8
    s_lshl_b32 s{S_T2}, s{S_W}, 6
    s_add_u32 s{S_T}, s{S_T}, s{S_T2}
    s_mul_i32 s{S_T}, s{S_T}, 896
    s_add_u32 s{S_WOP}, s{P_WO}, s{S_T}
    s_addc_u32 s{S_WOP+1}, s{P_WO+1}, 0
    s_mov_b32 s{S_IT}, 0
    s_mov_b32 s{S_NU}, {NU}""")
    n_after_v0 = len(vq)-1-[i for i,t in enumerate(vq) if t=="s"][15]
    A(f"s_waitcnt vmcnt({min(63,n_after_v0)})")
    A(f"s_branch {label}_kcomp")
    A(f"{label}_loop:")
    A(f"s_sub_u32 s{S_REM}, s{S_NU}, s{S_IT}")
    A(f"s_cmp_ge_u32 s{S_REM}, 2\ns_cbranch_scc1 {label}_wk24\ns_waitcnt vmcnt(8)\n{label}_wk24:\ns_waitcnt vmcnt(24)")
    A(f"v_add_u32 v{V_T}, s{S_RO}, v{V_LDSR}")
    for j in range(8): A(f"ds_read_b128 v[{KST+4*j}:{KST+4*j+3}], v{V_T} offset:{1024*j}")
    A("s_waitcnt lgkmcnt(0)")
    A(f"s_cmp_lt_u32 s{S_REM}, 3\ns_cbranch_scc1 {label}_nok")
    for op in dma_ops(S_K): A(op)
    A(f"{label}_nok:")
    A(f"s_add_u32 s{S_RO}, s{S_RO}, 0x2000")
    A(f"{label}_kcomp:")
    for j in range(4):
        for t in range(8):
            if j==0: A(f"v_dot2_f32_bf16 v{XT+t}, v{KST+4*t}, v{QR}, 0")
            else: A(f"v_dot2c_f32_bf16 v{XT+t}, v{KST+4*t+j}, v{QR+j}")
    A("s_nop 2")
    for u in range(4): A(f"v_permlane16_swap_b32 v{XT+2*u}, v{XT+2*u+1}")
    for u in range(4): A(f"v_add_f32 v{XT+2*u}, v{XT+2*u}, v{XT+2*u+1}")
    y=[XT,XT+2,XT+4,XT+6]
    A(f"""s_nop 0
    v_add_f32_dpp v{y[0]}, v{y[0]}, v{y[0]} row_ror:8 row_mask:0xf bank_mask:0x3
    v_add_f32_dpp v{y[2]}, v{y[2]}, v{y[2]} row_ror:8 row_mask:0xf bank_mask:0x3
    v_add_f32_dpp v{y[0]}, v{y[1]}, v{y[1]} row_ror:8 row_mask:0xf bank_mask:0xc
    v_add_f32_dpp v{y[2]}, v{y[3]}, v{y[3]} row_ror:8 row_mask:0xf bank_mask:0xc
    s_nop 1
    v_add_f32_dpp v{y[0]}, v{y[0]}, v{y[0]} row_shl:4 row_mask:0xf bank_mask:0x5
    s_nop 0
    v_add_f32_dpp v{y[0]}, v{y[2]}, v{y[2]} row_shr:4 row_mask:0xf bank_mask:0xa
    s_nop 1
    v_add_f32_dpp v{y[0]}, v{y[0]}, v{y[0]} quad_perm:[1,0,3,2] row_mask:0xf bank_mask:0xf
    s_nop 1
    v_add_f32_dpp v{y[0]}, v{y[0]}, v{y[0]} quad_perm:[2,3,0,1] row_mask:0xf bank_mask:0xf
    v_mul_f32 v{XT}, s{S_C}, v{XT}
    v_max_f32 v{XT+1}, s{S_M}, v{XT}
    s_nop 1
    v_max_f32_dpp v{XT+1}, v{XT+1}, v{XT+1} row_ror:4 row_mask:0xf bank_mask:0xf
    s_nop 1
    v_max_f32_dpp v{XT+1}, v{XT+1}, v{XT+1} row_ror:8 row_mask:0xf bank_mask:0xf
    s_nop 1
    v_max_f32_dpp v{XT+1}, v{XT+1}, v{XT+1} row_bcast:15 row_mask:0xa bank_mask:0xf
    s_nop 1
    v_max_f32_dpp v{XT+1}, v{XT+1}, v{XT+1} row_bcast:31 row_mask:0xc bank_mask:0xf
    s_nop 0
    v_readlane_b32 s{S_M}, v{XT+1}, 63
    s_nop 1
    v_subrev_f32 v{XT}, s{S_M}, v{XT}
    v_subrev_f32 v{XT+1}, s{S_M}, v{VM}
    v_exp_f32 v{XT}, v{XT}
    v_exp_f32 v{XT+1}, v{XT+1}
    v_mov_b32 v{VM}, s{S_M}
    v_cvt_pk_bf16_f32 v{PA}, v{XT}, v{XT}
    v_fma_f32 v{LA}, v{LA}, v{XT+1}, v{XT}
    v_mov_b32 v{PB}, v{PA}""")
    for j in range(4): A(f"v_mul_f32 v{OA+j}, v{XT+1}, v{OA+j}")
    A(f"v_permlane16_swap_b32 v{PA}, v{PB}")
    A(f"s_cmp_eq_u32 s{S_IT}, 0\ns_cbranch_scc1 {label}_vcomp")
    A(f"""s_cmp_ge_u32 s{S_REM}, 3
    s_cbranch_scc1 {label}_wv24
    s_cmp_eq_u32 s{S_REM}, 2
    s_cbranch_scc1 {label}_wv16
    s_waitcnt vmcnt(0)
    {label}_wv16:
    s_waitcnt vmcnt(16)
    {label}_wv24:
    s_waitcnt vmcnt(24)""")
    A(f"v_add_u32 v{V_T}, s{S_RO}, v{V_LDSR}")
    for j in range(8): A(f"ds_read_b128 v[{VST+4*j}:{VST+4*j+3}], v{V_T} offset:{1024*j}")
    A("s_waitcnt lgkmcnt(0)")
    A(f"s_cmp_lt_u32 s{S_REM}, 3\ns_cbranch_scc1 {label}_nov")
    for op in dma_ops(S_V): A(op)
    A(f"{label}_nov:")
    A(f"s_add_u32 s{S_RO}, s{S_RO}, 0x2000\ns_and_b32 s{S_RO}, s{S_RO}, 0x7fff")
    A(f"{label}_vcomp:")
    def beta(t): return (t>>2) | (((t>>1)&1)<<1)
    A("s_nop 1")
    build_b(BA, PA, 4*beta(0), MK)
    for t in range(8):
        cur = BA if t%2==0 else BB
        nxt = BB if t%2==0 else BA
        if t+1<8: build_b(nxt, PB if (t+1)&1 else PA, 4*beta(t+1), MK)
        else: A("s_nop 1")
        A(f"v_mfma_f32_16x16x32_bf16 v[{OA}:{OA+3}], v[{VST+4*t}:{VST+4*t+3}], v[{cur}:{cur+3}], v[{OA}:{OA+3}]")
    A(f"s_cmp_gt_u32 s{S_IT}, 11\ns_cbranch_scc1 {label}_next")
    A(f"s_cmp_ge_u32 s{S_IT}, 4\ns_cbranch_scc1 {label}_wold")
    A(f"s_cmp_ge_u32 s{S_FS}, 56\ns_cbranch_scc1 {label}_next")
    A(f"s_cmp_eq_u32 s{S_IT}, 1\ns_cbranch_scc1 {label}_ffnld")
    A(f"s_cmp_eq_u32 s{S_IT}, 3\ns_cbranch_scc1 {label}_ffn")
    A(f"{label}_next:")
    A(f"s_add_u32 s{S_IT}, s{S_IT}, 1\ns_cmp_lt_u32 s{S_IT}, s{S_NU}\ns_cbranch_scc1 {label}_loop")
    A(f"s_branch {label}_tail")
    A(f"{label}_wold:")
    for G in range(8):
        if G<7: A(f"s_cmp_lg_u32 s{S_IT}, {4+G}\ns_cbranch_scc1 {label}_wo{G+1}")
        for blk in range(7):
            r=(G*7+blk)*4
            A(f"global_load_dwordx4 a[{r}:{r+3}], v{V_WO}, s[{S_WOP}:{S_WOP+1}] offset:{256*blk}")
        A(f"s_add_u32 s{S_WOP}, s{S_WOP}, 7168\ns_addc_u32 s{S_WOP+1}, s{S_WOP+1}, 0\ns_branch {label}_next")
        if G<7: A(f"{label}_wo{G+1}:")
    A(f"{label}_ffnld:")
    T=V_T
    A(f"""v_lshrrev_b32 v{T}, 2, v{V_LANE}
    v_mul_u32_u24 v{V_W1}, 3584, v{T}
    v_and_b32 v{T}, 3, v{V_LANE}
    v_lshl_add_u32 v{V_W1}, v{T}, 4, v{V_W1}
    s_mul_i32 s{S_T}, s{S_W}, {112*3584}
    s_lshl_b32 s{S_T2}, s{S_FS}, 6
    s_add_u32 s{S_T}, s{S_T}, s{S_T2}
    v_add_u32 v{V_W1}, s{S_T}, v{V_W1}
    s_mov_b32 s{S_T}, {16*3584}""")
    for t in range(7):
        A(f"global_load_dwordx4 v[{W1D+4*t}:{W1D+4*t+3}], v{V_W1}, s[{P_W1}:{P_W1+1}]")
        if t<6: A(f"v_add_u32 v{V_W1}, s{S_T}, v{V_W1}")
    A(f"""s_lshl_b32 s{S_T}, s{S_FS}, 2
    s_add_u32 s{S_T}, s{S_T}, s{S_W}
    s_lshl_b32 s{S_T2}, s{S_T}, 4
    s_mul_i32 s{S_T}, s{S_T}, 7168
    s_add_u32 s{P_W2}, s{P_W2}, s{S_T}
    s_addc_u32 s{P_W2+1}, s{P_W2+1}, 0
    v_lshrrev_b32 v{T}, 3, v{V_LANE}
    v_lshlrev_b32 v{T}, 1, v{T}
    v_add_u32 v{T}, s{S_T2}, v{T}""")
    for blk in range(7): A(f"global_load_dwordx4 v[{W2D+4*blk}:{W2D+4*blk+3}], v{V_WO}, s[{P_W2}:{P_W2+1}] offset:{256*blk}")
    A(f"global_load_ushort v{V_B1}, v{T}, s[{P_B1}:{P_B1+1}]")
    A(f"s_branch {label}_next")
    A(f"{label}_ffn:")
    HA=V_T+8
    CH=V_T+16
    for t in range(7): A(f"v_and_b32 v{CH+t}, 0xffff0000, v{CT+t}\nv_and_b32 v{CT+t}, 0xffff, v{CT+t}")
    A("s_waitcnt vmcnt(32)")
    for t in range(7):
        for j in range(4):
            if t==0: A(f"v_dot2_f32_bf16 v{HA+2*j}, v{W1D+j}, v{CT}, 0\nv_dot2_f32_bf16 v{HA+2*j+1}, v{W1D+j}, v{CH}, 0")
            else: A(f"v_dot2c_f32_bf16 v{HA+2*j}, v{W1D+4*t+j}, v{CT+t}\nv_dot2c_f32_bf16 v{HA+2*j+1}, v{W1D+4*t+j}, v{CH+t}")
    A("s_nop 2")
    for u in range(4): A(f"v_permlane32_swap_b32 v{HA+2*u}, v{HA+2*u+1}")
    for u in range(4): A(f"v_add_f32 v{HA+2*u}, v{HA+2*u}, v{HA+2*u+1}")
    A("s_nop 1")
    A(f"v_permlane16_swap_b32 v{HA}, v{HA+2}\nv_permlane16_swap_b32 v{HA+4}, v{HA+6}")
    A(f"v_add_f32 v{HA}, v{HA}, v{HA+2}\nv_add_f32 v{HA+4}, v{HA+4}, v{HA+6}")
    A(f"""s_nop 1
    v_add_f32_dpp v{HA}, v{HA}, v{HA} row_ror:8 row_mask:0xf bank_mask:0x3
    v_add_f32_dpp v{HA}, v{HA+4}, v{HA+4} row_ror:8 row_mask:0xf bank_mask:0xc
    s_nop 1
    v_add_f32_dpp v{HA}, v{HA}, v{HA} row_shl:4 row_mask:0xf bank_mask:0x5""")
    A(f"""v_bfe_u32 v{T}, v{V_LANE}, 3, 1
    v_lshlrev_b32 v{T}, 4, v{T}
    v_bfe_u32 v{T+1}, v{V_LANE}, 4, 1
    v_lshl_add_u32 v{T}, v{T+1}, 3, v{T}
    v_lshrrev_b32 v{T+1}, 5, v{V_LANE}
    v_lshl_add_u32 v{T}, v{T+1}, 2, v{T}
    v_and_b32 v{T+1}, 3, v{V_LANE}
    v_lshl_add_u32 v{T}, v{T+1}, 5, v{T}
    s_lshl_b32 s{S_T}, s{S_W}, 7
    s_add_u32 s{S_T}, s{S_T}, {L_H}
    v_add_u32 v{T}, s{S_T}, v{T}
    s_mov_b32 exec_lo, 0x0f0f0f0f
    s_mov_b32 exec_hi, 0x0f0f0f0f
    ds_write_b32 v{T}, v{HA}
    s_mov_b64 exec, -1
    v_lshrrev_b32 v{T}, 3, v{V_LANE}
    v_lshlrev_b32 v{T}, 2, v{T}
    s_lshl_b32 s{S_T}, s{S_W}, 5
    s_add_u32 s{S_T}, s{S_T}, {L_H}
    v_add_u32 v{T}, s{S_T}, v{T}
    s_waitcnt lgkmcnt(0)
    s_barrier""")
    for w in range(4): A(f"ds_read_b32 v{HA+w}, v{T} offset:{128*w}")
    for j in range(28): A(f"v_mov_b32 v{GA+j}, 0")
    A(f"""s_waitcnt lgkmcnt(0)
    v_add_f32 v{HA}, v{HA}, v{HA+1}
    v_add_f32 v{HA+2}, v{HA+2}, v{HA+3}
    v_add_f32 v{HA}, v{HA}, v{HA+2}
    v_cvt_pk_bf16_f32 v{HA}, v{HA}, v{HA}
    v_lshlrev_b32 v{HA}, 16, v{HA}
    v_lshlrev_b32 v{V_B1}, 16, v{V_B1}
    v_add_f32 v{HA}, v{HA}, v{V_B1}
    v_cvt_pk_bf16_f32 v{HA}, v{HA}, v{HA}
    v_lshlrev_b32 v{HA}, 16, v{HA}
    v_max_f32 v{HA}, 0, v{HA}
    v_mul_f32 v{HA}, v{HA}, v{HA}
    v_cvt_pk_bf16_f32 v{HA}, v{HA}, v{HA}""")
    for j in range(4): A(f"v_and_b32 v{BA+j}, v{HA}, v{MK2+j}")
    A("s_nop 1")
    for blk in range(7):
        A(f"v_mfma_f32_16x16x32_bf16 v[{GA+4*blk}:{GA+4*blk+3}], v[{W2D+4*blk}:{W2D+4*blk+3}], v[{BA}:{BA+3}], v[{GA+4*blk}:{GA+4*blk+3}]")
    A(f"""s_lshl_b32 s{S_T}, s{S_B}, 6
    s_add_u32 s{S_T}, s{S_T}, s{S_FS}
    s_lshl_b32 s{S_T}, s{S_T}, 11
    s_add_u32 s{S_T}, s{S_T}, {ZOFF}
    s_add_u32 s{S_DST}, s{P_WS}, s{S_T}
    s_addc_u32 s{S_DST+1}, s{P_WS+1}, 0
    s_mov_b32 s{S_RET}, 0""")
    A(f"{label}_red:")
    A("s_nop 4")
    for blk in range(7):
        za = V_ZA0 if blk<3 else (V_ZA1 if blk==3 else V_ZA2)
        A(f"ds_write_b128 v{za}, v[{GA+4*blk}:{GA+4*blk+3}] offset:{64*blk}")
    A("s_waitcnt lgkmcnt(0)\ns_barrier")
    A(f"s_cmp_ge_u32 s{S_W}, 2\ns_cbranch_scc1 {label}_redx")
    A(f"v_cmp_gt_u32 vcc, 112, v{V_TID}\ns_and_saveexec_b64 s[{S_T2+1}:{S_T2+2}], vcc")
    R=GA
    regs=[GA+4*i for i in range(7)]+[BA]
    i=0
    for w in range(4):
        for hf in range(2):
            A(f"ds_read_b128 v[{regs[i]}:{regs[i]+3}], v{V_RR} offset:{3584*w+224*hf}"); i+=1
    A("s_waitcnt lgkmcnt(0)")
    for a,b in [(0,1),(2,3),(4,5),(6,7),(0,2),(4,6),(0,4)]:
        for j in range(4): A(f"v_add_f32 v{regs[a]+j}, v{regs[a]+j}, v{regs[b]+j}")
    A(f"global_store_dwordx4 v{V_RS}, v[{GA}:{GA+3}], s[{S_DST}:{S_DST+1}]")
    A("s_mov_b64 exec, -1")
    A(f"{label}_redx:")
    A(f"s_cmp_eq_u32 s{S_RET}, 0\ns_cbranch_scc1 {label}_next")
    A(f"s_branch {label}_fin")
    A(f"{label}_tail:")
    stamp()
    for k in (8,4): A(f"s_nop 1\nv_add_f32_dpp v{LA}, v{LA}, v{LA} row_ror:{k} row_mask:0xf bank_mask:0xf")
    A(f"s_nop 1\nv_add_f32_dpp v{LA}, v{LA}, v{LA} row_bcast:15 row_mask:0xa bank_mask:0xf")
    A(f"s_nop 1\nv_add_f32_dpp v{LA}, v{LA}, v{LA} row_bcast:31 row_mask:0xc bank_mask:0xf")
    A(f"""s_lshl_b32 s{S_T}, s{S_W}, 3
    s_add_u32 s{S_T}, s{S_T}, {L_ML}
    v_mov_b32 v{T}, s{S_T}
    ds_write_b128 v{V_OW}, v[{OA}:{OA+3}]
    s_mov_b32 exec_lo, 0
    s_mov_b32 exec_hi, 0x80000000
    ds_write_b64 v{T}, v[{LA}:{LA+1}]
    s_mov_b64 exec, -1
    v_mov_b32 v{T}, {L_ML}""")
    for j in range(28): A(f"v_mov_b32 v{GA+j}, 0")
    A("s_waitcnt lgkmcnt(0)\ns_barrier")
    ML=V_T+8
    A(f"ds_read_b128 v[{ML}:{ML+3}], v{T}\nds_read_b128 v[{ML+4}:{ML+7}], v{T} offset:16")
    OR=KST
    for w in range(4):
        A(f"ds_read_b128 v[{OR+8*w}:{OR+8*w+3}], v{V_OR} offset:{1024*w}\nds_read_b128 v[{OR+8*w+4}:{OR+8*w+7}], v{V_OR} offset:{1024*w+16}")
    A("s_waitcnt lgkmcnt(8)")
    M=V_T+2
    A(f"v_max3_f32 v{M}, v{ML+1}, v{ML+3}, v{ML+5}\nv_max_f32 v{M}, v{M}, v{ML+7}")
    for w in range(4): A(f"v_sub_f32 v{ML+2*w+1}, v{ML+2*w+1}, v{M}")
    for w in range(4): A(f"v_exp_f32 v{ML+2*w+1}, v{ML+2*w+1}")
    A(f"v_mul_f32 v{M+1}, v{ML}, v{ML+1}")
    for w in range(1,4): A(f"v_fmac_f32 v{M+1}, v{ML+2*w}, v{ML+2*w+1}")
    A("s_waitcnt lgkmcnt(0)")
    for G in range(8): A(f"v_mul_f32 v{OR+G}, v{OR+G}, v{ML+1}")
    for w in range(1,4):
        for G in range(8): A(f"v_fmac_f32 v{OR+G}, v{OR+8*w+G}, v{ML+2*w+1}")
    for G in range(8): A(f"v_cvt_pk_bf16_f32 v{OR+G}, v{OR+G}, v{OR+G}")
    A(f"""s_lshl_b32 s{S_T}, s{S_B}, 6
    s_add_u32 s{S_T}, s{S_T}, s{S_FS}
    s_lshl_b32 s{S_T}, s{S_T}, 11
    s_add_u32 s{S_DST}, s{P_WS}, s{S_T}
    s_addc_u32 s{S_DST+1}, s{P_WS+1}, 0
    s_mov_b32 s{S_RET}, 1""")
    for j in range(4): A(f"v_and_b32 v{BA+j}, v{OR}, v{MK2+j}")
    for G in range(8):
        cur = BA if G%2==0 else BB
        nxt = BB if G%2==0 else BA
        if G<7:
            for j in range(4): A(f"v_and_b32 v{nxt+j}, v{OR+G+1}, v{MK2+j}")
        else: A("s_nop 1")
        for blk in range(7):
            r=(G*7+blk)*4
            A(f"v_mfma_f32_16x16x32_bf16 v[{GA+4*blk}:{GA+4*blk+3}], a[{r}:{r+3}], v[{cur}:{cur+3}], v[{GA+4*blk}:{GA+4*blk+3}]")
    A(f"""s_cmp_lg_u32 s{S_W}, 3
    s_cbranch_scc1 {label}_red
    v_mov_b32 v{T}, 0
    s_mov_b64 exec, 1
    global_store_dwordx2 v{T}, v[{M}:{M+1}], s[{S_DST}:{S_DST+1}] offset:1792
    s_mov_b64 exec, -1
    s_branch {label}_red""")
    A(f"{label}_fin:")
    if stamps:
        stamp()
        A(f"s_cmp_lg_u32 s{S_W}, 0\ns_cbranch_scc1 {label}_end")
        A(f"s_lshl_b32 s{S_T}, s2, 7\ns_add_u32 s{S_T}, s{S_T}, 0x10000000\ns_add_u32 s{P_WS}, s{P_WS}, s{S_T}\ns_addc_u32 s{P_WS+1}, s{P_WS+1}, 0")
        A("s_waitcnt lgkmcnt(0) vmcnt(0)\nv_mov_b32 v1, 0")
        for k in range(nst[0]):
            A(f"v_mov_b32 v{KST+2*k}, s{S_ST+2*k}\nv_mov_b32 v{KST+2*k+1}, s{S_ST+2*k+1}\nglobal_store_dwordx2 v1, v[{KST+2*k}:{KST+2*k+1}], s[{P_WS}:{P_WS+1}] offset:{8*k}")
    A(f"{label}_end:\ns_endpgm")
    return A.text()

def gen_final(label):
    A=E()
    A(f".globl {label}\n.p2align 8\n.type {label},@function\n{label}:")
    A(f"s_cmp_ge_u32 s2, 28\ns_cbranch_scc1 {label}_end")
    A("s_load_dwordx2 s[16:17], s[0:1], 0\ns_load_dwordx4 s[32:35], s[0:1], 72\ns_load_dwordx2 s[40:41], s[0:1], 96")
    A("""v_lshrrev_b32 v2, 6, v0
    v_and_b32 v1, 63, v0
    s_mul_i32 s4, s2, 37
    v_readfirstlane_b32 s3, v2
    s_lshr_b32 s4, s4, 8
    s_mul_i32 s5, s4, 7
    s_sub_u32 s5, s2, s5""")
    A("""s_lshl_b32 s6, s4, 6
    s_lshl_b32 s7, s3, 4
    s_add_u32 s7, s7, s6
    s_lshl_b32 s7, s7, 11
    s_lshl_b32 s8, s5, 8
    s_add_u32 s7, s7, s8
    v_lshrrev_b32 v3, 4, v1
    v_lshlrev_b32 v4, 11, v3
    v_and_b32 v5, 15, v1
    v_lshl_add_u32 v4, v5, 4, v4
    v_add_u32 v4, s7, v4
    v_add_u32 v5, 0x2000, v4
    v_add_u32 v6, 0x4000, v4
    v_add_u32 v7, 0x6000, v4
    s_lshl_b32 s6, s6, 11
    v_lshlrev_b32 v8, 11, v1
    v_add_u32 v8, s6, v8""")
    A("""s_lshl_b32 s8, s5, 6
    v_add_u32 v9, s8, v1
    v_mul_u32_u24 v10, 1171, v9
    v_lshrrev_b32 v10, 16, v10
    v_mul_u32_u24 v11, 56, v10
    v_sub_u32 v11, v9, v11
    v_lshl_add_u32 v11, v11, 3, v10
    v_lshlrev_b32 v11, 1, v11
    s_mul_i32 s8, s4, 896
    v_add_u32 v12, s8, v11
    s_waitcnt lgkmcnt(0)""")
    A(f"s_add_u32 s42, s40, {ZOFF}\ns_addc_u32 s43, s41, 0")
    A("global_load_dwordx2 v[14:15], v8, s[40:41] offset:1792")
    for k in range(4): A(f"global_load_dwordx4 v[{16+4*k}:{19+4*k}], v{4+k}, s[40:41]")
    for k in range(8): A(f"v_mov_b32 v{40+k}, 0")
    for k in range(2): A(f"global_load_dwordx4 v[{32+4*k}:{35+4*k}], v{4+k}, s[42:43]")
    A(f"s_cmp_eq_u32 s3, 3\ns_cbranch_scc1 {label}_noz")
    for k in range(2,4): A(f"global_load_dwordx4 v[{32+4*k}:{35+4*k}], v{4+k}, s[42:43]")
    A(f"{label}_noz:")
    A("global_load_ushort v48, v12, s[16:17]\nglobal_load_ushort v49, v11, s[32:33]")
    A("s_lshl_b32 s8, s3, 6\nv_lshlrev_b32 v50, 2, v3\nv_add_u32 v50, s8, v50")
    A("s_waitcnt vmcnt(0)")
    A("""v_max_f32_dpp v13, v14, v14 quad_perm:[1,0,3,2] row_mask:0xf bank_mask:0xf
    s_nop 1
    v_max_f32_dpp v13, v13, v13 quad_perm:[2,3,0,1] row_mask:0xf bank_mask:0xf
    v_sub_f32 v14, v14, v13
    v_exp_f32 v14, v14
    s_nop 0
    v_mul_f32 v15, v15, v14
    s_nop 1
    v_add_f32_dpp v15, v15, v15 quad_perm:[1,0,3,2] row_mask:0xf bank_mask:0xf
    s_nop 1
    v_add_f32_dpp v15, v15, v15 quad_perm:[2,3,0,1] row_mask:0xf bank_mask:0xf
    v_rcp_f32 v15, v15
    s_nop 0
    v_mul_f32 v14, v14, v15""")
    for k in range(4): A(f"ds_bpermute_b32 v{52+k}, v50, v14 offset:{16*k}")
    for j in range(4): A(f"v_add_f32 v{32+j}, v{32+j}, v{36+j}\nv_add_f32 v{40+j}, v{40+j}, v{44+j}")
    for j in range(4): A(f"v_add_f32 v{32+j}, v{32+j}, v{40+j}")
    A("s_waitcnt lgkmcnt(0)")
    for j in range(4): A(f"v_mul_f32 v{16+j}, v{16+j}, v52")
    for k in range(1,4):
        for j in range(4): A(f"v_fmac_f32 v{16+j}, v{16+4*k+j}, v{52+k}")
    A("s_nop 1")
    for j in range(4): A(f"v_permlane32_swap_b32 v{16+j}, v{32+j}")
    for j in range(4): A(f"v_add_f32 v{16+j}, v{16+j}, v{32+j}")
    A("s_nop 1\nv_permlane16_swap_b32 v16, v17\nv_permlane16_swap_b32 v18, v19\nv_add_f32 v16, v16, v17\nv_add_f32 v18, v18, v19")
    A("""v_lshrrev_b32 v20, 5, v1
    v_lshlrev_b32 v20, 8, v20
    v_and_b32 v21, 15, v1
    v_lshl_add_u32 v20, v21, 4, v20
    v_and_b32 v21, 1, v3
    v_lshl_add_u32 v20, v21, 2, v20
    s_lshl_b32 s8, s3, 9
    v_add_u32 v20, s8, v20
    ds_write_b32 v20, v16
    ds_write_b32 v20, v18 offset:8
    s_waitcnt lgkmcnt(0)
    s_barrier""")
    A(f"s_cmp_lg_u32 s3, 0\ns_cbranch_scc1 {label}_end")
    A("v_lshlrev_b32 v20, 2, v1")
    for w in range(4): A(f"ds_read_b32 v{24+w}, v20 offset:{512*w}\nds_read_b32 v{28+w}, v20 offset:{512*w+256}")
    A(f"""s_waitcnt lgkmcnt(0)
    v_add_f32 v24, v24, v25
    v_add_f32 v26, v26, v27
    v_add_f32 v28, v28, v29
    v_add_f32 v30, v30, v31
    v_add_f32 v24, v24, v26
    v_add_f32 v28, v28, v30
    v_cvt_pk_bf16_f32 v24, v28, v24
    v_lshlrev_b32 v28, 16, v24
    v_and_b32 v24, 0xffff0000, v24
    v_lshlrev_b32 v49, 16, v49
    v_add_f32 v28, v28, v49
    v_cvt_pk_bf16_f32 v28, v28, v28
    v_lshlrev_b32 v28, 16, v28
    v_mul_f32 v29, {hex(f2u(-LOG2E))}, v28
    v_exp_f32 v29, v29
    s_nop 0
    v_add_f32 v29, 1.0, v29
    v_rcp_f32 v29, v29
    s_nop 0
    v_mul_f32 v28, v28, v29
    v_cvt_pk_bf16_f32 v28, v28, v28
    v_lshlrev_b32 v28, 16, v28
    v_mul_f32 v24, v24, v28
    v_cvt_pk_bf16_f32 v24, v24, v24
    v_lshlrev_b32 v24, 16, v24
    v_lshlrev_b32 v48, 16, v48
    v_add_f32 v24, v24, v48
    v_cvt_pk_bf16_f32 v24, v24, v24
    global_store_short v12, v24, s[34:35]""")
    A(f"{label}_end:\ns_endpgm")
    return A.text()

def kdesc(label, vgpr, accum, sgpr):
    return f""".amdhsa_kernel {label}
  .amdhsa_next_free_vgpr {vgpr}
  .amdhsa_next_free_sgpr {sgpr}
  .amdhsa_accum_offset {accum}
  .amdhsa_group_segment_fixed_size 0
  .amdhsa_kernarg_size 104
  .amdhsa_user_sgpr_count 2
  .amdhsa_user_sgpr_kernarg_segment_ptr 1
  .amdhsa_system_sgpr_workgroup_id_x 1
  .amdhsa_float_denorm_mode_32 3
.end_amdhsa_kernel
"""

def full(stamps=False):
    ref=open(f"cdna_kernels/{NAME}.s.ref").read().split("\n")
    hdr=[l for l in ref if l.startswith(";") and "@launch" not in l and "Override launch" not in l and "grid=ceil" not in l]
    main=NAME+"_kernel"; fin="final_kernel"
    t="\n".join(hdr)+"\n"
    t+=f"; @launch kernel={main} grid=(256,1,1) block=(256,1,1) lds={LDS_TOTAL}\n"
    t+=f"; @launch kernel={fin} grid=(28,1,1) block=(256,1,1) lds=2048\n"
    t+='.amdgcn_target "amdgcn-amd-amdhsa--gfx950"\n.text\n'
    t+=gen_main(main, stamps)+gen_final(fin)
    t+='.section .rodata,"a"\n.p2align 6\n'+kdesc(main, 256+224, 256, 100)+".p2align 6\n"+kdesc(fin, 64, 64, 48)
    return t, [(main,256),(fin,256)]

if __name__=="__main__":
    for p in range(448): assert (p*1171)>>16 == p//56
    for p in range(256): assert (p*4682)>>16 == p//14, p
    for p in range(28): assert (p*37)>>8 == p//7
    t,ks=full(False)
    open(f"cdna_kernels/{NAME}.s","w").write(t)
    build(t,"k",ks)
    t,ks=full(True)
    build(t,"ks",ks)
    print("LDS",LDS_TOTAL)
```

```python
from asmlib import *
def gen(label, NW, NT, NACT=256, extra=0, W=None, xflags="nt", spread=False):
    NWG=256
    perwg = (128<<20)//NWG
    perwave = perwg//NW
    ntile = perwave//8192
    if W is None: W=8*(NT-1)
    o=[];A=o.append
    A(f".globl {label}\n.p2align 8\n.type {label},@function\n{label}:")
    A(f"s_cmp_ge_u32 s2, {NACT}\ns_cbranch_scc1 {label}_end")
    A("s_memrealtime s[20:21]")
    A("s_load_dwordx4 s[4:7], s[0:1], 8")
    A("s_load_dwordx2 s[8:9], s[0:1], 96")
    A("s_load_dwordx2 s[28:29], s[0:1], 32")
    A("v_lshrrev_b32 v1, 6, v0\ns_nop 0\nv_readfirstlane_b32 s3, v1")
    A("v_and_b32 v2, 63, v0\nv_lshlrev_b32 v2, 4, v2")
    A(f"s_and_b32 s10, s2, 7\ns_lshr_b32 s11, s2, 3\ns_mul_i32 s10, s10, {NWG//8}\ns_add_u32 s10, s10, s11")
    A(f"s_mul_i32 s10, s10, {perwg}\ns_lshl_b32 s11, s3, 13\ns_add_u32 s10, s10, s11")
    tstep=8192*NW
    A("s_and_b32 s13, s2, 7\ns_lshl_b32 s13, s13, 1\ns_bfe_u32 s12, s2, 0x10003\ns_or_b32 s13, s13, s12\ns_mul_i32 s13, s13, 229376")
    A(f"s_mul_i32 s12, s3, {229376//NW}\ns_add_u32 s13, s13, s12\nv_add_u32 v7, s13, v2")
    A("s_waitcnt lgkmcnt(0)")
    A("s_add_u32 s4, s4, s10\ns_addc_u32 s5, s5, 0\ns_add_u32 s6, s6, s10\ns_addc_u32 s7, s7, 0")
    A("v_mov_b32 v3, 0")
    A(f"s_mul_i32 s14, s3, {NT*8192}")
    A("v_add_u32 v4, 4096, v2")
    A("v_add_u32 v5, s14, v2")
    def xl():
        A(f"global_load_dwordx4 v[40:43], v7, s[28:29] {xflags}\nv_add_u32 v7, 0x400, v7")
    def dma(sb, nx=0):
        A("s_add_u32 m0, s14, s15")
        A("s_nop 0")
        k=0
        for j in range(8):
            if j==4: A("s_add_u32 m0, m0, 4096\ns_nop 0")
            A(f"global_load_lds_dwordx4 v{2 if j<4 else 4}, s[{sb}:{sb+1}] offset:{(j%4)*1024} nt")
            if spread and k<nx and j%2==1: xl(); k+=1
        while k<nx: xl(); k+=1
        A(f"s_add_u32 s{sb}, s{sb}, {tstep}\ns_addc_u32 s{sb+1}, s{sb+1}, 0")
        A(f"s_add_u32 s15, s15, 8192\ns_cmp_eq_u32 s15, {NT*8192}\ns_cselect_b32 s15, 0, s15")
    A("s_mov_b32 s15, 0")
    for i in range(NT): dma(4 if i%2==0 else 6)
    A("s_mov_b32 s12, 0")
    A(f"{label}_loop:")
    for half in range(2):
        A(f"s_waitcnt vmcnt({W})")
        A("v_add_u32 v6, s15, v5")
        for j in range(8): A(f"ds_read_b128 v[{8+4*j}:{11+4*j}], v6 offset:{j*1024}")
        A("s_waitcnt lgkmcnt(0)")
        dma(4 if half==0 else 6, extra if (spread or half==1) else 0)
        for j in range(8): A(f"v_xor_b32 v3, v3, v{8+4*j}")
    A(f"s_add_u32 s12, s12, 1\ns_cmp_lt_u32 s12, {ntile-NT//2}\ns_cbranch_scc1 {label}_loop")
    A("s_waitcnt vmcnt(0)")
    A("s_barrier")
    A("s_memrealtime s[24:25]")
    A("s_cmp_lg_u32 s3, 0\ns_cbranch_scc1 %s_end"%label)
    A("s_lshl_b32 s10, s2, 7\ns_add_u32 s8, s8, s10\ns_addc_u32 s9, s9, 0\ns_add_u32 s8, s8, 0x10000000\ns_addc_u32 s9, s9, 0")
    A("s_waitcnt lgkmcnt(0)")
    A("v_mov_b32 v8, s20\nv_mov_b32 v9, s21\nv_mov_b32 v10, s24\nv_mov_b32 v11, s25\nv_mov_b32 v1, 0")
    A("v_cmp_eq_u32 vcc, 0x12345, v3\nv_cndmask_b32 v8, v8, v3, vcc")
    A("global_store_dwordx4 v1, v[8:11], s[8:9]")
    A(f"{label}_end:\ns_endpgm")
    return "\n".join(o)+"\n"+kd(label, 48, 32)
hdr='.amdgcn_target "amdgcn-amd-amdhsa--gfx950"\n.text\n'
ks=[];txt=hdr;cfgs=[]
def add(lab,NW,NT,**k):
    global txt
    lab+="_kernel"
    txt+=gen(lab,NW,NT,**k); ks.append((lab,NW*64)); cfgs.append(f"{lab}:{k.get('NACT',256)}:{NW*64}:{NW*NT*8192}")
add("base",4,4)
add("a128",4,4,NACT=128)
add("a64",4,4,NACT=64)
add("a32",4,4,NACT=32)
add("w4",4,4,W=4)
add("w0",4,2,W=0)
add("x4",4,4,extra=4)
add("x4d",4,4,extra=4,xflags="")
add("x2s",4,4,extra=2,spread=True)
add("x2sd",4,4,extra=2,spread=True,xflags="")
add("x4w32",4,4,extra=4,W=32)
build(txt,"stream4",ks)
open("stream4.cfg","w").write("\n".join(cfgs)+"\n")
```

```python
import sys, struct
from asmlib import build
NAME="recurrent_scan__mha_block_cached__dense_activation_squared_relu__decode"
def f2u(x): return struct.unpack("<I", struct.pack("<f", x))[0]
LOG2E=1.4426950408889634
CSC=f2u(LOG2E/16.0)
class E:
    def __init__(s): s.o=[]
    def __call__(s, t):
        for ln in t.split("\n"):
            ln=ln.strip()
            if ln: s.o.append(("" if ln.endswith(":") else "    ")+ln)
    def text(s): return "\n".join(s.o)+"\n"

V_TID=0; V_LANE=1; V_OFF=2; V_OFF2=3
MK=4; MK2=8; OA=12; LA=16; VM=17; PA=18; PB=19
QP=20
XT=28
BA=36; BB=40
KST=44; VST=76
CT=108
V_LDSR=115
W1D=116; W2D=144; GA=172
V_WO=200; V_B1=201; V_QPA=202; V_W1=203
V_T=204
V_ZA0=236; V_ZA1=237; V_ZA2=238; V_OW=239; V_OR=240; V_RR=241; V_RS=242; V_TAG=243; V_ZERO=244; V_CLM=245
KX=W1D; VX=W1D+32
CA=246; CMA=250; CBP=251; CCOL=252; COUT=253; V_ONE=254
S_W=3; S_K=4; S_V=6; S_LB=8; S_RO=9; S_IT=10; S_M=11; S_T=12; S_H=13; S_B=14; S_SP=15
P_X=16;P_K=18;P_V=20;P_WQ=22;P_WO=24;P_W1=28;P_B1=30;P_W2=32;P_B2=34;P_OUT=36;P_DBG=38;P_WS=40
S_NU=42; S_FS=43; S_C=44; S_T2=45; S_T3=46; S_T4=47; S_ROT=48; S_TAG=49; S_DST=50; S_WOP=52; S_LZ=54; S_RD=55; S_SPIN=56; S_REM=57
S_CB=58; S_CG=59; S_Y=60; S_Z=62
S_CNT=26
S_PART=96; S_ROLE=97; S_U=98; S_TG=99
S_ST=64
SCR=131072
L_Q=SCR; L_H=SCR+4096; L_ML=SCR+5120; L_MS=SCR+5184; L_O=SCR+5248; L_Z=SCR+9344; ZW=8*464; L_DUMP=L_Z+4*ZW; L_F=L_DUMP+1024
LDS_TOTAL=L_F+1024
QXOFF=0x1000; YOFF=0x100000; ZOFF=0x200000; CNTOFF=0x300000
NCONS=56
SPIN_MAX=1<<20

def gen_main(label, stamps=0, NS=12, WF="nt", KF="nt", VF="nt", MAP=1, STW=0, XU=1, QPRE=4, PF='sc1', QSP=0, FSP=2, WO0=1, ORD=1, ROT=4, WOF=''):
    if WOF is None: WOF=WF
    USTEP=0x2000 if ORD==0 else 0x20000
    cnt=[0]
    A=E()
    POOL=256-16*NS
    nst=[0]
    def stamp():
        if stamps:
            A(f"s_memrealtime s[{S_ST+2*nst[0]}:{S_ST+2*nst[0]+1}]"); nst[0]+=1
    def pstamp(k):
        if stamps==2:
            A(f"s_memrealtime s[{S_ST+2*k}:{S_ST+2*k+1}]"); nst[0]=max(nst[0],k+1)
    T=V_T; U=T+8
    A(f".globl {label}\n.p2align 8\n.type {label},@function\n{label}:")
    A(f"s_cmp_ge_u32 s2, 256\ns_cbranch_scc1 {label}_end")
    stamp()
    A("s_load_dwordx16 s[16:31], s[0:1], 0\ns_load_dwordx2 s[40:41], s[0:1], 96\ns_load_dwordx8 s[32:39], s[0:1], 64")
    A(f"v_lshrrev_b32 v{XT}, 6, v0\nv_and_b32 v{V_LANE}, 63, v0\nv_lshlrev_b32 v{V_OFF}, 4, v{V_LANE}")
    A(f"v_readfirstlane_b32 s{S_W}, v{XT}")
    if MAP==0:
        A(f"""s_and_b32 s{S_H}, s2, 7
        s_lshl_b32 s{S_H}, s{S_H}, 1
        s_bfe_u32 s{S_T}, s2, 0x10003
        s_or_b32 s{S_H}, s{S_H}, s{S_T}
        s_bfe_u32 s{S_B}, s2, 0x20004
        s_lshr_b32 s{S_SP}, s2, 6""")
    elif MAP==1:
        A(f"""s_bfe_u32 s{S_H}, s2, 0x20001
        s_lshl_b32 s{S_H}, s{S_H}, 2
        s_bfe_u32 s{S_T}, s2, 0x20003
        s_or_b32 s{S_H}, s{S_H}, s{S_T}
        s_bfe_u32 s{S_B}, s2, 0x20005
        s_lshr_b32 s{S_SP}, s2, 7
        s_lshl_b32 s{S_SP}, s{S_SP}, 1
        s_and_b32 s{S_T}, s2, 1
        s_or_b32 s{S_SP}, s{S_SP}, s{S_T}""")
    elif MAP==2:
        A(f"""s_bfe_u32 s{S_H}, s2, 0x10001
        s_lshl_b32 s{S_H}, s{S_H}, 3
        s_bfe_u32 s{S_T}, s2, 0x30003
        s_or_b32 s{S_H}, s{S_H}, s{S_T}
        s_lshr_b32 s{S_B}, s2, 6
        s_bfe_u32 s{S_SP}, s2, 0x10002
        s_lshl_b32 s{S_SP}, s{S_SP}, 1
        s_and_b32 s{S_T}, s2, 1
        s_or_b32 s{S_SP}, s{S_SP}, s{S_T}""")
    A(f"v_add_u32 v{V_OFF2}, 0x1000, v{V_OFF}\nv_mov_b32 v{V_ZERO}, 0")
    A(f"""s_lshl_b32 s{S_T}, s{S_B}, 4
    s_add_u32 s{S_T4}, s{S_T}, s{S_H}
    s_lshl_b32 s{S_T}, s{S_T4}, 21
    s_lshl_b32 s{S_U}, s{S_SP}, 2
    s_add_u32 s{S_U}, s{S_U}, s{S_W}
    s_mul_i32 s{S_U}, s{S_U}, {NS*8192 if ORD==0 else 8192}
    s_mul_i32 s{S_ROT}, s{S_T4}, {ROT*8192}
    s_lshl_b32 s{S_LB}, s{S_W}, 15
    s_mov_b32 s{S_RO}, 0""")
    A(f"v_lshrrev_b32 v{T}, 4, v{V_LANE}\nv_and_b32 v{T+1}, 15, v{V_LANE}")
    def kvbase():
        A(f"""s_add_u32 s{P_K}, s{P_K}, s{S_T}
        s_addc_u32 s{P_K+1}, s{P_K+1}, 0
        s_add_u32 s{P_V}, s{P_V}, s{S_T}
        s_addc_u32 s{P_V+1}, s{P_V+1}, 0""")
    def setptr():
        A(f"""s_add_u32 s{S_V}, s{S_U}, s{S_ROT}
        s_and_b32 s{S_V}, s{S_V}, 0x1fffff
        s_add_u32 s{S_K}, s{P_K}, s{S_V}
        s_addc_u32 s{S_K+1}, s{P_K+1}, 0
        s_add_u32 s{S_V}, s{P_V}, s{S_V}
        s_addc_u32 s{S_V+1}, s{P_V+1}, 0""")
    def direct(reg, sb, js=range(8)):
        for j in js:
            vo = V_OFF if j<4 else V_OFF2
            A(f"global_load_dwordx4 v[{reg+4*j}:{reg+4*j+3}], v{vo}, s[{sb}:{sb+1}] offset:{(j%4)*1024} {KF if sb==S_K else VF}")
    def dma(sb, m0src):
        A(m0src+"\ns_nop 0")
        for j in range(8):
            vo = V_OFF if j<4 else V_OFF2
            if j==4: A("s_add_u32 m0, m0, 0x1000\ns_nop 0")
            A(f"global_load_lds_dwordx4 v{vo}, s[{sb}:{sb+1}] offset:{(j%4)*1024} {KF if sb==S_K else VF}")
    def qpoll(fl="sc1"):
        A(f"global_load_dwordx4 v[{QP}:{QP+3}], v{V_QPA}, s[{P_WS}:{P_WS+1}] {fl}\nglobal_load_dwordx4 v[{QP+4}:{QP+7}], v{V_QPA}, s[{P_WS}:{P_WS+1}] offset:16 {fl}")
    def nextu(): A(f"s_add_u32 s{S_U}, s{S_U}, {USTEP}"); setptr()
    XA=W1D
    XS=W1D+14
    TB=W1D+28
    F=VST
    S=U+4; MEAN=S+4; RD=S+5
    A(f"s_mov_b32 s{S_FS}, s{S_T4}")
    A(f"""s_cmp_eq_u32 s{S_SP}, {QSP}
    s_cselect_b32 s{S_ROLE}, 1, 0
    s_cmp_lg_u32 s{S_SP}, {FSP}
    s_cbranch_scc1 {label}_rset
    s_cmp_lt_u32 s{S_FS}, 56
    s_cselect_b32 s{S_ROLE}, 2, 0
    {label}_rset:
    s_cmp_lg_u32 s{S_ROLE}, 0
    s_cbranch_scc1 {label}_role
    s_waitcnt lgkmcnt(0)""")
    pstamp(1)
    kvbase(); setptr()
    direct(KST,S_K)
    A(f"global_load_dword v{V_TAG}, v{V_ZERO}, s[{P_WS}:{P_WS+1}] sc1")
    A(f"s_branch {label}_stream0")
    A(f"{label}_role:")
    A(f"v_mul_u32_u24 v{T+2}, 896, v{T}\nv_mul_u32_u24 v{T+3}, 56, v{T+1}\nv_add_u32 v{T+2}, v{T+2}, v{T+3}")
    A(f"s_mul_i32 s{S_T2}, s{S_W}, 224\nv_mul_u32_u24 v{T+3}, 896, v{T+1}\nv_lshl_add_u32 v{T+3}, v{T}, 3, v{T+3}\nv_add_u32 v{T+3}, s{S_T2}, v{T+3}")
    A(f"v_cmp_eq_u32 vcc, 4, v{T+1}\nv_mov_b32 v{T+5}, 0x3f803f80\ns_add_u32 m0, s{S_LB}, 0x4000\nv_cndmask_b32 v{XA}, 0, v{T+5}, vcc")
    for i in range(1,14): A(f"v_mov_b32 v{XA+i}, v{XA}")
    A(f"v_mov_b32 v{T+6}, {L_MS}\nv_lshl_add_u32 v{T+6}, v{T}, 3, v{T+6}")
    def xloads():
        A(f"s_cmp_lg_u32 s{S_W}, 0\ns_cbranch_scc1 {label}_nx{cnt[0]}")
        for i in range(3): A(f"global_load_dwordx4 v[{XS+4*i}:{XS+4*i+3}], v{T+2}, s[{P_X}:{P_X+1}] offset:{16*i}")
        A(f"global_load_dwordx2 v[{XS+12}:{XS+13}], v{T+2}, s[{P_X}:{P_X+1}] offset:48")
        A(f"{label}_nx{cnt[0]}:"); cnt[0]+=1
        A("s_mov_b32 exec_lo, 0x000f000f\ns_mov_b32 exec_hi, 0x000f000f")
        for i in range(7): A(f"global_load_dwordx2 v[{XA+2*i}:{XA+2*i+1}], v{T+3}, s[{P_X}:{P_X+1}] offset:{32*i}")
        A("s_mov_b64 exec, -1")
        A(f"global_load_dword v{V_TAG}, v{V_ZERO}, s[{P_WS}:{P_WS+1}] sc1")
    def rsum(r):
        for k in (8,4,2,1): A(f"s_nop 1\nv_add_f32_dpp v{r}, v{r}, v{r} row_ror:{k} row_mask:0xf bank_mask:0xf")
    def stats(nyounger, FF):
        A(f"s_cmp_lg_u32 s{S_W}, 0\ns_cbranch_scc1 {label}_ns{cnt[0]}")
        A(f"s_waitcnt vmcnt({nyounger})")
        for i in range(14): A(f"v_lshlrev_b32 v{FF+2*i}, 16, v{XS+i}\nv_and_b32 v{FF+2*i+1}, 0xffff0000, v{XS+i}")
        A(f"v_add_f32 v{S}, v{FF}, v{FF+1}\nv_add_f32 v{S+1}, v{FF+2}, v{FF+3}")
        for i in range(4,28,2): A(f"v_add_f32 v{S}, v{S}, v{FF+i}\nv_add_f32 v{S+1}, v{S+1}, v{FF+i+1}")
        A(f"v_add_f32 v{S}, v{S}, v{S+1}")
        rsum(S)
        A(f"v_mul_f32 v{S}, {hex(f2u(1.0/448))}, v{S}")
        for i in range(28): A(f"v_sub_f32 v{FF+i}, v{FF+i}, v{S}")
        A(f"v_mul_f32 v{S+1}, v{FF}, v{FF}\nv_mul_f32 v{S+2}, v{FF+1}, v{FF+1}")
        for i in range(2,28,2): A(f"v_fmac_f32 v{S+1}, v{FF+i}, v{FF+i}\nv_fmac_f32 v{S+2}, v{FF+i+1}, v{FF+i+1}")
        A(f"v_add_f32 v{S+1}, v{S+1}, v{S+2}")
        rsum(S+1)
        A(f"""v_mul_f32 v{S+1}, {hex(f2u(1.0/448))}, v{S+1}
        v_cvt_pk_bf16_f32 v{S+1}, v{S+1}, v{S}
        v_and_b32 v{MEAN}, 0xffff0000, v{S+1}
        v_lshlrev_b32 v{S+1}, 16, v{S+1}
        v_add_f32 v{S+1}, {hex(f2u(1e-5))}, v{S+1}
        v_cvt_pk_bf16_f32 v{S+1}, v{S+1}, v{S+1}
        v_lshlrev_b32 v{S+1}, 16, v{S+1}
        v_sqrt_f32 v{S+1}, v{S+1}
        s_nop 0
        v_cvt_pk_bf16_f32 v{S+1}, v{S+1}, v{S+1}
        v_lshlrev_b32 v{S+1}, 16, v{S+1}
        v_rcp_f32 v{RD}, v{S+1}
        s_nop 0
        ds_write_b64 v{T+6}, v[{MEAN}:{MEAN+1}]
        {label}_ns{cnt[0]}:"""); cnt[0]+=1
    A(f"s_cmp_eq_u32 s{S_ROLE}, 2\ns_cbranch_scc1 {label}_ffn")
    A(f"""s_mul_i32 s{S_T2}, s{S_W}, {112*8192}
    s_lshl_b32 s{S_T3}, s{S_H}, 9
    s_add_u32 s{S_T2}, s{S_T2}, s{S_T3}
    s_lshl_b32 s{S_T3}, s{S_B}, 7
    s_add_u32 s{S_T2}, s{S_T2}, s{S_T3}
    v_lshrrev_b32 v{T+4}, 3, v{V_LANE}
    v_lshlrev_b32 v{T+4}, 13, v{T+4}
    v_and_b32 v{T+5}, 7, v{V_LANE}
    v_lshl_add_u32 v{T+4}, v{T+5}, 4, v{T+4}
    v_add_u32 v{T+4}, s{S_T2}, v{T+4}
    s_mov_b32 s{S_T2}, 0x10000
    v_lshrrev_b32 v{T+5}, 2, v{V_LANE}
    v_lshlrev_b32 v{T+5}, 7, v{T+5}
    v_and_b32 v{U+3}, 3, v{V_LANE}
    v_lshl_add_u32 v{T+5}, v{U+3}, 3, v{T+5}
    s_add_u32 s{S_T3}, s{S_LB}, 0x4000
    v_add_u32 v{T+5}, s{S_T3}, v{T+5}
    s_waitcnt lgkmcnt(0)""")
    pstamp(1)
    xloads()
    for i in range(14):
        A(f"global_load_lds_dwordx4 v{T+4}, s[{P_WQ}:{P_WQ+1}] {WF}")
        if i<13: A(f"s_add_u32 m0, m0, 0x400\nv_add_u32 v{T+4}, s{S_T2}, v{T+4}")
    kvbase(); setptr()
    direct(KST,S_K,range(QPRE))
    A(f"""s_lshl_b32 s{S_T2}, s{S_W}, 11
    s_add_u32 s{S_T2}, s{S_T2}, {L_Z}
    v_add_u32 v{U}, s{S_T2}, v{V_OFF}
    s_lshl_b32 s{S_T2}, s{S_W}, 9
    s_add_u32 s{S_T2}, s{S_T2}, {L_Z}
    v_lshlrev_b32 v{U+2}, 4, v{T+1}
    v_add_u32 v{U+2}, s{S_T2}, v{U+2}
    v_lshl_add_u32 v{U+1}, v{T}, 2, v{U+2}
    s_lshl_b32 s{S_T2}, s{S_H}, 10
    s_lshl_b32 s{S_T3}, s{S_B}, 8
    s_add_u32 s{S_T2}, s{S_T2}, s{S_T3}
    s_lshl_b32 s{S_T3}, s{S_W}, 6
    s_add_u32 s{S_T2}, s{S_T2}, s{S_T3}
    s_add_u32 s{S_T2}, s{S_T2}, {QXOFF}
    v_lshlrev_b32 v{T+2}, 14, v{T}
    v_lshl_add_u32 v{T+2}, v{T+1}, 2, v{T+2}
    v_add_u32 v{T+2}, s{S_T2}, v{T+2}
    s_lshl_b32 s{S_T2}, s{S_T4}, 8
    s_add_u32 s{S_T2}, s{S_T2}, {CNTOFF}
    v_mov_b32 v{T+4}, s{S_T2}""")
    pstamp(2)
    stats(8+14+QPRE, F)
    A(f"s_waitcnt vmcnt({QPRE})")
    pstamp(3)
    QD=BA
    QD=F
    for i in range(7):
        for k in range(4): A(f"ds_read_b64_tr_b16 v[{TB+8*i+2*k}:{TB+8*i+2*k+1}], v{T+5} offset:{2048*i+32*k}")
    for i in range(7):
        A(f"s_waitcnt lgkmcnt({min(15,4*(6-i))})")
        for k in range(4):
            c = "0" if i==0 else f"v[{QD+4*k}:{QD+4*k+3}]"
            A(f"v_mfma_f32_16x16x16_bf16 v[{QD+4*k}:{QD+4*k+3}], v[{XA+2*i}:{XA+2*i+1}], v[{TB+8*i+2*k}:{TB+8*i+2*k+1}], {c}")
    A("s_mov_b32 exec_hi, 0\ns_nop 3")
    for k in range(4): A(f"ds_write_b128 v{U}, v[{QD+4*k}:{QD+4*k+3}] offset:{512*k}")
    A("s_mov_b64 exec, -1\ns_waitcnt lgkmcnt(0)\ns_barrier")
    for w in range(4): A(f"ds_read_b32 v{XT+w}, v{U+1} offset:{2048*w}\nds_read_b32 v{XT+4+w}, v{U+2} offset:{2048*w+256}")
    A(f"""ds_read_b64 v[{MEAN}:{MEAN+1}], v{T+6}
    v_add_u32 v{U+3}, 1, v{V_TAG}
    v_lshlrev_b32 v{V_CLM}, 12, v{U+3}
    s_waitcnt lgkmcnt(0)
    v_add_f32 v{XT}, v{XT}, v{XT+1}
    v_add_f32 v{XT+4}, v{XT+4}, v{XT+5}
    v_add_f32 v{XT+2}, v{XT+2}, v{XT+3}
    v_add_f32 v{XT+6}, v{XT+6}, v{XT+7}
    v_add_f32 v{XT}, v{XT}, v{XT+2}
    v_add_f32 v{XT+4}, v{XT+4}, v{XT+6}
    v_fma_f32 v{XT}, -v{MEAN}, v{XT+4}, v{XT}
    v_mul_f32 v{XT}, v{XT}, v{RD}
    v_mov_b32 v{XT+3}, v{U+3}
    s_nop 0
    v_mov_b32_dpp v{XT+1}, v{XT} quad_perm:[1,0,3,2] row_mask:0xf bank_mask:0xf
    v_cvt_pk_bf16_f32 v{XT+2}, v{XT}, v{XT+1}
    s_mov_b32 exec_lo, 0x55555555
    s_mov_b32 exec_hi, 0x55555555
    global_store_dwordx2 v{T+2}, v[{XT+2}:{XT+3}], s[{P_WS}:{P_WS+1}] sc1
    s_mov_b64 exec, 1
    s_cmp_lg_u32 s{S_W}, 0
    s_cbranch_scc1 {label}_noinit
    global_store_dword v{T+4}, v{V_CLM}, s[{P_WS}:{P_WS+1}] sc1
    {label}_noinit:
    s_mov_b64 exec, -1""")
    stamp()
    direct(KST,S_K,range(QPRE,8))
    A(f"s_branch {label}_stream0")
    A(f"{label}_ffn:")
    A(f"""s_mul_i32 s{S_T2}, s{S_W}, {112*3584}
    s_lshl_b32 s{S_T3}, s{S_FS}, 6
    s_add_u32 s{S_T2}, s{S_T2}, s{S_T3}
    v_lshrrev_b32 v{T+4}, 2, v{V_LANE}
    v_mul_u32_u24 v{T+4}, 3584, v{T+4}
    v_and_b32 v{T+5}, 3, v{V_LANE}
    v_lshl_add_u32 v{T+4}, v{T+5}, 4, v{T+4}
    v_add_u32 v{T+4}, s{S_T2}, v{T+4}
    s_mul_i32 s{S_T2}, s{S_FS}, {32*896}
    s_mul_i32 s{S_T3}, s{S_W}, 224
    s_add_u32 s{S_T2}, s{S_T2}, s{S_T3}""")
    for i in range(7):
        A(f"""v_add_u32 v{TB+i}, {64*i}, v{V_LANE}
        v_mul_u32_u24 v{U}, 4682, v{TB+i}
        v_lshrrev_b32 v{U}, 16, v{U}
        v_mul_u32_u24 v{U}, 672, v{U}
        v_lshl_add_u32 v{TB+i}, v{TB+i}, 4, v{U}
        v_add_u32 v{TB+i}, s{S_T2}, v{TB+i}""")
    A(f"""s_mov_b32 s{S_T2}, {16*3584}
    s_lshl_b32 s{S_T3}, s{S_FS}, 6
    v_lshlrev_b32 v{T+7}, 2, v{T+1}
    v_add_u32 v{T+7}, s{S_T3}, v{T+7}
    s_waitcnt lgkmcnt(0)""")
    pstamp2=None
    kvbase(); setptr()
    direct(KST,S_K)
    xloads()
    for i in range(7):
        A(f"global_load_lds_dwordx4 v{TB+i}, s[{P_W2}:{P_W2+1}] {WF}\ns_add_u32 m0, m0, 0x400\ns_nop 0")
    A(f"s_add_u32 m0, s{S_LB}, 0x6000\ns_nop 0")
    for i in range(7):
        A(f"global_load_lds_dwordx4 v{T+4}, s[{P_W1}:{P_W1+1}] {WF}")
        if i<6: A(f"s_add_u32 m0, m0, 0x400\nv_add_u32 v{T+4}, s{S_T2}, v{T+4}")
    A(f"global_load_dword v{V_B1}, v{T+7}, s[{P_B1}:{P_B1+1}]")
    A(f"{label}_stream0:")
    direct(VST,S_V)
    nextu()
    pstamp(5)
    A(f"s_lshl_b32 s{S_T3}, s{S_T4}, 10\ns_add_u32 s{S_T3}, s{S_T3}, {QXOFF}\nv_and_b32 v{V_QPA}, 31, v{V_LANE}\nv_lshlrev_b32 v{V_QPA}, 5, v{V_QPA}\nv_add_u32 v{V_QPA}, s{S_T3}, v{V_QPA}")
    A(f"s_lshl_b32 s{S_T2}, s{S_T4}, 8\ns_add_u32 s{S_T2}, s{S_T2}, {CNTOFF}\ns_add_u32 s{S_CNT}, s{P_WS}, s{S_T2}\ns_addc_u32 s{S_CNT+1}, s{P_WS+1}, 0\nv_mov_b32 v{V_ONE}, 1")
    A(f"""v_and_b32 v{U}, 1, v{V_LANE}
    v_mov_b32 v{U+1}, 0xffff
    v_lshlrev_b32 v{U}, 4, v{U}
    v_lshlrev_b32 v{U+1}, v{U}, v{U+1}
    v_bfe_u32 v{U+2}, v{V_LANE}, 1, 2
    v_lshrrev_b32 v{U+3}, 1, v{V_LANE}
    v_xor_b32 v{U+3}, v{U+3}, v{V_LANE}
    v_and_b32 v{U+3}, 8, v{U+3}""")
    for j in range(4):
        A(f"v_cmp_eq_u32 vcc, {j}, v{U+2}\ns_nop 1\nv_cndmask_b32 v{MK2+j}, 0, v{U+1}, vcc")
    A(f"v_cmp_eq_u32 vcc, 0, v{U+3}\ns_nop 1")
    for j in range(4): A(f"v_cndmask_b32 v{MK+j}, 0, v{MK2+j}, vcc")
    A(f"v_add_u32 v{V_LDSR}, s{S_LB}, v{V_OFF}")
    A(f"v_mov_b32 v{LA}, 0\nv_mov_b32 v{VM}, 0xff7fffff\ns_mov_b32 s{S_M}, 0xff7fffff\ns_mov_b32 s{S_C}, {hex(CSC)}")
    for j in range(4): A(f"v_mov_b32 v{OA+j}, 0")
    A(f"s_mov_b32 s{S_IT}, 0\ns_mov_b32 s{S_NU}, {NS if POOL==0 else 0x7fff}\ns_mov_b32 s{S_SPIN}, 0")
    dma(S_K, f"s_mov_b32 m0, s{S_LB}")
    pstamp(6)
    A(f"""s_mov_b32 s{S_LZ}, {L_Z}
    v_mul_u32_u24 v{V_WO}, 1792, v{T}
    v_lshl_add_u32 v{V_WO}, v{T+1}, 4, v{V_WO}""")
    A(f"""v_and_b32 v{U+2}, 7, v{V_LANE}
    v_mul_u32_u24 v{U+2}, 464, v{U+2}
    v_lshl_add_u32 v{U+2}, v{T}, 4, v{U+2}
    s_mul_i32 s{S_T}, s{S_W}, {ZW}
    s_add_u32 s{S_T}, s{S_T}, {L_Z}
    v_add_u32 v{U+2}, s{S_T}, v{U+2}
    v_mov_b32 v{U+3}, {L_DUMP}
    v_lshl_add_u32 v{U+3}, v{T+1}, 4, v{U+3}
    s_mov_b32 vcc_lo, 0x00ff00ff
    s_mov_b32 vcc_hi, 0x00ff00ff
    v_cndmask_b32 v{V_ZA0}, v{U+3}, v{U+2}, vcc
    v_cndmask_b32 v{V_ZA2}, v{U+2}, v{U+3}, vcc
    s_mov_b32 vcc_hi, 0xff00ff00
    v_cndmask_b32 v{V_ZA1}, v{U+3}, v{U+2}, vcc""")
    A(f"""v_bfe_u32 v{U+2}, v{V_LANE}, 3, 1
    v_lshlrev_b32 v{U+2}, 9, v{U+2}
    v_lshrrev_b32 v{U+3}, 5, v{V_LANE}
    v_lshl_add_u32 v{U+2}, v{U+3}, 8, v{U+2}
    v_and_b32 v{U+3}, 7, v{V_LANE}
    v_lshl_add_u32 v{U+2}, v{U+3}, 5, v{U+2}
    v_and_b32 v{U+3}, 1, v{T}
    v_lshl_add_u32 v{U+2}, v{U+3}, 4, v{U+2}
    s_lshl_b32 s{S_T}, s{S_W}, 10
    s_add_u32 s{S_T}, s{S_T}, {L_O}
    v_add_u32 v{V_OW}, s{S_T}, v{U+2}""")
    A(f"""v_lshrrev_b32 v{U+2}, 3, v{V_LANE}
    v_lshlrev_b32 v{U+2}, 5, v{U+2}
    s_lshl_b32 s{S_T}, s{S_W}, 8
    s_add_u32 s{S_T}, s{S_T}, {L_O}
    v_add_u32 v{V_OR}, s{S_T}, v{U+2}""")
    A(f"""v_and_b32 v{U+2}, 3, v{V_TID}
    v_mul_u32_u24 v{U+2}, 928, v{U+2}
    v_and_b32 v{V_RR}, 0xfc, v{V_TID}
    v_add3_u32 v{V_RR}, v{V_RR}, v{U+2}, s{S_LZ}
    v_lshlrev_b32 v{V_RS}, 4, v{V_TID}""")
    A(f"""s_lshl_b32 s{S_PART}, s{S_H}, 2
    s_add_u32 s{S_PART}, s{S_PART}, s{S_SP}
    s_lshl_b32 s{S_T}, s{S_H}, 8
    s_lshl_b32 s{S_T3}, s{S_W}, 6
    s_add_u32 s{S_T}, s{S_T}, s{S_T3}
    s_mul_i32 s{S_T}, s{S_T}, 896
    s_add_u32 s{S_WOP}, s{P_WO}, s{S_T}
    s_addc_u32 s{S_WOP+1}, s{P_WO+1}, 0""")
    dma(S_V, f"s_add_u32 m0, s{S_LB}, 0x2000")
    nextu()
    pstamp(7)
    A(f"s_cmp_eq_u32 s{S_ROLE}, 2\ns_cbranch_scc1 {label}_ffn2\n{label}_ffn2x:")
    dma(S_K, f"s_add_u32 m0, s{S_LB}, 0x4000")
    pstamp(8)
    A(f"""s_mul_i32 s{S_CB}, s2, 37
    s_lshr_b32 s{S_CB}, s{S_CB}, 9
    s_mul_i32 s{S_CG}, s{S_CB}, 14
    s_sub_u32 s{S_CG}, s2, s{S_CG}
    s_lshl_b32 s{S_T}, s{S_CB}, 18
    s_add_u32 s{S_T3}, s{S_T}, {YOFF}
    s_add_u32 s{S_Y}, s{P_WS}, s{S_T3}
    s_addc_u32 s{S_Y+1}, s{P_WS+1}, 0
    s_add_u32 s{S_T3}, s{S_T}, {ZOFF}
    s_add_u32 s{S_Z}, s{P_WS}, s{S_T3}
    s_addc_u32 s{S_Z+1}, s{P_WS+1}, 0
    s_lshl_b32 s{S_T}, s{S_W}, 16
    s_lshl_b32 s{S_T3}, s{S_CG}, 8
    s_add_u32 s{S_T}, s{S_T}, s{S_T3}
    v_lshlrev_b32 v{CA}, 12, v{T}
    v_lshl_add_u32 v{CA}, v{T+1}, 4, v{CA}
    v_add_u32 v{CA}, s{S_T}, v{CA}
    v_add_u32 v{CA+1}, 0x4000, v{CA}
    v_add_u32 v{CA+2}, 0x8000, v{CA}
    v_add_u32 v{CA+3}, 0xc000, v{CA}
    v_lshlrev_b32 v{CMA}, 12, v{V_LANE}
    v_lshlrev_b32 v{CCOL}, 1, v{T+1}
    v_and_b32 v{COUT}, 1, v{T}
    s_lshl_b32 s{S_T}, s{S_CG}, 5
    v_add3_u32 v{CCOL}, v{CCOL}, v{COUT}, s{S_T}
    v_lshlrev_b32 v{CCOL}, 1, v{CCOL}
    s_mul_i32 s{S_T}, s{S_CB}, 896
    v_add_u32 v{COUT}, s{S_T}, v{CCOL}
    s_lshl_b32 s{S_T}, s{S_W}, 6
    v_lshlrev_b32 v{CBP}, 2, v{T}
    v_add_u32 v{CBP}, s{S_T}, v{CBP}""")
    if not XU: qpoll(PF)
    dma(S_V, f"s_add_u32 m0, s{S_LB}, 0x6000")
    nextu()
    if XU:
        direct(KX,S_K)
        pstamp(9)
        qpoll(PF)
        direct(VX,S_V)
        A(f"s_add_u32 s{S_U}, s{S_U}, {USTEP}")
    pstamp(10)
    A(f"s_waitcnt vmcnt(8)")
    A(f"v_add_u32 v{V_TAG}, 1, v{V_TAG}\ns_nop 0\nv_readfirstlane_b32 s{S_TG}, v{V_TAG}")
    A(f"{label}_qchk:")
    A(f"""v_xor_b32 v{XT}, v{QP+1}, v{V_TAG}
    v_xor_b32 v{XT+1}, v{QP+3}, v{V_TAG}
    v_xor_b32 v{XT+2}, v{QP+5}, v{V_TAG}
    v_xor_b32 v{XT+3}, v{QP+7}, v{V_TAG}
    v_or3_b32 v{XT}, v{XT}, v{XT+1}, v{XT+2}
    v_or_b32 v{XT}, v{XT}, v{XT+3}
    v_cmp_ne_u32 vcc, 0, v{XT}
    s_and_b32 s{S_TG}, s{S_TG}, 0xfffff
    s_nop 0
    s_cbranch_vccz {label}_qok
    s_add_u32 s{S_SPIN}, s{S_SPIN}, 1
    s_cmp_gt_u32 s{S_SPIN}, {SPIN_MAX}
    s_cbranch_scc1 {label}_qok""")
    qpoll()
    A(f"s_waitcnt vmcnt(0)\ns_branch {label}_qchk\n{label}_qok:")
    stamp()
    A(f"s_branch {label}_kcomp")
    A(f"{label}_ffn2:")
    FF=TB+28
    stats(24+7+1+15, FF)
    A(f"""v_lshrrev_b32 v{U}, 2, v{V_LANE}
    v_lshlrev_b32 v{U}, 6, v{U}
    v_and_b32 v{U+1}, 3, v{V_LANE}
    v_lshl_add_u32 v{U}, v{U+1}, 3, v{U}
    s_add_u32 s{S_T2}, s{S_LB}, 0x6000
    v_add_u32 v{U}, s{S_T2}, v{U}
    s_waitcnt vmcnt(24)""")
    for i in range(7):
        for k in range(2): A(f"ds_read_b64_tr_b16 v[{TB+4*i+2*k}:{TB+4*i+2*k+1}], v{U} offset:{1024*i+32*k}")
    A(f"""s_lshl_b32 s{S_T2}, s{S_W}, 10
    s_add_u32 s{S_T2}, s{S_T2}, {L_Q}
    v_lshlrev_b32 v{U+1}, 9, v{T}
    v_lshl_add_u32 v{U+1}, v{T+1}, 2, v{U+1}
    v_add_u32 v{U+1}, s{S_T2}, v{U+1}
    v_lshlrev_b32 v{U+3}, 3, v{T+1}
    v_add_u32 v{U+3}, {L_Q}, v{U+3}
    v_lshl_add_u32 v{U+2}, v{T}, 7, v{U+3}
    s_waitcnt lgkmcnt(0)""")
    for i in range(7):
        for k in range(2):
            c = "0" if i==0 else f"v[{BA+4*k}:{BA+4*k+3}]"
            A(f"v_mfma_f32_16x16x16_bf16 v[{BA+4*k}:{BA+4*k+3}], v[{XA+2*i}:{XA+2*i+1}], v[{TB+4*i+2*k}:{TB+4*i+2*k+1}], {c}")
    A(f"""v_bfe_u32 v{T+4}, v{V_LANE}, 2, 2
    v_lshl_add_u32 v{T+4}, v{T}, 3, v{T+4}
    v_mul_u32_u24 v{T+4}, 224, v{T+4}
    v_and_b32 v{T+5}, 3, v{V_LANE}
    v_lshl_add_u32 v{T+4}, v{T+5}, 3, v{T+4}
    s_add_u32 s{S_T2}, s{S_LB}, 0x4000
    v_add_u32 v{T+4}, s{S_T2}, v{T+4}
    s_mov_b32 exec_hi, 0""")
    for k in range(2):
        for r in range(4): A(f"ds_write_b32 v{U+1}, v{BA+4*k+r} offset:{128*r+64*k}")
    A("s_mov_b64 exec, -1")
    for j in range(7):
        A(f"ds_read_b64_tr_b16 v[{TB+4*j}:{TB+4*j+1}], v{T+4} offset:{32*j}\nds_read_b64_tr_b16 v[{TB+4*j+2}:{TB+4*j+3}], v{T+4} offset:{32*j+896}")
    A("s_waitcnt lgkmcnt(0)\ns_barrier")
    HR=FF
    for w in range(4): A(f"ds_read_b64 v[{HR+2*w}:{HR+2*w+1}], v{U+2} offset:{1024*w}\nds_read_b64 v[{HR+8+2*w}:{HR+9+2*w}], v{U+3} offset:{1024*w+512}")
    A(f"ds_read_b64 v[{MEAN}:{MEAN+1}], v{T+6}")
    A(f"""s_lshl_b32 s{S_T2}, s{S_W}, 8
    s_add_u32 s{S_T2}, s{S_T2}, {L_H}
    v_lshlrev_b32 v{U}, 2, v{V_LANE}
    v_add_u32 v{U}, s{S_T2}, v{U}
    v_and_b32 v{U+1}, 3, v{V_LANE}
    v_lshlrev_b32 v{U+1}, 6, v{U+1}
    v_lshl_add_u32 v{U+1}, v{T}, 4, v{U+1}
    v_add_u32 v{U+1}, s{S_T2}, v{U+1}
    v_lshlrev_b32 v{XT+4}, 16, v{V_B1}
    v_and_b32 v{XT+5}, 0xffff0000, v{V_B1}
    s_waitcnt lgkmcnt(0)""")
    for e in range(2):
        A(f"""v_add_f32 v{HR+e}, v{HR+e}, v{HR+2+e}
        v_add_f32 v{HR+4+e}, v{HR+4+e}, v{HR+6+e}
        v_add_f32 v{HR+8+e}, v{HR+8+e}, v{HR+10+e}
        v_add_f32 v{HR+12+e}, v{HR+12+e}, v{HR+14+e}
        v_add_f32 v{HR+e}, v{HR+e}, v{HR+4+e}
        v_add_f32 v{HR+8+e}, v{HR+8+e}, v{HR+12+e}
        v_fma_f32 v{HR+e}, -v{MEAN}, v{HR+8+e}, v{HR+e}
        v_mul_f32 v{HR+e}, v{HR+e}, v{RD}""")
    A(f"""v_cvt_pk_bf16_f32 v{HR}, v{HR}, v{HR+1}
    v_and_b32 v{HR+1}, 0xffff0000, v{HR}
    v_lshlrev_b32 v{HR}, 16, v{HR}
    v_add_f32 v{HR}, v{HR}, v{XT+4}
    v_add_f32 v{HR+1}, v{HR+1}, v{XT+5}
    v_cvt_pk_bf16_f32 v{HR}, v{HR}, v{HR+1}
    v_and_b32 v{HR+1}, 0xffff0000, v{HR}
    v_lshlrev_b32 v{HR}, 16, v{HR}
    v_max_f32 v{HR}, 0, v{HR}
    v_max_f32 v{HR+1}, 0, v{HR+1}
    v_mul_f32 v{HR}, v{HR}, v{HR}
    v_mul_f32 v{HR+1}, v{HR+1}, v{HR+1}
    v_cvt_pk_bf16_f32 v{HR}, v{HR}, v{HR+1}
    ds_write_b32 v{U}, v{HR}
    ds_read_b128 v[{BA}:{BA+3}], v{U+1}""")
    A(f"""s_lshl_b32 s{S_T2}, s{S_FS}, 12
    s_mul_i32 s{S_T3}, s{S_W}, 896
    s_add_u32 s{S_T2}, s{S_T2}, s{S_T3}
    s_add_u32 s{S_T2}, s{S_T2}, {ZOFF}
    v_lshlrev_b32 v{U+2}, 3, v{T+1}
    v_lshl_add_u32 v{U+2}, v{T}, 18, v{U+2}
    v_add_u32 v{U+2}, s{S_T2}, v{U+2}
    v_add_u32 v{U+3}, 1, v{V_TAG}
    s_waitcnt lgkmcnt(0)""")
    ZD=FF
    for j in range(7): A(f"v_mfma_f32_16x16x32_bf16 v[{ZD+4*j}:{ZD+4*j+3}], v[{BA}:{BA+3}], v[{TB+4*j}:{TB+4*j+3}], 0")
    A("s_nop 2")
    for j in range(7): A(f"v_permlane16_swap_b32 v{ZD+4*j}, v{ZD+4*j+1}\nv_permlane16_swap_b32 v{ZD+4*j+2}, v{ZD+4*j+3}")
    for j in range(7): A(f"v_permlane32_swap_b32 v{ZD+4*j}, v{ZD+4*j+2}")
    for j in range(7): A(f"v_mov_b32_dpp v{ZD+4*j+2}, v{ZD+4*j} quad_perm:[1,0,3,2] row_mask:0xf bank_mask:0xf\nv_mov_b32 v{ZD+4*j+1}, v{U+3}\nv_mov_b32 v{ZD+4*j+3}, v{U+3}")
    A("s_mov_b32 exec_lo, 0x55555555\ns_mov_b32 exec_hi, 0x55555555")
    for j in range(7): A(f"global_store_dwordx4 v{U+2}, v[{ZD+4*j}:{ZD+4*j+3}], s[{P_WS}:{P_WS+1}] offset:{128*j} sc1")
    A(f"s_mov_b64 exec, -1\ns_branch {label}_ffn2x")
    A(f"{label}_loop:")
    A(f"s_sub_u32 s{S_REM}, s{S_NU}, s{S_IT}")
    if XU: A(f"s_cmp_eq_u32 s{S_IT}, 3\ns_cbranch_scc1 {label}_xk")
    A(f"s_cmp_ge_u32 s{S_REM}, 2\ns_cbranch_scc1 {label}_wk24\ns_waitcnt vmcnt(8)\n{label}_wk24:\ns_waitcnt vmcnt(24)")
    A(f"v_add_u32 v{V_T}, s{S_RO}, v{V_LDSR}")
    for j in range(8): A(f"ds_read_b128 v[{KST+4*j}:{KST+4*j+3}], v{V_T} offset:{1024*j}")
    A("s_waitcnt lgkmcnt(0)")
    A(f"{label}_kcomp:")
    for j in range(4):
        for t in range(8):
            if j==0: A(f"v_dot2_f32_bf16 v{XT+t}, v{KST+4*t}, v{QP}, 0")
            else: A(f"v_dot2c_f32_bf16 v{XT+t}, v{KST+4*t+j}, v{QP+2*j}")
    A("s_nop 2")
    for u in range(4): A(f"v_permlane16_swap_b32 v{XT+2*u}, v{XT+2*u+1}")
    for u in range(4): A(f"v_add_f32 v{XT+2*u}, v{XT+2*u}, v{XT+2*u+1}")
    y=[XT,XT+2,XT+4,XT+6]
    A(f"""s_nop 0
    v_add_f32_dpp v{y[0]}, v{y[0]}, v{y[0]} row_ror:8 row_mask:0xf bank_mask:0x3
    v_add_f32_dpp v{y[2]}, v{y[2]}, v{y[2]} row_ror:8 row_mask:0xf bank_mask:0x3
    v_add_f32_dpp v{y[0]}, v{y[1]}, v{y[1]} row_ror:8 row_mask:0xf bank_mask:0xc
    v_add_f32_dpp v{y[2]}, v{y[3]}, v{y[3]} row_ror:8 row_mask:0xf bank_mask:0xc
    s_nop 1
    v_add_f32_dpp v{y[0]}, v{y[0]}, v{y[0]} row_shl:4 row_mask:0xf bank_mask:0x5
    s_nop 0
    v_add_f32_dpp v{y[0]}, v{y[2]}, v{y[2]} row_shr:4 row_mask:0xf bank_mask:0xa
    s_nop 1
    v_add_f32_dpp v{y[0]}, v{y[0]}, v{y[0]} quad_perm:[1,0,3,2] row_mask:0xf bank_mask:0xf
    s_nop 1
    v_add_f32_dpp v{y[0]}, v{y[0]}, v{y[0]} quad_perm:[2,3,0,1] row_mask:0xf bank_mask:0xf
    v_mul_f32 v{XT}, s{S_C}, v{XT}
    v_max_f32 v{XT+1}, s{S_M}, v{XT}
    s_nop 1
    v_max_f32_dpp v{XT+1}, v{XT+1}, v{XT+1} row_ror:4 row_mask:0xf bank_mask:0xf
    s_nop 1
    v_max_f32_dpp v{XT+1}, v{XT+1}, v{XT+1} row_ror:8 row_mask:0xf bank_mask:0xf
    s_nop 1
    v_max_f32_dpp v{XT+1}, v{XT+1}, v{XT+1} row_bcast:15 row_mask:0xa bank_mask:0xf
    s_nop 1
    v_max_f32_dpp v{XT+1}, v{XT+1}, v{XT+1} row_bcast:31 row_mask:0xc bank_mask:0xf
    s_nop 0
    v_readlane_b32 s{S_M}, v{XT+1}, 63
    s_nop 1
    v_subrev_f32 v{XT}, s{S_M}, v{XT}
    v_subrev_f32 v{XT+1}, s{S_M}, v{VM}
    v_exp_f32 v{XT}, v{XT}
    v_exp_f32 v{XT+1}, v{XT+1}
    v_mov_b32 v{VM}, s{S_M}
    v_cvt_pk_bf16_f32 v{PA}, v{XT}, v{XT}
    v_fma_f32 v{LA}, v{LA}, v{XT+1}, v{XT}
    v_mov_b32 v{PB}, v{PA}""")
    for j in range(4): A(f"v_mul_f32 v{OA+j}, v{XT+1}, v{OA+j}")
    A(f"v_permlane16_swap_b32 v{PA}, v{PB}")
    A(f"s_cmp_eq_u32 s{S_IT}, 0\ns_cbranch_scc1 {label}_vcomp")
    if XU: A(f"s_cmp_eq_u32 s{S_IT}, 3\ns_cbranch_scc1 {label}_xv")
    A(f"s_cmp_ge_u32 s{S_REM}, 2\ns_cbranch_scc1 {label}_wv16\ns_waitcnt vmcnt(0)\n{label}_wv16:\ns_waitcnt vmcnt(16)")
    A(f"v_add_u32 v{V_T}, s{S_RO}, v{V_LDSR}")
    for j in range(8): A(f"ds_read_b128 v[{VST+4*j}:{VST+4*j+3}], v{V_T} offset:{8192+1024*j}")
    A(f"s_cmp_lt_u32 s{S_REM}, 3\ns_cbranch_scc1 {label}_noiss")
    if POOL:
        A(f"""s_cmp_lt_u32 s{S_IT}, {NS-2}
        s_cbranch_scc1 {label}_haveu
        v_readfirstlane_b32 s{S_T}, v{V_CLM}
        s_nop 0
        s_lshr_b32 s{S_T2}, s{S_T}, 12
        s_and_b32 s{S_T}, s{S_T}, 0xfff
        s_cmp_lg_u32 s{S_T2}, s{S_TG}
        s_cselect_b32 s{S_T}, 0xfff, s{S_T}
        s_add_u32 s{S_U}, s{S_T}, {16*NS}
        s_lshl_b32 s{S_U}, s{S_U}, 13
        s_cmp_lt_u32 s{S_T}, {POOL}
        s_cbranch_scc1 {label}_haveu
        s_add_u32 s{S_NU}, s{S_IT}, 2
        s_branch {label}_noiss
        {label}_haveu:
        s_cmp_lt_u32 s{S_IT}, {NS-3}
        s_cbranch_scc1 {label}_noclaim
        s_mov_b64 exec, 1
        global_atomic_add v{V_CLM}, v{V_ZERO}, v{V_ONE}, s[{S_CNT}:{S_CNT+1}] sc0 sc1
        s_mov_b64 exec, -1
        {label}_noclaim:""")
    setptr()
    dma(S_K, f"s_add_u32 m0, s{S_LB}, s{S_RO}")
    A(f"s_add_u32 m0, m0, 0x1000\ns_waitcnt lgkmcnt(0)")
    for j in range(8):
        vo = V_OFF if j<4 else V_OFF2
        if j==4: A("s_add_u32 m0, m0, 0x1000\ns_nop 0")
        A(f"global_load_lds_dwordx4 v{vo}, s[{S_V}:{S_V+1}] offset:{(j%4)*1024} {VF}")
    A(f"s_add_u32 s{S_U}, s{S_U}, {USTEP}")
    A(f"{label}_noiss:")
    A(f"s_xor_b32 s{S_RO}, s{S_RO}, 0x4000\ns_waitcnt lgkmcnt(0)")
    A(f"{label}_vcomp:")
    def build_b(dst, src, k, mk):
        for j in range(4): A(f"v_and_b32_dpp v{dst+j}, v{src}, v{mk+j} row_newbcast:{k} row_mask:0xf bank_mask:0xf")
    def beta(t): return (t>>2) | (((t>>1)&1)<<1)
    A("s_nop 1")
    build_b(BA, PA, 4*beta(0), MK)
    for t in range(8):
        cur = BA if t%2==0 else BB
        nxt = BB if t%2==0 else BA
        if t+1<8: build_b(nxt, PB if (t+1)&1 else PA, 4*beta(t+1), MK)
        else: A("s_nop 1")
        A(f"v_mfma_f32_16x16x32_bf16 v[{OA}:{OA+3}], v[{VST+4*t}:{VST+4*t+3}], v[{cur}:{cur+3}], v[{OA}:{OA+3}]")
    assert WO0+7 <= NS-1
    A(f"s_sub_u32 s{S_T}, s{S_IT}, {WO0}\ns_cmp_lt_u32 s{S_T}, 8\ns_cbranch_scc1 {label}_wold")
    A(f"{label}_next:")
    if stamps:
        for k in ((2,4,8,12) if stamps==1 else (1,)):
            A(f"s_cmp_lg_u32 s{S_IT}, {k}\ns_cbranch_scc1 {label}_st{k}")
            stamp()
            A(f"{label}_st{k}:")
    A(f"s_add_u32 s{S_IT}, s{S_IT}, 1\ns_cmp_lt_u32 s{S_IT}, s{S_NU}\ns_cbranch_scc1 {label}_loop")
    A(f"s_branch {label}_tail")
    A(f"{label}_wold:")
    for G in range(8):
        if G<7: A(f"s_cmp_lg_u32 s{S_IT}, {WO0+G}\ns_cbranch_scc1 {label}_wo{G+1}")
        for blk in range(7):
            r=(G*7+blk)*4
            A(f"global_load_dwordx4 a[{r}:{r+3}], v{V_WO}, s[{S_WOP}:{S_WOP+1}] offset:{256*blk} {WOF}")
        A(f"s_add_u32 s{S_WOP}, s{S_WOP}, 7168\ns_addc_u32 s{S_WOP+1}, s{S_WOP+1}, 0\ns_branch {label}_next")
        if G<7: A(f"{label}_wo{G+1}:")
    if XU:
        A(f"{label}_xk:")
        for i in range(32): A(f"v_mov_b32 v{KST+i}, v{KX+i}")
        A(f"s_branch {label}_kcomp")
        A(f"{label}_xv:\ns_waitcnt vmcnt(32)")
        for i in range(32): A(f"v_mov_b32 v{VST+i}, v{VX+i}")
        A(f"s_branch {label}_vcomp")
    A(f"{label}_tail:")
    stamp()
    for k in (8,4): A(f"s_nop 1\nv_add_f32_dpp v{LA}, v{LA}, v{LA} row_ror:{k} row_mask:0xf bank_mask:0xf")
    A(f"s_nop 1\nv_add_f32_dpp v{LA}, v{LA}, v{LA} row_bcast:15 row_mask:0xa bank_mask:0xf")
    A(f"s_nop 1\nv_add_f32_dpp v{LA}, v{LA}, v{LA} row_bcast:31 row_mask:0xc bank_mask:0xf")
    A(f"""s_lshl_b32 s{S_T}, s{S_W}, 3
    s_add_u32 s{S_T}, s{S_T}, {L_ML}
    v_mov_b32 v{T}, s{S_T}
    ds_write_b128 v{V_OW}, v[{OA}:{OA+3}]
    s_mov_b32 exec_lo, 0
    s_mov_b32 exec_hi, 0x80000000
    ds_write_b64 v{T}, v[{LA}:{LA+1}]
    s_mov_b64 exec, -1
    v_mov_b32 v{T}, {L_ML}""")
    CZ=W1D; CY=W1D+16; CM=W1D+32; CX=W1D+40; CB2=W1D+41; CF=W1D+46
    A(f"s_cmp_ge_u32 s2, {NCONS}\ns_cbranch_scc1 {label}_nocons0")
    zc=[0]
    def zloads():
        for k in range(2): A(f"global_load_dwordx4 v[{CZ+4*k}:{CZ+4*k+3}], v{CA+k}, s[{S_Z}:{S_Z+1}] sc1")
        A(f"s_cmp_eq_u32 s{S_W}, 3\ns_cbranch_scc1 {label}_zl{zc[0]}")
        for k in range(2,4): A(f"global_load_dwordx4 v[{CZ+4*k}:{CZ+4*k+3}], v{CA+k}, s[{S_Z}:{S_Z+1}] sc1")
        A(f"{label}_zl{zc[0]}:"); zc[0]+=1
    for k in (8,10,12,14): A(f"v_mov_b32 v{CZ+k}, 0\nv_mov_b32 v{CZ+k+1}, v{V_TAG}")
    zloads()
    A(f"""global_load_ushort v{CX}, v{COUT}, s[{P_X}:{P_X+1}]
    global_load_ushort v{CB2}, v{CCOL}, s[{P_B2}:{P_B2+1}]
    {label}_nocons0:""")
    A(f"""s_lshl_b32 s{S_T}, s{S_B}, 6
    s_add_u32 s{S_T}, s{S_T}, s{S_PART}
    s_lshl_b32 s{S_T}, s{S_T}, 12
    s_add_u32 s{S_T}, s{S_T}, {YOFF}
    s_add_u32 s{S_DST}, s{P_WS}, s{S_T}
    s_addc_u32 s{S_DST+1}, s{P_WS+1}, 0""")
    A("s_waitcnt lgkmcnt(0)\ns_barrier")
    if stamps==1: stamp()
    ML=V_T+8
    A(f"ds_read_b128 v[{ML}:{ML+3}], v{T}\nds_read_b128 v[{ML+4}:{ML+7}], v{T} offset:16")
    OR=KST
    for w in range(4):
        A(f"ds_read_b128 v[{OR+8*w}:{OR+8*w+3}], v{V_OR} offset:{1024*w}\nds_read_b128 v[{OR+8*w+4}:{OR+8*w+7}], v{V_OR} offset:{1024*w+16}")
    A("s_waitcnt lgkmcnt(8)")
    M=V_T+4
    A(f"v_max3_f32 v{M}, v{ML+1}, v{ML+3}, v{ML+5}\nv_max_f32 v{M}, v{M}, v{ML+7}")
    for w in range(4): A(f"v_sub_f32 v{ML+2*w+1}, v{ML+2*w+1}, v{M}")
    for w in range(4): A(f"v_exp_f32 v{ML+2*w+1}, v{ML+2*w+1}")
    A(f"v_mov_b32 v{M+1}, v{V_TAG}\nv_mov_b32 v{M+3}, v{V_TAG}")
    A("s_waitcnt lgkmcnt(0)")
    def comb(G):
        A(f"v_mul_f32 v{OR+G}, v{OR+G}, v{ML+1}")
        for w in range(1,4): A(f"v_fmac_f32 v{OR+G}, v{OR+8*w+G}, v{ML+2*w+1}")
        A(f"v_cvt_pk_bf16_f32 v{OR+G}, v{OR+G}, v{OR+G}")
    comb(0); comb(1)
    for j in range(4): A(f"v_and_b32 v{BA+j}, v{OR}, v{MK2+j}")
    for G in range(8):
        cur = BA if G%2==0 else BB
        nxt = BB if G%2==0 else BA
        if G<7:
            for j in range(4): A(f"v_and_b32 v{nxt+j}, v{OR+G+1}, v{MK2+j}")
        for blk in range(7):
            r=(G*7+blk)*4
            c = "0" if G==0 else f"v[{GA+4*blk}:{GA+4*blk+3}]"
            A(f"v_mfma_f32_16x16x32_bf16 v[{GA+4*blk}:{GA+4*blk+3}], a[{r}:{r+3}], v[{cur}:{cur+3}], {c}")
            if blk==1 and G+2<8: comb(G+2)
        if G==6:
            A(f"v_mul_f32 v{M+2}, v{ML}, v{ML+1}")
            for w in range(1,4): A(f"v_fmac_f32 v{M+2}, v{ML+2*w}, v{ML+2*w+1}")
            A(f"""s_cmp_lg_u32 s{S_W}, 3
            s_cbranch_scc1 {label}_noml
            s_mov_b64 exec, 1
            global_store_dwordx4 v{V_ZERO}, v[{M}:{M+3}], s[{S_DST}:{S_DST+1}] offset:3584 sc1
            s_mov_b64 exec, -1
            {label}_noml:""")
    A("s_nop 0")
    A("s_nop 1")
    for blk in range(7):
        za = V_ZA0 if blk<3 else (V_ZA1 if blk==3 else V_ZA2)
        A(f"ds_write_b128 v{za}, v[{GA+4*blk}:{GA+4*blk+3}] offset:{64*blk}")
    A(f"v_cmp_gt_u32 vcc, 224, v{V_TID}")
    for w in range(1,4): A(f"v_add_u32 v{XT+w}, {ZW*w}, v{V_RR}")
    A("s_waitcnt lgkmcnt(0)\ns_barrier")
    A(f"s_and_b64 exec, exec, vcc")
    regs=[GA+2*i for i in range(8)]
    i=0
    for w in range(4):
        for hf in range(2):
            A(f"ds_read2_b32 v[{regs[i]}:{regs[i]+1}], v{V_RR if w==0 else XT+w} offset0:{56*hf} offset1:{116+56*hf}"); i+=1
    A(f"v_mov_b32 v{GA+17}, v{V_TAG}\nv_mov_b32 v{GA+19}, v{V_TAG}")
    A("s_waitcnt lgkmcnt(0)")
    for a,b in [(0,1),(2,3),(4,5),(6,7),(0,2),(4,6)]:
        for j in range(2): A(f"v_add_f32 v{regs[a]+j}, v{regs[a]+j}, v{regs[b]+j}")
    A(f"v_add_f32 v{GA+16}, v{regs[0]}, v{regs[4]}\nv_add_f32 v{GA+18}, v{regs[0]+1}, v{regs[4]+1}")
    A(f"global_store_dwordx4 v{V_RS}, v[{GA+16}:{GA+19}], s[{S_DST}:{S_DST+1}] sc1")
    A("s_mov_b64 exec, -1")
    A(f"{label}_fin:")
    if stamps!=2: stamp()
    A(f"s_cmp_ge_u32 s2, {NCONS}\ns_cbranch_scc1 {label}_done")
    def tagchk(base, n, dst):
        rs=[base+2*i+1 for i in range(n)]
        A(f"v_xor_b32 v{dst}, v{rs[0]}, v{V_TAG}")
        for r in rs[1:]: A(f"v_xor_b32 v{dst+1}, v{r}, v{V_TAG}\nv_or_b32 v{dst}, v{dst}, v{dst+1}")
        A(f"v_cmp_ne_u32 vcc, 0, v{dst}\ns_nop 1")
    def yloads():
        A(f"global_load_dwordx4 v[{CM}:{CM+3}], v{CMA}, s[{S_Y}:{S_Y+1}] offset:3584 sc1")
        for k in range(4): A(f"global_load_dwordx4 v[{CY+4*k}:{CY+4*k+3}], v{CA+k}, s[{S_Y}:{S_Y+1}] sc1")
    yloads()
    A("s_waitcnt vmcnt(5)")
    A(f"{label}_zchk:")
    tagchk(CZ, 8, XT)
    A(f"""s_cbranch_vccz {label}_zok
    s_add_u32 s{S_SPIN}, s{S_SPIN}, 1
    s_cmp_gt_u32 s{S_SPIN}, {SPIN_MAX}
    s_cbranch_scc1 {label}_zok""")
    zloads()
    A(f"s_waitcnt vmcnt(0)\ns_branch {label}_zchk\n{label}_zok:")
    for j in (0,2):
        A(f"v_add_f32 v{CZ+j}, v{CZ+j}, v{CZ+4+j}\nv_add_f32 v{CZ+8+j}, v{CZ+8+j}, v{CZ+12+j}")
    for j in (0,2): A(f"v_add_f32 v{CZ+j}, v{CZ+j}, v{CZ+8+j}")
    A(f"v_lshlrev_b32 v{CX}, 16, v{CX}\nv_lshlrev_b32 v{CB2}, 16, v{CB2}")
    A(f"s_lshl_b32 s{S_T}, s{S_W}, 8\ns_add_u32 s{S_T}, s{S_T}, {L_F}")
    A(f"v_lshlrev_b32 v{T}, 2, v{V_LANE}\nv_add_u32 v{T+1}, s{S_T}, v{T}\nv_add_u32 v{T}, {L_F}, v{T}")
    A(f"{label}_ywait:\ns_waitcnt vmcnt(0)")
    tagchk(CY, 10, XT)
    A(f"""s_cbranch_vccz {label}_yok
    s_add_u32 s{S_SPIN}, s{S_SPIN}, 1
    s_cmp_gt_u32 s{S_SPIN}, {SPIN_MAX}
    s_cbranch_scc1 {label}_yok""")
    yloads()
    A(f"s_branch {label}_ywait\n{label}_yok:")
    if stamps!=2: stamp()
    A(f"""v_max_f32_dpp v{XT}, v{CM}, v{CM} quad_perm:[1,0,3,2] row_mask:0xf bank_mask:0xf
    s_nop 1
    v_max_f32_dpp v{XT}, v{XT}, v{XT} quad_perm:[2,3,0,1] row_mask:0xf bank_mask:0xf
    v_sub_f32 v{CM}, v{CM}, v{XT}
    v_exp_f32 v{CM}, v{CM}
    s_nop 0
    v_mul_f32 v{CM+2}, v{CM+2}, v{CM}
    s_nop 1
    v_add_f32_dpp v{CM+2}, v{CM+2}, v{CM+2} quad_perm:[1,0,3,2] row_mask:0xf bank_mask:0xf
    s_nop 1
    v_add_f32_dpp v{CM+2}, v{CM+2}, v{CM+2} quad_perm:[2,3,0,1] row_mask:0xf bank_mask:0xf
    v_rcp_f32 v{CM+2}, v{CM+2}
    s_nop 0
    v_mul_f32 v{CM}, v{CM}, v{CM+2}""")
    for k in range(4): A(f"ds_bpermute_b32 v{CF+k}, v{CBP}, v{CM} offset:{16*k}")
    A("s_waitcnt lgkmcnt(0)")
    for j in (0,2): A(f"v_mul_f32 v{CY+j}, v{CY+j}, v{CF}")
    for k in range(1,4):
        for j in (0,2): A(f"v_fmac_f32 v{CY+j}, v{CY+4*k+j}, v{CF+k}")
    A("s_nop 1")
    for j in (0,2): A(f"v_permlane32_swap_b32 v{CY+j}, v{CZ+j}")
    for j in (0,2): A(f"v_add_f32 v{CY+j}, v{CY+j}, v{CZ+j}")
    A(f"s_nop 1\nv_permlane16_swap_b32 v{CY}, v{CY+2}\nv_add_f32 v{CY}, v{CY}, v{CY+2}")
    A(f"ds_write_b32 v{T+1}, v{CY}\ns_waitcnt lgkmcnt(0)\ns_barrier")
    A(f"s_cmp_lg_u32 s{S_W}, 0\ns_cbranch_scc1 {label}_done")
    for w in range(4): A(f"ds_read_b32 v{XT+w}, v{T} offset:{256*w}")
    A(f"""s_waitcnt lgkmcnt(0)
    v_add_f32 v{XT}, v{XT}, v{XT+1}
    v_add_f32 v{XT+2}, v{XT+2}, v{XT+3}
    v_add_f32 v{XT}, v{XT}, v{XT+2}
    v_cvt_pk_bf16_f32 v{XT}, v{XT}, v{XT}
    v_lshlrev_b32 v{XT}, 16, v{XT}
    v_mov_b32 v{XT+4}, v{XT}
    s_nop 1
    v_permlane32_swap_b32 v{XT}, v{XT+4}
    v_add_f32 v{XT+4}, v{XT+4}, v{CB2}
    v_cvt_pk_bf16_f32 v{XT+4}, v{XT+4}, v{XT+4}
    v_lshlrev_b32 v{XT+4}, 16, v{XT+4}
    v_mul_f32 v{XT+5}, {hex(f2u(-LOG2E))}, v{XT+4}
    v_exp_f32 v{XT+5}, v{XT+5}
    s_nop 0
    v_add_f32 v{XT+5}, 1.0, v{XT+5}
    v_rcp_f32 v{XT+5}, v{XT+5}
    s_nop 0
    v_mul_f32 v{XT+4}, v{XT+4}, v{XT+5}
    v_cvt_pk_bf16_f32 v{XT+4}, v{XT+4}, v{XT+4}
    v_lshlrev_b32 v{XT+4}, 16, v{XT+4}
    v_mul_f32 v{XT}, v{XT}, v{XT+4}
    v_cvt_pk_bf16_f32 v{XT}, v{XT}, v{XT}
    v_lshlrev_b32 v{XT}, 16, v{XT}
    v_add_f32 v{XT}, v{XT}, v{CX}
    v_cvt_pk_bf16_f32 v{XT}, v{XT}, v{XT}
    s_mov_b32 exec_hi, 0
    global_store_short v{COUT}, v{XT}, s[{P_OUT}:{P_OUT+1}]
    s_cmp_lg_u32 s2, 0
    s_cbranch_scc1 {label}_done
    s_mov_b64 exec, 1
    global_store_dword v{V_ZERO}, v{V_TAG}, s[{P_WS}:{P_WS+1}] sc1""")
    A(f"{label}_done:")
    if stamps:
        A("s_mov_b64 exec, -1")
        stamp()
        assert nst[0]<=15
        A(f"s_cmp_lg_u32 s{S_W}, {STW}\ns_cbranch_scc1 {label}_end")
        A(f"s_lshl_b32 s{S_T}, s2, 7\ns_add_u32 s{S_T}, s{S_T}, 0x10000000\ns_add_u32 s{P_WS}, s{P_WS}, s{S_T}\ns_addc_u32 s{P_WS+1}, s{P_WS+1}, 0")
        A("s_waitcnt lgkmcnt(0) vmcnt(0)\nv_mov_b32 v1, 0")
        for k in range(nst[0]):
            A(f"v_mov_b32 v{KST+2*k}, s{S_ST+2*k}\nv_mov_b32 v{KST+2*k+1}, s{S_ST+2*k+1}\nglobal_store_dwordx2 v1, v[{KST+2*k}:{KST+2*k+1}], s[{P_WS}:{P_WS+1}] offset:{8*k}")
        A(f"s_mul_i32 s{S_T}, s{S_NU}, 100\ns_add_u32 s{S_T}, s{S_T}, s{S_ST}\nv_mov_b32 v{KST+40}, s{S_T}\nv_mov_b32 v{KST+41}, s{S_ST+1}\nglobal_store_dwordx2 v1, v[{KST+40}:{KST+41}], s[{P_WS}:{P_WS+1}] offset:120")
        A(f"v_mov_b32 v{KST+42}, s{S_SPIN}\ns_mov_b64 exec, 1\nglobal_atomic_add v1, v{KST+42}, s[{P_DBG}:{P_DBG+1}]")
    A(f"{label}_end:\ns_endpgm")
    return A.text()

def kdesc(label, vgpr, accum, sgpr):
    return f""".amdhsa_kernel {label}
  .amdhsa_next_free_vgpr {vgpr}
  .amdhsa_next_free_sgpr {sgpr}
  .amdhsa_accum_offset {accum}
  .amdhsa_group_segment_fixed_size 0
  .amdhsa_kernarg_size 104
  .amdhsa_user_sgpr_count 2
  .amdhsa_user_sgpr_kernarg_segment_ptr 1
  .amdhsa_system_sgpr_workgroup_id_x 1
  .amdhsa_float_denorm_mode_32 3
.end_amdhsa_kernel
"""
def full(stamps=0, **kw):
    ref=open(f"cdna_kernels/{NAME}.s.ref").read().split("\n")
    hdr=[l for l in ref if l.startswith(";") and "@launch" not in l]
    main=NAME+"_kernel"
    t="\n".join(hdr)+"\n"
    t+=f"; @launch grid=(256,1,1) block=(256,1,1) lds={LDS_TOTAL}\n"
    t+='.amdgcn_target "amdgcn-amd-amdhsa--gfx950"\n.text\n'
    t+=gen_main(main, stamps, **kw)
    t+='.section .rodata,"a"\n.p2align 6\n'+kdesc(main, 256+224, 256, 100)
    return t, [(main,256)]
def variant(name, **kw):
    t,ks=full(0, **kw)
    open(f"work/{name}.s","w").write(t)
    build(t,name,ks)
    t,ks=full(1, **kw); build(t,name+"_s",ks)
    t,ks=full(2, **kw); build(t,name+"_p",ks)
if __name__=="__main__":
    for p in range(448): assert (p*1171)>>16 == p//56
    for p in range(256): assert (p*2341)>>16 == p//28, p
    for p in range(56): assert (p*37)>>9 == p//14
    for p in range(448): assert (p*4682)>>16 == p//14
    if len(sys.argv)>1:
        for spec in sys.argv[1:]:
            nm,_,args=spec.partition(":")
            kw=eval("dict(%s)"%args)
            variant(nm,**kw)
    else:
        t,ks=full(0)
        open(f"cdna_kernels/{NAME}.s","w").write(t)
    print("LDS",LDS_TOTAL)
```

```python
import sys, struct
from asmlib import build
NAME="recurrent_scan__mha_block_cached__dense_activation_squared_relu__decode"
def f2u(x): return struct.unpack("<I", struct.pack("<f", x))[0]
LOG2E=1.4426950408889634
CSC=f2u(LOG2E/16.0)
NEG=0xff7fffff
class E:
    def __init__(s): s.o=[]
    def __call__(s, t):
        for ln in t.split("\n"):
            ln=ln.strip()
            if ln: s.o.append(("" if ln.endswith(":") else "    ")+ln)
    def text(s): return "\n".join(s.o)+"\n"

V_TID=0; V_LANE=1; V_OFF=2; V_OFF2=3
MK=4; QW=8; OA=12; LA=16; VM=17; PA=18; PB=19
SV=20
XT=32
BA=40; BB=44
KST=48; VST=80
W1D=112
KX=W1D; VX=W1D+32
WA=200
V_TRA=207
V_T=208
QALL=232
V_LDSR=232; V_QPA=233; V_B1=234; V_TAG=235; V_ZERO=236; V_CLM=237; V_ONE=238
V_AW=239; V_AR=240; V_YA=241; CMA=242; CBP=243; CCOL=244; COUT=245; CX=246; CB2=247; CG=248
QN=249
QNX=W1D+64
QPL=W1D+32+0
S_W=3; S_K=4; S_V=6; S_LB=8; S_RO=9; S_IT=10; S_M=11; S_T=12; S_H=13; S_B=14; S_SP=15
P_X=16;P_K=18;P_V=20;P_WQ=22;P_WO=24;P_W1=28;P_B1=30;P_W2=32;P_B2=34;P_OUT=36;P_DBG=38;P_WS=40
S_NU=42; S_FS=43; S_C=44; S_T2=45; S_T3=46; S_J=47; S_ROT=48; S_TAG=49; S_STG=50; S_PART=51; S_WOP=52; S_ROLE=54; S_U=55; S_SPIN=56; S_REM=57
S_CB=58; S_CG=59; S_Y=60; S_Z=62; S_CNT=26; S_TG=96; S_G=97
S_ST=64
STG=131072; STGW=7168
L_SM=STG+4*STGW
L_MS=L_SM; L_ML=L_SM+64; L_H=L_SM+256
LDS_TOTAL=L_H+1024
AROW=528
QXOFF=0x1000; MLOFF=0x20000; CNTOFF=0x30000; ZOFF=0x100000; YOFF=0x200000
NCONS=56
SPIN_MAX=1<<18

def gen_main(label, stamps=0, WF="nt", KF="nt", VF="nt", MAP=4, STW=0, QPRE=4, QSP=0, FSP=3, ROT=None, WOF='', DELAY=0, JORD=0, NB=1, NS=12, TH=0, OF=''):
    WPG=64 if NB==4 else 16
    POOL=256*NB-WPG*NS
    NP=64*NB
    YB=NP*64
    if ROT is None: ROT=16 if NB==4 else 4
    cnt=[0]
    A=E()
    nst=[0]
    def stamp():
        if stamps:
            A(f"s_memrealtime s[{S_ST+2*nst[0]}:{S_ST+2*nst[0]+1}]"); nst[0]+=1
    def pstamp(k):
        if stamps==2:
            A(f"s_memrealtime s[{S_ST+2*k}:{S_ST+2*k+1}]"); nst[0]=max(nst[0],k+1)
    T=V_T; U=T+8
    A(f".globl {label}\n.p2align 8\n.type {label},@function\n{label}:")
    A(f"s_cmp_ge_u32 s2, 256\ns_cbranch_scc1 {label}_end")
    stamp()
    if DELAY: A("s_memrealtime s[94:95]")
    A("s_load_dwordx16 s[16:31], s[0:1], 0\ns_load_dwordx2 s[40:41], s[0:1], 96\ns_load_dwordx8 s[32:39], s[0:1], 64")
    A(f"v_lshrrev_b32 v{XT}, 6, v0\nv_and_b32 v{V_LANE}, 63, v0\nv_lshlrev_b32 v{V_OFF}, 4, v{V_LANE}")
    A(f"v_readfirstlane_b32 s{S_W}, v{XT}")
    if MAP==0:
        A(f"""s_and_b32 s{S_H}, s2, 7
        s_lshl_b32 s{S_H}, s{S_H}, 1
        s_bfe_u32 s{S_T}, s2, 0x10003
        s_or_b32 s{S_H}, s{S_H}, s{S_T}
        s_bfe_u32 s{S_B}, s2, 0x20004
        s_lshr_b32 s{S_SP}, s2, 6""")
    elif MAP in (1,4):
        if MAP==1: A(f"s_bfe_u32 s{S_H}, s2, 0x20001\ns_mov_b32 s{S_T}, s2")
        else: A(f"""s_lshr_b32 s{S_T}, s2, 1
        s_xor_b32 s{S_H}, s2, s{S_T}
        s_and_b32 s{S_H}, s{S_H}, 1
        s_and_b32 s{S_B}, s{S_T}, 2
        s_or_b32 s{S_H}, s{S_H}, s{S_B}""")
        A(f"""s_lshl_b32 s{S_H}, s{S_H}, 2
        s_bfe_u32 s{S_B}, s2, 0x20003
        s_or_b32 s{S_H}, s{S_H}, s{S_B}
        s_bfe_u32 s{S_B}, s2, 0x20005
        s_lshr_b32 s{S_SP}, s2, 7
        s_lshl_b32 s{S_SP}, s{S_SP}, 1
        s_and_b32 s{S_T}, s{S_T}, 1
        s_or_b32 s{S_SP}, s{S_SP}, s{S_T}""")
    elif MAP==3:
        A(f"""s_bfe_u32 s{S_SP}, s2, 0x20001
        s_xor_b32 s{S_H}, s2, s{S_SP}
        s_and_b32 s{S_H}, s{S_H}, 1
        s_lshl_b32 s{S_H}, s{S_H}, 3
        s_bfe_u32 s{S_T}, s2, 0x30003
        s_or_b32 s{S_H}, s{S_H}, s{S_T}
        s_lshr_b32 s{S_B}, s2, 6""")
    A(f"v_add_u32 v{V_OFF2}, 0x1000, v{V_OFF}\nv_mov_b32 v{V_ZERO}, 0")
    if JORD==0: A(f"s_lshl_b32 s{S_J}, s{S_B}, 2\ns_add_u32 s{S_J}, s{S_J}, s{S_SP}")
    else: A(f"s_lshl_b32 s{S_J}, s{S_SP}, 2\ns_add_u32 s{S_J}, s{S_J}, s{S_B}")
    A(f"s_lshl_b32 s{S_G}, s{S_B}, 4\ns_add_u32 s{S_G}, s{S_G}, s{S_H}")
    if NB==4: A(f"s_mov_b32 s{S_G}, s{S_H}")
    else: A(f"s_mov_b32 s{S_J}, s{S_SP}")
    A(f"""s_lshl_b32 s{S_U}, s{S_J}, 2
    s_add_u32 s{S_U}, s{S_U}, s{S_W}
    s_mul_i32 s{S_ROT}, s{S_G}, {ROT}
    s_lshl_b32 s{S_T}, s{S_G}, 21
    s_lshl_b32 s{S_LB}, s{S_W}, 15
    s_mul_i32 s{S_STG}, s{S_W}, {STGW}
    s_add_u32 s{S_STG}, s{S_STG}, {STG}
    s_lshl_b32 s{S_FS}, s{S_B}, 4
    s_add_u32 s{S_FS}, s{S_FS}, s{S_H}
    s_mov_b32 s{S_RO}, 0""")
    A(f"v_lshrrev_b32 v{T}, 4, v{V_LANE}\nv_and_b32 v{T+1}, 15, v{V_LANE}")
    def kvbase():
        A(f"""s_load_dword s{S_TAG}, s[{P_WS}:{P_WS+1}], 0
        s_add_u32 s{P_K}, s{P_K}, s{S_T}
        s_addc_u32 s{P_K+1}, s{P_K+1}, 0
        s_add_u32 s{P_V}, s{P_V}, s{S_T}
        s_addc_u32 s{P_V+1}, s{P_V+1}, 0""")
    def setptr():
        A(f"""s_add_u32 s{S_V}, s{S_U}, s{S_ROT}
        s_and_b32 s{S_V}, s{S_V}, 0xff
        s_lshl_b32 s{S_V}, s{S_V}, 13""")
        if NB==4: A(f"""s_lshr_b32 s{S_K}, s{S_U}, 8
        s_lshl_b32 s{S_K}, s{S_K}, 25
        s_or_b32 s{S_V}, s{S_V}, s{S_K}""")
        A(f"""s_add_u32 s{S_K}, s{P_K}, s{S_V}
        s_addc_u32 s{S_K+1}, s{P_K+1}, 0
        s_add_u32 s{S_V}, s{P_V}, s{S_V}
        s_addc_u32 s{S_V+1}, s{P_V+1}, 0
        s_add_u32 s{S_U}, s{S_U}, {WPG}""")
    def direct(reg, sb, js=range(8)):
        for j in js:
            vo = V_OFF if j<4 else V_OFF2
            A(f"global_load_dwordx4 v[{reg+4*j}:{reg+4*j+3}], v{vo}, s[{sb}:{sb+1}] offset:{(j%4)*1024} {KF if sb==S_K else VF}")
    def dma(sb, m0src):
        A(m0src+"\ns_nop 0")
        for j in range(8):
            vo = V_OFF if j<4 else V_OFF2
            if j==4: A("s_add_u32 m0, m0, 0x1000\ns_nop 0")
            A(f"global_load_lds_dwordx4 v{vo}, s[{sb}:{sb+1}] offset:{(j%4)*1024} {KF if sb==S_K else VF}")
    QL=V_T-0
    QL=W1D+64-8
    XA=W1D; XS=W1D+14; TB=W1D+28; F=VST
    S=U+4; MEAN=S+4; RD=S+5
    A(f"""s_cmp_eq_u32 s{S_SP}, {QSP}
    s_cselect_b32 s{S_ROLE}, 1, 0
    s_cmp_lg_u32 s{S_SP}, {FSP}
    s_cbranch_scc1 {label}_rset
    s_cmp_lt_u32 s{S_FS}, 56
    s_cselect_b32 s{S_ROLE}, 2, 0
    {label}_rset:
    s_cmp_lg_u32 s{S_ROLE}, 0
    s_cbranch_scc1 {label}_role
    s_waitcnt lgkmcnt(0)""")
    pstamp(1)
    kvbase(); setptr()
    direct(KST,S_K)
    A(f"s_branch {label}_stream0")
    A(f"{label}_role:")
    A(f"v_mul_u32_u24 v{T+2}, 896, v{T}\nv_mul_u32_u24 v{T+3}, 56, v{T+1}\nv_add_u32 v{T+2}, v{T+2}, v{T+3}")
    A(f"s_mul_i32 s{S_T2}, s{S_W}, 224\nv_mul_u32_u24 v{T+3}, 896, v{T+1}\nv_lshl_add_u32 v{T+3}, v{T}, 3, v{T+3}\nv_add_u32 v{T+3}, s{S_T2}, v{T+3}")
    A(f"v_cmp_eq_u32 vcc, 4, v{T+1}\nv_mov_b32 v{T+5}, 0x3f803f80\ns_add_u32 m0, s{S_LB}, 0x4000\nv_cndmask_b32 v{XA}, 0, v{T+5}, vcc")
    for i in range(1,14): A(f"v_mov_b32 v{XA+i}, v{XA}")
    A(f"v_mov_b32 v{T+6}, {L_MS}\nv_lshl_add_u32 v{T+6}, v{T}, 3, v{T+6}")
    def xloads():
        A(f"s_cmp_lg_u32 s{S_W}, 0\ns_cbranch_scc1 {label}_nx{cnt[0]}")
        for i in range(3): A(f"global_load_dwordx4 v[{XS+4*i}:{XS+4*i+3}], v{T+2}, s[{P_X}:{P_X+1}] offset:{16*i}")
        A(f"global_load_dwordx2 v[{XS+12}:{XS+13}], v{T+2}, s[{P_X}:{P_X+1}] offset:48")
        A(f"{label}_nx{cnt[0]}:"); cnt[0]+=1
        A("s_mov_b32 exec_lo, 0x000f000f\ns_mov_b32 exec_hi, 0x000f000f")
        for i in range(7): A(f"global_load_dwordx2 v[{XA+2*i}:{XA+2*i+1}], v{T+3}, s[{P_X}:{P_X+1}] offset:{32*i}")
        A("s_mov_b64 exec, -1")
    def rsum(r):
        for k in (8,4,2,1): A(f"s_nop 1\nv_add_f32_dpp v{r}, v{r}, v{r} row_ror:{k} row_mask:0xf bank_mask:0xf")
    def stats(nyounger, FF):
        A(f"s_cmp_lg_u32 s{S_W}, 0\ns_cbranch_scc1 {label}_ns{cnt[0]}")
        A(f"s_waitcnt vmcnt({nyounger})")
        for i in range(14): A(f"v_lshlrev_b32 v{FF+2*i}, 16, v{XS+i}\nv_and_b32 v{FF+2*i+1}, 0xffff0000, v{XS+i}")
        A(f"v_add_f32 v{S}, v{FF}, v{FF+1}\nv_add_f32 v{S+1}, v{FF+2}, v{FF+3}")
        for i in range(4,28,2): A(f"v_add_f32 v{S}, v{S}, v{FF+i}\nv_add_f32 v{S+1}, v{S+1}, v{FF+i+1}")
        A(f"v_add_f32 v{S}, v{S}, v{S+1}")
        rsum(S)
        A(f"v_mul_f32 v{S}, {hex(f2u(1.0/448))}, v{S}")
        for i in range(28): A(f"v_sub_f32 v{FF+i}, v{FF+i}, v{S}")
        A(f"v_mul_f32 v{S+1}, v{FF}, v{FF}\nv_mul_f32 v{S+2}, v{FF+1}, v{FF+1}")
        for i in range(2,28,2): A(f"v_fmac_f32 v{S+1}, v{FF+i}, v{FF+i}\nv_fmac_f32 v{S+2}, v{FF+i+1}, v{FF+i+1}")
        A(f"v_add_f32 v{S+1}, v{S+1}, v{S+2}")
        rsum(S+1)
        A(f"""v_mul_f32 v{S+1}, {hex(f2u(1.0/448))}, v{S+1}
        v_cvt_pk_bf16_f32 v{S+1}, v{S+1}, v{S}
        v_and_b32 v{MEAN}, 0xffff0000, v{S+1}
        v_lshlrev_b32 v{S+1}, 16, v{S+1}
        v_add_f32 v{S+1}, {hex(f2u(1e-5))}, v{S+1}
        v_cvt_pk_bf16_f32 v{S+1}, v{S+1}, v{S+1}
        v_lshlrev_b32 v{S+1}, 16, v{S+1}
        v_sqrt_f32 v{S+1}, v{S+1}
        s_nop 0
        v_cvt_pk_bf16_f32 v{S+1}, v{S+1}, v{S+1}
        v_lshlrev_b32 v{S+1}, 16, v{S+1}
        v_rcp_f32 v{RD}, v{S+1}
        s_nop 0
        ds_write_b64 v{T+6}, v[{MEAN}:{MEAN+1}]
        {label}_ns{cnt[0]}:"""); cnt[0]+=1
    def mktag(dst): A(f"s_lshr_b32 s{dst}, s{S_TAG}, 8\ns_add_u32 s{dst}, s{dst}, 1\ns_or_b32 s{dst}, s{dst}, 0x80000000")
    A(f"s_cmp_eq_u32 s{S_ROLE}, 2\ns_cbranch_scc1 {label}_ffn")
    A(f"""s_mul_i32 s{S_T2}, s{S_W}, {112*8192}
    s_lshl_b32 s{S_T3}, s{S_H}, 9
    s_add_u32 s{S_T2}, s{S_T2}, s{S_T3}
    s_lshl_b32 s{S_T3}, s{S_B}, 7
    s_add_u32 s{S_T2}, s{S_T2}, s{S_T3}
    v_lshrrev_b32 v{T+4}, 3, v{V_LANE}
    v_lshlrev_b32 v{T+4}, 13, v{T+4}
    v_and_b32 v{T+5}, 7, v{V_LANE}
    v_lshl_add_u32 v{T+4}, v{T+5}, 4, v{T+4}
    v_add_u32 v{T+4}, s{S_T2}, v{T+4}
    s_mov_b32 s{S_T2}, 0x10000
    v_lshrrev_b32 v{T+5}, 2, v{V_LANE}
    v_lshlrev_b32 v{T+5}, 7, v{T+5}
    v_and_b32 v{U+3}, 3, v{V_LANE}
    v_lshl_add_u32 v{T+5}, v{U+3}, 3, v{T+5}
    s_add_u32 s{S_T3}, s{S_LB}, 0x4000
    v_add_u32 v{T+5}, s{S_T3}, v{T+5}
    s_waitcnt lgkmcnt(0)""")
    pstamp(1)
    xloads()
    for i in range(14):
        A(f"global_load_lds_dwordx4 v{T+4}, s[{P_WQ}:{P_WQ+1}] {WF}")
        if i<13: A(f"s_add_u32 m0, m0, 0x400\nv_add_u32 v{T+4}, s{S_T2}, v{T+4}")
    kvbase(); setptr()
    direct(KST,S_K,range(QPRE))
    A(f"""v_add_u32 v{U}, s{S_STG}, v{V_OFF}
    s_lshl_b32 s{S_T2}, s{S_W}, 9
    s_add_u32 s{S_T2}, s{S_T2}, {STG}
    v_lshlrev_b32 v{U+2}, 4, v{T+1}
    v_add_u32 v{U+2}, s{S_T2}, v{U+2}
    v_lshl_add_u32 v{U+1}, v{T}, 2, v{U+2}
    s_lshl_b32 s{S_T2}, s{S_H}, 12
    s_lshl_b32 s{S_T3}, s{S_B}, 8
    s_add_u32 s{S_T2}, s{S_T2}, s{S_T3}
    s_lshl_b32 s{S_T3}, s{S_W}, 6
    s_add_u32 s{S_T2}, s{S_T2}, s{S_T3}
    s_add_u32 s{S_T2}, s{S_T2}, {QXOFF}
    v_lshlrev_b32 v{T+2}, 10, v{T}
    v_lshl_add_u32 v{T+2}, v{T+1}, 2, v{T+2}
    v_add_u32 v{T+2}, s{S_T2}, v{T+2}
    s_lshl_b32 s{S_T2}, s{S_G}, 8
    s_add_u32 s{S_T2}, s{S_T2}, {CNTOFF}
    v_mov_b32 v{T+4}, s{S_T2}""")
    pstamp(2)
    stats(7+14+QPRE, F)
    A(f"s_waitcnt vmcnt({QPRE})")
    pstamp(3)
    QD=F
    for i in range(7):
        for k in range(4): A(f"ds_read_b64_tr_b16 v[{TB+8*i+2*k}:{TB+8*i+2*k+1}], v{T+5} offset:{2048*i+32*k}")
    for i in range(7):
        A(f"s_waitcnt lgkmcnt({min(15,4*(6-i))})")
        for k in range(4):
            c = "0" if i==0 else f"v[{QD+4*k}:{QD+4*k+3}]"
            A(f"v_mfma_f32_16x16x16_bf16 v[{QD+4*k}:{QD+4*k+3}], v[{XA+2*i}:{XA+2*i+1}], v[{TB+8*i+2*k}:{TB+8*i+2*k+1}], {c}")
    A("s_mov_b32 exec_hi, 0\ns_nop 3")
    for k in range(4): A(f"ds_write_b128 v{U}, v[{QD+4*k}:{QD+4*k+3}] offset:{512*k}")
    A("s_mov_b64 exec, -1\ns_waitcnt lgkmcnt(0)\ns_barrier")
    for w in range(4): A(f"ds_read_b32 v{XT+w}, v{U+1} offset:{STGW*w}\nds_read_b32 v{XT+4+w}, v{U+2} offset:{STGW*w+256}")
    A(f"ds_read_b64 v[{MEAN}:{MEAN+1}], v{T+6}")
    mktag(S_T2)
    A(f"""v_mov_b32 v{U+3}, s{S_T2}
    s_or_b32 s{S_T3}, s{S_W}, s{S_B if NB==4 else S_W}
    s_waitcnt lgkmcnt(0)
    v_add_f32 v{XT}, v{XT}, v{XT+1}
    v_add_f32 v{XT+4}, v{XT+4}, v{XT+5}
    v_add_f32 v{XT+2}, v{XT+2}, v{XT+3}
    v_add_f32 v{XT+6}, v{XT+6}, v{XT+7}
    v_add_f32 v{XT}, v{XT}, v{XT+2}
    v_add_f32 v{XT+4}, v{XT+4}, v{XT+6}
    v_fma_f32 v{XT}, -v{MEAN}, v{XT+4}, v{XT}
    v_mul_f32 v{XT}, v{XT}, v{RD}
    v_mov_b32 v{XT+3}, v{U+3}
    v_lshlrev_b32 v{XT+4}, 12, v{U+3}
    v_mov_b32_dpp v{XT+1}, v{XT} quad_perm:[1,0,3,2] row_mask:0xf bank_mask:0xf
    v_cvt_pk_bf16_f32 v{XT+2}, v{XT}, v{XT+1}
    s_mov_b32 exec_lo, 0x55555555
    s_mov_b32 exec_hi, 0x55555555
    global_store_dwordx2 v{T+2}, v[{XT+2}:{XT+3}], s[{P_WS}:{P_WS+1}] sc1
    s_mov_b64 exec, 1
    s_cmp_lg_u32 s{S_T3}, 0
    s_cbranch_scc1 {label}_noinit
    global_store_dword v{T+4}, v{XT+4}, s[{P_WS}:{P_WS+1}] sc1
    s_cmp_lg_u32 s{S_FS}, 0
    s_cbranch_scc1 {label}_noinit
    v_mov_b32 v{XT+5}, 0xffffff00
    global_atomic_and v{V_ZERO}, v{XT+5}, s[{P_WS}:{P_WS+1}] sc1
    {label}_noinit:
    s_mov_b64 exec, -1""")
    stamp()
    direct(KST,S_K,range(QPRE,8))
    A(f"s_branch {label}_stream0")
    A(f"{label}_ffn:")
    A(f"""s_mul_i32 s{S_T2}, s{S_W}, {112*3584}
    s_lshl_b32 s{S_T3}, s{S_FS}, 6
    s_add_u32 s{S_T2}, s{S_T2}, s{S_T3}
    v_lshrrev_b32 v{T+4}, 2, v{V_LANE}
    v_mul_u32_u24 v{T+4}, 3584, v{T+4}
    v_and_b32 v{T+5}, 3, v{V_LANE}
    v_lshl_add_u32 v{T+4}, v{T+5}, 4, v{T+4}
    v_add_u32 v{T+4}, s{S_T2}, v{T+4}
    s_mul_i32 s{S_T2}, s{S_FS}, {32*896}
    s_mul_i32 s{S_T3}, s{S_W}, 224
    s_add_u32 s{S_T2}, s{S_T2}, s{S_T3}""")
    for i in range(7):
        A(f"""v_add_u32 v{TB+i}, {64*i}, v{V_LANE}
        v_mul_u32_u24 v{U}, 4682, v{TB+i}
        v_lshrrev_b32 v{U}, 16, v{U}
        v_mul_u32_u24 v{U}, 672, v{U}
        v_lshl_add_u32 v{TB+i}, v{TB+i}, 4, v{U}
        v_add_u32 v{TB+i}, s{S_T2}, v{TB+i}""")
    A(f"""s_mov_b32 s{S_T2}, {16*3584}
    s_lshl_b32 s{S_T3}, s{S_FS}, 6
    v_lshlrev_b32 v{T+7}, 2, v{T+1}
    v_add_u32 v{T+7}, s{S_T3}, v{T+7}
    s_waitcnt lgkmcnt(0)""")
    kvbase(); setptr()
    direct(KST,S_K)
    xloads()
    for i in range(7):
        A(f"global_load_lds_dwordx4 v{TB+i}, s[{P_W2}:{P_W2+1}] {WF}\ns_add_u32 m0, m0, 0x400\ns_nop 0")
    A(f"s_add_u32 m0, s{S_LB}, 0x6000\ns_nop 0")
    for i in range(7):
        A(f"global_load_lds_dwordx4 v{T+4}, s[{P_W1}:{P_W1+1}] {WF}")
        if i<6: A(f"s_add_u32 m0, m0, 0x400\nv_add_u32 v{T+4}, s{S_T2}, v{T+4}")
    A(f"global_load_dword v{V_B1}, v{T+7}, s[{P_B1}:{P_B1+1}]")
    A(f"{label}_stream0:")
    direct(VST,S_V)
    setptr()
    pstamp(5)
    A(f"s_lshl_b32 s{S_T3}, s{S_H}, 12\ns_add_u32 s{S_T3}, s{S_T3}, {QXOFF}\nv_and_b32 v{V_QPA}, 31, v{V_LANE}\nv_lshlrev_b32 v{V_QPA}, 5, v{V_QPA}\nv_add_u32 v{V_QPA}, s{S_T3}, v{V_QPA}")
    if NB==1: A(f"s_lshl_b32 s{S_T3}, s{S_B}, 10\nv_add_u32 v{V_QPA}, s{S_T3}, v{V_QPA}")
    A(f"s_lshl_b32 s{S_T2}, s{S_G}, 8\ns_add_u32 s{S_T2}, s{S_T2}, {CNTOFF}\ns_add_u32 s{S_CNT}, s{P_WS}, s{S_T2}\ns_addc_u32 s{S_CNT+1}, s{P_WS+1}, 0\nv_mov_b32 v{V_ONE}, 1")
    A(f"""v_and_b32 v{U}, 1, v{V_LANE}
    v_mov_b32 v{U+1}, 0xffff
    v_lshlrev_b32 v{U}, 4, v{U}
    v_lshlrev_b32 v{U+1}, v{U}, v{U+1}
    v_lshrrev_b32 v{U+3}, 1, v{V_LANE}
    v_xor_b32 v{U+3}, v{U+3}, v{V_LANE}
    v_and_b32 v{U+3}, 8, v{U+3}
    v_bfe_u32 v{U+2}, v{V_LANE}, 1, 2
    v_or_b32 v{U+2}, v{U+2}, v{U+3}""")
    for j in range(4):
        A(f"v_cmp_eq_u32 vcc, {j}, v{U+2}\ns_nop 1\nv_cndmask_b32 v{MK+j}, 0, v{U+1}, vcc")
    A(f"v_add_u32 v{V_LDSR}, s{S_LB}, v{V_OFF}")
    A(f"v_mov_b32 v{LA}, 0\nv_mov_b32 v{VM}, {hex(NEG)}\ns_mov_b32 s{S_M}, {hex(NEG)}\ns_mov_b32 s{S_C}, {hex(CSC)}")
    for j in range(4): A(f"v_mov_b32 v{OA+j}, 0")
    A(f"s_mov_b32 s{S_IT}, 0\ns_mov_b32 s{S_NU}, 0x7fff\ns_mov_b32 s{S_SPIN}, 0\ns_waitcnt lgkmcnt(0)")
    mktag(S_TAG)
    A(f"v_mov_b32 v{V_TAG}, s{S_TAG}\ns_and_b32 s{S_TG}, s{S_TAG}, 0xfffff")
    dma(S_K, f"s_mov_b32 m0, s{S_LB}")
    pstamp(6)
    for i in range(7):
        A(f"""v_add_u32 v{WA+i}, {64*i}, v{V_LANE}
        v_mul_u32_u24 v{U}, 4682, v{WA+i}
        v_lshrrev_b32 v{U}, 16, v{U}
        v_mul_u32_u24 v{U+1}, 14, v{U}
        v_sub_u32 v{WA+i}, v{WA+i}, v{U+1}
        v_and_b32 v{U+1}, 3, v{U}
        v_lshrrev_b32 v{U}, 2, v{U}
        v_lshl_add_u32 v{U}, v{U+1}, 3, v{U}
        v_mul_u32_u24 v{U}, 896, v{U}
        v_lshl_add_u32 v{WA+i}, v{WA+i}, 4, v{U}""")
    A(f"""s_mul_i32 s{S_T}, s{S_H}, {256*896}
    s_mul_i32 s{S_T3}, s{S_W}, 224
    s_add_u32 s{S_T}, s{S_T}, s{S_T3}
    s_add_u32 s{S_WOP}, s{P_WO}, s{S_T}
    s_addc_u32 s{S_WOP+1}, s{P_WO+1}, 0
    s_lshl_b32 s{S_PART}, s{S_H}, {4 if NB==4 else 2}
    s_add_u32 s{S_PART}, s{S_PART}, s{S_J}""")
    dma(S_V, f"s_add_u32 m0, s{S_LB}, 0x2000")
    setptr()
    pstamp(7)
    A(f"s_cmp_eq_u32 s{S_ROLE}, 2\ns_cbranch_scc1 {label}_ffn2\n{label}_ffn2x:")
    dma(S_K, f"s_add_u32 m0, s{S_LB}, 0x4000")
    pstamp(8)
    A(f"""v_bfe_u32 v{V_TRA}, v{V_LANE}, 2, 2
    v_lshl_add_u32 v{V_TRA}, v{T}, 3, v{V_TRA}
    v_mul_u32_u24 v{V_TRA}, 224, v{V_TRA}
    v_and_b32 v{U}, 3, v{V_LANE}
    v_lshl_add_u32 v{V_TRA}, v{U}, 3, v{V_TRA}
    v_add_u32 v{V_TRA}, s{S_STG}, v{V_TRA}
    v_lshlrev_b32 v{V_AW}, 3, v{V_LANE}
    v_add_u32 v{V_AW}, s{S_STG}, v{V_AW}
    v_mul_u32_u24 v{V_AR}, {STGW}, v{U}
    v_bfe_u32 v{U+1}, v{V_LANE}, 2, 2
    v_mul_u32_u24 v{U+1}, {AROW if NB==4 else 0}, v{U+1}
    v_add_u32 v{V_AR}, v{V_AR}, v{U+1}
    v_lshl_add_u32 v{V_AR}, v{T}, 4, v{V_AR}
    v_add_u32 v{V_AR}, {STG}, v{V_AR}""")
    A(f"""s_mul_i32 s{S_T}, s{S_W}, {14*YB}
    s_lshl_b32 s{S_T3}, s{S_PART}, 6
    s_add_u32 s{S_T}, s{S_T}, s{S_T3}
    s_mul_i32 s{S_T3}, s{S_B}, {0 if NB==4 else 56*YB}
    s_add_u32 s{S_T}, s{S_T}, s{S_T3}
    s_add_u32 s{S_T}, s{S_T}, {YOFF}
    v_mul_u32_u24 v{V_YA}, {56*YB if NB==4 else 2*YB}, v{T}
    v_bfe_u32 v{U}, v{V_LANE}, 3, 1
    v_lshl_add_u32 v{V_YA}, v{U}, {14 if NB==4 else 12}, v{V_YA}
    v_and_b32 v{U}, 7, v{V_LANE}
    v_lshl_add_u32 v{V_YA}, v{U}, 3, v{V_YA}
    v_add_u32 v{V_YA}, s{S_T}, v{V_YA}""")
    dma(S_V, f"s_add_u32 m0, s{S_LB}, 0x6000")
    setptr()
    A(f"""s_mul_i32 s{S_CB}, s2, 37
    s_lshr_b32 s{S_CB}, s{S_CB}, 9
    s_lshl_b32 s{S_CG}, s2, 2
    s_add_u32 s{S_CG}, s{S_CG}, s{S_W}
    s_lshl_b32 s{S_T}, s{S_CG}, {14 if NB==4 else 12}
    s_add_u32 s{S_T3}, s{S_T}, {YOFF}
    s_add_u32 s{S_Y}, s{P_WS}, s{S_T3}
    s_addc_u32 s{S_Y+1}, s{P_WS+1}, 0
    s_lshl_b32 s{S_T}, s{S_CG}, 12
    s_add_u32 s{S_T3}, s{S_T}, {ZOFF}
    s_add_u32 s{S_Z}, s{P_WS}, s{S_T3}
    s_addc_u32 s{S_Z+1}, s{P_WS+1}, 0
    s_lshl_b32 s{S_T}, s{S_CB}, {12 if NB==4 else 10}
    s_add_u32 s{S_T}, s{S_T}, {MLOFF}
    v_add_u32 v{CMA}, s{S_T}, v{V_OFF}
    v_and_b32 v{COUT}, 3, v{V_LANE}
    v_lshlrev_b32 v{COUT}, 2, v{COUT}
    v_lshrrev_b32 v{CCOL}, 5, v{V_LANE}
    v_lshl_add_u32 v{COUT}, v{CCOL}, 1, v{COUT}
    s_lshl_b32 s{S_T}, s{S_CG}, 4
    v_add_u32 v{COUT}, s{S_T}, v{COUT}
    s_mul_i32 s{S_T}, s{S_CB}, 896
    v_subrev_u32 v{CCOL}, s{S_T}, v{COUT}
    v_and_b32 v{CBP}, 0xfc, v{V_LANE}""")
    direct(KX,S_K)
    pstamp(9)
    QLs=[SV, W1D+64, W1D+72, W1D+80]
    def qpoll():
        for b in range(NB):
            A(f"global_load_dwordx4 v[{QLs[b]}:{QLs[b]+3}], v{V_QPA}, s[{P_WS}:{P_WS+1}] offset:{1024*b} sc1\nglobal_load_dwordx4 v[{QLs[b]+4}:{QLs[b]+7}], v{V_QPA}, s[{P_WS}:{P_WS+1}] offset:{1024*b+16} sc1")
    qpoll()
    direct(VX,S_V)
    pstamp(10)
    A(f"s_waitcnt vmcnt(8)")
    A(f"{label}_qchk:\nv_mov_b32 v{XT}, 0")
    for b in range(NB):
        for i in range(4): A(f"v_bitop3_b32 v{XT}, v{XT}, v{QLs[b]+2*i+1}, v{V_TAG} bitop3:0xf6")
    A(f"""v_cmp_ne_u32 vcc, 0, v{XT}
    s_add_u32 s{S_SPIN}, s{S_SPIN}, 1
    s_cmp_gt_u32 s{S_SPIN}, {SPIN_MAX}
    s_cbranch_vccz {label}_qok
    s_cbranch_scc1 {label}_qok""")
    qpoll()
    A(f"s_waitcnt vmcnt(0)\ns_branch {label}_qchk\n{label}_qok:")
    for i in range(4): A(f"v_mov_b32 v{QW+i}, v{QLs[0]+2*i}")
    stamp()
    A(f"s_branch {label}_kcomp")
    A(f"{label}_ffn2:")
    FF=TB+28
    stats(24+7+15, FF)
    A(f"""v_lshrrev_b32 v{U}, 2, v{V_LANE}
    v_lshlrev_b32 v{U}, 6, v{U}
    v_and_b32 v{U+1}, 3, v{V_LANE}
    v_lshl_add_u32 v{U}, v{U+1}, 3, v{U}
    s_add_u32 s{S_T2}, s{S_LB}, 0x6000
    v_add_u32 v{U}, s{S_T2}, v{U}
    s_waitcnt vmcnt(24)""")
    for i in range(7):
        for k in range(2): A(f"ds_read_b64_tr_b16 v[{TB+4*i+2*k}:{TB+4*i+2*k+1}], v{U} offset:{1024*i+32*k}")
    A(f"""v_lshlrev_b32 v{U+1}, 9, v{T}
    v_lshl_add_u32 v{U+1}, v{T+1}, 2, v{U+1}
    v_add_u32 v{U+1}, s{S_STG}, v{U+1}
    v_lshlrev_b32 v{U+3}, 3, v{T+1}
    v_add_u32 v{U+3}, {STG}, v{U+3}
    v_lshl_add_u32 v{U+2}, v{T}, 7, v{U+3}
    s_waitcnt lgkmcnt(0)""")
    for i in range(7):
        for k in range(2):
            c = "0" if i==0 else f"v[{BA+4*k}:{BA+4*k+3}]"
            A(f"v_mfma_f32_16x16x16_bf16 v[{BA+4*k}:{BA+4*k+3}], v[{XA+2*i}:{XA+2*i+1}], v[{TB+4*i+2*k}:{TB+4*i+2*k+1}], {c}")
    A(f"""v_bfe_u32 v{T+4}, v{V_LANE}, 2, 2
    v_lshl_add_u32 v{T+4}, v{T}, 3, v{T+4}
    v_mul_u32_u24 v{T+4}, 224, v{T+4}
    v_and_b32 v{T+5}, 3, v{V_LANE}
    v_lshl_add_u32 v{T+4}, v{T+5}, 3, v{T+4}
    s_add_u32 s{S_T2}, s{S_LB}, 0x4000
    v_add_u32 v{T+4}, s{S_T2}, v{T+4}
    s_mov_b32 exec_hi, 0""")
    for k in range(2):
        for r in range(4): A(f"ds_write_b32 v{U+1}, v{BA+4*k+r} offset:{128*r+64*k}")
    A("s_mov_b64 exec, -1")
    for j in range(7):
        A(f"ds_read_b64_tr_b16 v[{TB+4*j}:{TB+4*j+1}], v{T+4} offset:{32*j}\nds_read_b64_tr_b16 v[{TB+4*j+2}:{TB+4*j+3}], v{T+4} offset:{32*j+896}")
    A("s_waitcnt lgkmcnt(0)\ns_barrier")
    HR=FF
    for w in range(4): A(f"ds_read_b64 v[{HR+2*w}:{HR+2*w+1}], v{U+2} offset:{STGW*w}\nds_read_b64 v[{HR+8+2*w}:{HR+9+2*w}], v{U+3} offset:{STGW*w+512}")
    A(f"ds_read_b64 v[{MEAN}:{MEAN+1}], v{T+6}")
    A(f"""s_lshl_b32 s{S_T2}, s{S_W}, 8
    s_add_u32 s{S_T2}, s{S_T2}, {L_H}
    v_lshlrev_b32 v{U}, 2, v{V_LANE}
    v_add_u32 v{U}, s{S_T2}, v{U}
    v_and_b32 v{U+1}, 3, v{V_LANE}
    v_lshlrev_b32 v{U+1}, 6, v{U+1}
    v_lshl_add_u32 v{U+1}, v{T}, 4, v{U+1}
    v_add_u32 v{U+1}, s{S_T2}, v{U+1}
    v_lshlrev_b32 v{XT+4}, 16, v{V_B1}
    v_and_b32 v{XT+5}, 0xffff0000, v{V_B1}
    s_waitcnt lgkmcnt(0)
    s_barrier""")
    for e in range(2):
        A(f"""v_add_f32 v{HR+e}, v{HR+e}, v{HR+2+e}
        v_add_f32 v{HR+4+e}, v{HR+4+e}, v{HR+6+e}
        v_add_f32 v{HR+8+e}, v{HR+8+e}, v{HR+10+e}
        v_add_f32 v{HR+12+e}, v{HR+12+e}, v{HR+14+e}
        v_add_f32 v{HR+e}, v{HR+e}, v{HR+4+e}
        v_add_f32 v{HR+8+e}, v{HR+8+e}, v{HR+12+e}
        v_fma_f32 v{HR+e}, -v{MEAN}, v{HR+8+e}, v{HR+e}
        v_mul_f32 v{HR+e}, v{HR+e}, v{RD}""")
    A(f"""v_cvt_pk_bf16_f32 v{HR}, v{HR}, v{HR+1}
    v_and_b32 v{HR+1}, 0xffff0000, v{HR}
    v_lshlrev_b32 v{HR}, 16, v{HR}
    v_add_f32 v{HR}, v{HR}, v{XT+4}
    v_add_f32 v{HR+1}, v{HR+1}, v{XT+5}
    v_cvt_pk_bf16_f32 v{HR}, v{HR}, v{HR+1}
    v_and_b32 v{HR+1}, 0xffff0000, v{HR}
    v_lshlrev_b32 v{HR}, 16, v{HR}
    v_max_f32 v{HR}, 0, v{HR}
    v_max_f32 v{HR+1}, 0, v{HR+1}
    v_mul_f32 v{HR}, v{HR}, v{HR}
    v_mul_f32 v{HR+1}, v{HR+1}, v{HR+1}
    v_cvt_pk_bf16_f32 v{HR}, v{HR}, v{HR+1}
    ds_write_b32 v{U}, v{HR}
    ds_read_b128 v[{BA}:{BA+3}], v{U+1}""")
    A(f"""s_lshl_b32 s{S_T2}, s{S_FS}, 6
    s_mul_i32 s{S_T3}, s{S_W}, {14*4096}
    s_add_u32 s{S_T2}, s{S_T2}, s{S_T3}
    s_add_u32 s{S_T2}, s{S_T2}, {ZOFF}
    v_mul_u32_u24 v{U+2}, {56*4096}, v{T}
    v_bfe_u32 v{U+3}, v{V_LANE}, 3, 1
    v_lshl_add_u32 v{U+2}, v{U+3}, 12, v{U+2}
    v_and_b32 v{U+3}, 7, v{V_LANE}
    v_lshl_add_u32 v{U+2}, v{U+3}, 3, v{U+2}
    v_add_u32 v{U+2}, s{S_T2}, v{U+2}
    s_mov_b32 s{S_T2}, 0x2000
    s_waitcnt lgkmcnt(0)""")
    ZD=FF
    for j in range(7): A(f"v_mfma_f32_16x16x32_bf16 v[{ZD+4*j}:{ZD+4*j+3}], v[{BA}:{BA+3}], v[{TB+4*j}:{TB+4*j+3}], 0")
    A("s_nop 2")
    for j in range(7): A(f"v_permlane16_swap_b32 v{ZD+4*j}, v{ZD+4*j+1}\nv_permlane16_swap_b32 v{ZD+4*j+2}, v{ZD+4*j+3}")
    for j in range(7): A(f"v_permlane32_swap_b32 v{ZD+4*j}, v{ZD+4*j+2}")
    for j in range(7): A(f"v_mov_b32_dpp v{ZD+4*j+2}, v{ZD+4*j} quad_perm:[1,0,3,2] row_mask:0xf bank_mask:0xf\nv_mov_b32 v{ZD+4*j+1}, v{V_TAG}\nv_mov_b32 v{ZD+4*j+3}, v{V_TAG}")
    A("s_mov_b32 exec_lo, 0x55555555\ns_mov_b32 exec_hi, 0x55555555")
    for j in range(7):
        A(f"global_store_dwordx4 v{U+2}, v[{ZD+4*j}:{ZD+4*j+3}], s[{P_WS}:{P_WS+1}] sc1")
        if j<6: A(f"v_add_u32 v{U+2}, s{S_T2}, v{U+2}")
    A(f"s_mov_b64 exec, -1\ns_branch {label}_ffn2x")
    A(f"{label}_loop:")
    A(f"s_sub_u32 s{S_REM}, s{S_NU}, s{S_IT}")
    A(f"s_cmp_eq_u32 s{S_IT}, 3\ns_cbranch_scc1 {label}_xk")
    A(f"s_cmp_ge_u32 s{S_REM}, 2\ns_cbranch_scc1 {label}_wk24\ns_waitcnt vmcnt(8)\n{label}_wk24:\ns_waitcnt vmcnt(24)")
    A(f"v_add_u32 v{V_T}, s{S_RO}, v{V_LDSR}")
    for j in range(8): A(f"ds_read_b128 v[{KST+4*j}:{KST+4*j+3}], v{V_T} offset:{1024*j}")
    A("s_waitcnt lgkmcnt(0)")
    A(f"{label}_kcomp:")
    for j in range(4):
        for t in range(8):
            if j==0: A(f"v_dot2_f32_bf16 v{XT+t}, v{KST+4*t}, v{QW}, 0")
            else: A(f"v_dot2c_f32_bf16 v{XT+t}, v{KST+4*t+j}, v{QW+j}")
    A("s_nop 2")
    for u in range(4): A(f"v_permlane16_swap_b32 v{XT+2*u}, v{XT+2*u+1}")
    for u in range(4): A(f"v_add_f32 v{XT+2*u}, v{XT+2*u}, v{XT+2*u+1}")
    y=[XT,XT+2,XT+4,XT+6]
    A(f"""s_nop 0
    v_add_f32_dpp v{y[0]}, v{y[0]}, v{y[0]} row_ror:8 row_mask:0xf bank_mask:0x3
    v_add_f32_dpp v{y[2]}, v{y[2]}, v{y[2]} row_ror:8 row_mask:0xf bank_mask:0x3
    v_add_f32_dpp v{y[0]}, v{y[1]}, v{y[1]} row_ror:8 row_mask:0xf bank_mask:0xc
    v_add_f32_dpp v{y[2]}, v{y[3]}, v{y[3]} row_ror:8 row_mask:0xf bank_mask:0xc
    s_nop 1
    v_add_f32_dpp v{y[0]}, v{y[0]}, v{y[0]} row_shl:4 row_mask:0xf bank_mask:0x5
    s_nop 0
    v_add_f32_dpp v{y[0]}, v{y[2]}, v{y[2]} row_shr:4 row_mask:0xf bank_mask:0xa
    s_nop 1
    v_add_f32_dpp v{y[0]}, v{y[0]}, v{y[0]} quad_perm:[1,0,3,2] row_mask:0xf bank_mask:0xf
    s_nop 1
    v_add_f32_dpp v{y[0]}, v{y[0]}, v{y[0]} quad_perm:[2,3,0,1] row_mask:0xf bank_mask:0xf
    v_mul_f32 v{XT}, s{S_C}, v{XT}
    v_max_f32 v{XT+1}, s{S_M}, v{XT}
    s_nop 1
    v_max_f32_dpp v{XT+1}, v{XT+1}, v{XT+1} row_ror:4 row_mask:0xf bank_mask:0xf
    s_nop 1
    v_max_f32_dpp v{XT+1}, v{XT+1}, v{XT+1} row_ror:8 row_mask:0xf bank_mask:0xf
    s_nop 1
    v_max_f32_dpp v{XT+1}, v{XT+1}, v{XT+1} row_bcast:15 row_mask:0xa bank_mask:0xf
    s_nop 1
    v_max_f32_dpp v{XT+1}, v{XT+1}, v{XT+1} row_bcast:31 row_mask:0xc bank_mask:0xf
    s_nop 0
    v_readlane_b32 s{S_M}, v{XT+1}, 63
    s_nop 1
    v_subrev_f32 v{XT}, s{S_M}, v{XT}
    v_subrev_f32 v{XT+1}, s{S_M}, v{VM}
    v_exp_f32 v{XT}, v{XT}
    v_exp_f32 v{XT+1}, v{XT+1}
    v_mov_b32 v{VM}, s{S_M}
    v_cvt_pk_bf16_f32 v{PA}, v{XT}, v{XT}
    v_fma_f32 v{LA}, v{LA}, v{XT+1}, v{XT}
    v_mov_b32 v{PB}, v{PA}""")
    for j in range(4): A(f"v_mul_f32 v{OA+j}, v{XT+1}, v{OA+j}")
    A(f"v_permlane16_swap_b32 v{PA}, v{PB}")
    A(f"s_cmp_eq_u32 s{S_IT}, 0\ns_cbranch_scc1 {label}_vcomp")
    A(f"s_cmp_eq_u32 s{S_IT}, 3\ns_cbranch_scc1 {label}_xv")
    A(f"s_cmp_ge_u32 s{S_REM}, 2\ns_cbranch_scc1 {label}_wv16\ns_waitcnt vmcnt(0)\n{label}_wv16:\ns_waitcnt vmcnt(16)")
    A(f"v_add_u32 v{V_T}, s{S_RO}, v{V_LDSR}")
    for j in range(8): A(f"ds_read_b128 v[{VST+4*j}:{VST+4*j+3}], v{V_T} offset:{8192+1024*j}")
    A(f"s_cmp_lt_u32 s{S_IT}, 11\ns_cbranch_scc1 {label}_wold\n{label}_woret:")
    A(f"s_cmp_lt_u32 s{S_REM}, 3\ns_cbranch_scc1 {label}_noiss")
    A(f"""s_cmp_lt_u32 s{S_IT}, {NS-2}
    s_cbranch_scc1 {label}_haveu
    v_readfirstlane_b32 s{S_T}, v{V_CLM}
    s_nop 0
    s_lshr_b32 s{S_T2}, s{S_T}, 12
    s_and_b32 s{S_T}, s{S_T}, 0xfff
    s_cmp_lg_u32 s{S_T2}, s{S_TG}
    s_cselect_b32 s{S_T}, 0xfff, s{S_T}
    s_add_u32 s{S_U}, s{S_T}, {WPG*NS}
    s_cmp_lt_u32 s{S_T}, {POOL}
    s_cbranch_scc1 {label}_haveu
    s_add_u32 s{S_NU}, s{S_IT}, 2
    s_branch {label}_noiss
    {label}_haveu:
    s_cmp_lt_u32 s{S_IT}, {NS-3}
    s_cbranch_scc1 {label}_noclaim
    s_mov_b64 exec, 1
    global_atomic_add v{V_CLM}, v{V_ZERO}, v{V_ONE}, s[{S_CNT}:{S_CNT+1}] sc0 sc1
    s_mov_b64 exec, -1
    {label}_noclaim:""")
    setptr()
    dma(S_K, f"s_add_u32 m0, s{S_LB}, s{S_RO}")
    A(f"s_add_u32 m0, m0, 0x1000\ns_waitcnt lgkmcnt(0)")
    for j in range(8):
        vo = V_OFF if j<4 else V_OFF2
        if j==4: A("s_add_u32 m0, m0, 0x1000\ns_nop 0")
        A(f"global_load_lds_dwordx4 v{vo}, s[{S_V}:{S_V+1}] offset:{(j%4)*1024} {VF}")
    A(f"{label}_noiss:")
    A(f"s_xor_b32 s{S_RO}, s{S_RO}, 0x4000\ns_waitcnt lgkmcnt(0)")
    A(f"{label}_vcomp:")
    def build_b(dst, src, k, mk):
        for j in range(4): A(f"v_and_b32_dpp v{dst+j}, v{src}, v{mk+j} row_newbcast:{k} row_mask:0xf bank_mask:0xf")
    def beta(t): return (t>>2) | (((t>>1)&1)<<1)
    A("s_nop 1")
    build_b(BA, PA, 4*beta(0), MK)
    for t in range(8):
        cur = BA if t%2==0 else BB
        nxt = BB if t%2==0 else BA
        if t+1<8: build_b(nxt, PB if (t+1)&1 else PA, 4*beta(t+1), MK)
        else: A("s_nop 1")
        A(f"v_mfma_f32_16x16x32_bf16 v[{OA}:{OA+3}], v[{VST+4*t}:{VST+4*t+3}], v[{cur}:{cur+3}], v[{OA}:{OA+3}]")
    A(f"{label}_next:")
    if stamps:
        for k in ((2,4,8,12) if stamps==1 else (1,)):
            A(f"s_cmp_lg_u32 s{S_IT}, {k}\ns_cbranch_scc1 {label}_st{k}")
            stamp()
            A(f"{label}_st{k}:")
    A(f"s_add_u32 s{S_IT}, s{S_IT}, 1")
    if NB==4: A(f"s_and_b32 s{S_T}, s{S_IT}, 0x13\ns_cbranch_scc0 {label}_bsw")
    A(f"""{label}_bswx:
    s_cmp_lt_u32 s{S_IT}, s{S_NU}
    s_cbranch_scc1 {label}_loop
    s_branch {label}_tail""")
    def lred():
        for k in (8,4): A(f"s_nop 1\nv_add_f32_dpp v{LA}, v{LA}, v{LA} row_ror:{k} row_mask:0xf bank_mask:0xf")
        A(f"s_nop 1\nv_add_f32_dpp v{LA}, v{LA}, v{LA} row_bcast:15 row_mask:0xa bank_mask:0xf")
        A(f"s_nop 1\nv_add_f32_dpp v{LA}, v{LA}, v{LA} row_bcast:31 row_mask:0xc bank_mask:0xf")
    if NB==4:
        A(f"{label}_bsw:\ns_cmp_gt_u32 s{S_IT}, 12\ns_cbranch_scc1 {label}_bswx")
        lred()
        for i in range(8): A(f"v_mov_b32 v{SV+i}, v{SV+4+i}")
        A(f"""v_cvt_pk_bf16_f32 v{SV+8}, v{OA}, v{OA+1}
        v_cvt_pk_bf16_f32 v{SV+9}, v{OA+2}, v{OA+3}
        v_mov_b32 v{SV+10}, v{LA}
        v_mov_b32 v{SV+11}, v{VM}
        v_mov_b32 v{LA}, 0
        v_mov_b32 v{VM}, {hex(NEG)}
        s_mov_b32 s{S_M}, {hex(NEG)}""")
        for j in range(4): A(f"v_mov_b32 v{OA+j}, 0")
        for i in range(4): A(f"v_mov_b32 v{QW+i}, v{QLs[1]+2*i}\nv_mov_b32 v{QLs[1]+2*i}, v{QLs[2]+2*i}\nv_mov_b32 v{QLs[2]+2*i}, v{QLs[3]+2*i}")
        A(f"s_branch {label}_bswx")
    A(f"{label}_wold:")
    its=[1,2,4,5,6,7,8,9,10]
    for st,itv in enumerate(its):
        if st<8: A(f"s_cmp_lg_u32 s{S_IT}, {itv}\ns_cbranch_scc1 {label}_wo{st+1}")
        if st>0:
            for j in range(7):
                r=((st-1)*7+j)*4
                A(f"ds_read_b64_tr_b16 a[{r}:{r+1}], v{V_TRA} offset:{32*j}\nds_read_b64_tr_b16 a[{r+2}:{r+3}], v{V_TRA} offset:{32*j+896}")
        if st<8:
            base=(128*(st&1)+32*(st>>1))*896
            A(f"s_add_u32 s{S_T2}, s{S_WOP}, {base}\ns_addc_u32 s{S_T3}, s{S_WOP+1}, 0\ns_branch {label}_woiss")
            A(f"{label}_wo{st+1}:")
        else: A(f"s_branch {label}_woret")
    assert S_T3==S_T2+1
    A(f"{label}_woiss:\ns_mov_b32 s{S_K}, s{S_T2}\ns_mov_b32 s{S_K+1}, s{S_T3}\ns_mov_b32 m0, s{S_STG}\ns_waitcnt lgkmcnt(0)")
    for i in range(7):
        A(f"global_load_lds_dwordx4 v{WA+i}, s[{S_K}:{S_K+1}] {WOF}")
        if i<6: A("s_add_u32 m0, m0, 0x400\ns_nop 0")
    A(f"s_branch {label}_woret")
    A(f"{label}_xk:")
    for i in range(32): A(f"v_mov_b32 v{KST+i}, v{KX+i}")
    A(f"s_branch {label}_kcomp")
    A(f"{label}_xv:\ns_waitcnt vmcnt(32)")
    for i in range(32): A(f"v_mov_b32 v{VST+i}, v{VX+i}")
    A(f"s_branch {label}_vcomp")
    A(f"{label}_tail:")
    stamp()
    lred()
    A(f"""v_cvt_pk_bf16_f32 v{OA}, v{OA}, v{OA+1}
    v_cvt_pk_bf16_f32 v{OA+1}, v{OA+2}, v{OA+3}
    s_lshl_b32 s{S_T}, s{S_W}, 3
    s_add_u32 s{S_T}, s{S_T}, {L_ML}
    v_mov_b32 v{T}, s{S_T}""")
    for b in range(NB-1): A(f"ds_write_b64 v{V_AW}, v[{SV+4*b}:{SV+4*b+1}] offset:{AROW*b}")
    A(f"ds_write_b64 v{V_AW}, v[{OA}:{OA+1}] offset:{AROW*(NB-1)}")
    A("s_mov_b32 exec_lo, 0\ns_mov_b32 exec_hi, 0x80000000")
    for b in range(NB-1): A(f"ds_write_b64 v{T}, v[{SV+4*b+2}:{SV+4*b+3}] offset:{32*b}")
    A(f"ds_write_b64 v{T}, v[{LA}:{LA+1}] offset:{32*(NB-1)}\ns_mov_b64 exec, -1")
    CZ=W1D; CF=W1D; CY=W1D+16; CML=U; CM=XT+2
    A(f"s_cmp_ge_u32 s2, {NCONS}\ns_cbranch_scc1 {label}_nocons0")
    def zloads():
        for k in range(4):
            if k==3: A("s_mov_b32 exec_hi, 0")
            A(f"global_load_dwordx4 v[{CZ+4*k}:{CZ+4*k+3}], v{V_OFF}, s[{S_Z}:{S_Z+1}] offset:{1024*k} sc1")
        A("s_mov_b64 exec, -1")
    for k in (12,14): A(f"v_mov_b32 v{CZ+k}, 0\nv_mov_b32 v{CZ+k+1}, v{V_TAG}")
    zloads()
    A(f"""global_load_ushort v{CX}, v{COUT}, s[{P_X}:{P_X+1}]
    global_load_ushort v{CB2}, v{CCOL}, s[{P_B2}:{P_B2+1}]
    {label}_nocons0:""")
    A(f"v_lshrrev_b32 v{T+2}, 4, v{V_LANE}" if NB==4 else f"v_mov_b32 v{T+2}, 0")
    A(f"""v_lshlrev_b32 v{T}, 5, v{T+2}
    v_add_u32 v{T}, {L_ML}, v{T}
    s_lshl_b32 s{S_T2}, s{S_PART}, 4
    s_add_u32 s{S_T2}, s{S_T2}, {MLOFF}
    v_lshlrev_b32 v{T+1}, 12, v{T+2}
    v_add_u32 v{T+1}, s{S_T2}, v{T+1}
    s_mov_b32 s{S_T2}, {hex(2*YB if NB==4 else 8*YB)}""")
    if NB==1: A(f"s_lshl_b32 s{S_T3}, s{S_B}, 10\nv_add_u32 v{T+1}, s{S_T3}, v{T+1}")
    ML=U; M=T+4; AF=KST; D=VST
    A(f"v_mov_b32 v{M+1}, v{V_TAG}\nv_mov_b32 v{M+3}, v{V_TAG}")
    A("s_waitcnt lgkmcnt(0)\ns_barrier")
    if stamps==1: stamp()
    A(f"ds_read_b128 v[{ML}:{ML+3}], v{T}\nds_read_b128 v[{ML+4}:{ML+7}], v{T} offset:16")
    for s_ in range(8): A(f"ds_read_b128 v[{AF+4*s_}:{AF+4*s_+3}], v{V_AR} offset:{64*s_}")
    A("s_waitcnt lgkmcnt(7)")
    def fact():
        r=[f"v_max3_f32 v{M}, v{ML+1}, v{ML+3}, v{ML+5}", f"v_max_f32 v{M}, v{M}, v{ML+7}"]
        r+=[f"v_sub_f32 v{ML+2*w+1}, v{ML+2*w+1}, v{M}" for w in range(4)]
        r+=[f"v_exp_f32 v{ML+2*w+1}, v{ML+2*w+1}" for w in range(4)]
        r+=[f"v_mul_f32 v{M+2}, v{ML}, v{ML+1}"]+[f"v_fmac_f32 v{M+2}, v{ML+2*w}, v{ML+2*w+1}" for w in range(1,4)]
        return r
    def post(j):
        d=D+4*j
        return [f"v_mul_f32 v{d}, v{d}, v{ML+1}", f"v_fmac_f32 v{d}, v{d+1}, v{ML+3}", f"v_fmac_f32 v{d}, v{d+2}, v{ML+5}", f"v_fmac_f32 v{d}, v{d+3}, v{ML+7}",
                f"v_mov_b32 v{d+1}, v{V_TAG}", f"v_mov_b32 v{d+3}, v{V_TAG}",
                f"v_mov_b32_dpp v{d+2}, v{d} quad_perm:[1,0,3,2] row_mask:0xf bank_mask:0xf",
                f"s_mov_b32 exec_lo, 0x55555555\ns_mov_b32 exec_hi, 0x55555555\nglobal_store_dwordx4 v{V_YA}, v[{d}:{d+3}], s[{P_WS}:{P_WS+1}] sc1\ns_mov_b64 exec, -1\nv_add_u32 v{V_YA}, s{S_T2}, v{V_YA}"]
    def post1(j):
        d=D+4*j; mr=YM+4*(j//4)
        r=[f"v_mul_f32 v{d}, v{d}, v{ML+1}", f"v_fmac_f32 v{d}, v{d+1}, v{ML+3}", f"v_fmac_f32 v{d}, v{d+2}, v{ML+5}", f"v_fmac_f32 v{d}, v{d+3}, v{ML+7}",
           "s_nop 1",
           f"v_mov_b32_dpp v{mr}, v{d} quad_perm:[0,1,2,3] row_mask:{hex(1<<(j&3))} bank_mask:0xf",
           f"v_mov_b32_dpp v{mr+2}, v{d} quad_perm:[1,0,3,2] row_mask:{hex(1<<(j&3))} bank_mask:0xf"]
        if j in (3,6):
            r.append(f"s_mov_b32 exec_lo, 0x55555555\ns_mov_b32 exec_hi, {'0x55555555' if j==3 else '0x5555'}\nglobal_store_dwordx4 v{V_YA}, v[{mr}:{mr+3}], s[{P_WS}:{P_WS+1}] sc1\ns_mov_b64 exec, -1\nv_add_u32 v{V_YA}, s{S_T2}, v{V_YA}")
        return r
    YM=BA
    if NB==1:
        post=post1
    fill=fact()
    mlpub=f"""s_cmp_lg_u32 s{S_W}, 0
    s_cbranch_scc1 {label}_noml
    s_mov_b32 exec_lo, {'0x00010001' if NB==4 else '1'}
    s_mov_b32 exec_hi, {'0x00010001' if NB==4 else '0'}
    global_store_dwordx4 v{T+1}, v[{M}:{M+3}], s[{P_WS}:{P_WS+1}] sc1
    s_mov_b64 exec, -1
    {label}_noml:"""
    for j in range(7):
        if j==1: fill=[mlpub]+([f"v_mov_b32 v{YM+i}, v{V_TAG}" for i in (1,3,5,7)] if NB==1 else [])
        if j>=2: fill=post(j-2)
        for s_ in range(8):
            if j==0 and s_>0: A(f"s_waitcnt lgkmcnt({7-s_})")
            r=(s_*7+j)*4
            c = "0" if s_==0 else f"v[{D+4*j}:{D+4*j+3}]"
            A(f"v_mfma_f32_16x16x32_bf16 v[{D+4*j}:{D+4*j+3}], v[{AF+4*s_}:{AF+4*s_+3}], a[{r}:{r+3}], {c}")
            for _ in range(2 if j==0 else 1):
                if fill: A(fill.pop(0))
        assert not fill
    for ln in post(5): A(ln)
    if NB==1: A("s_nop 0")
    for ln in post(6): A(ln)
    A(f"{label}_fin:")
    if stamps!=2: stamp()
    A(f"s_cmp_ge_u32 s2, {NCONS}\ns_cbranch_scc1 {label}_done")
    def tagacc(dst, rs, first=True):
        for i,r in enumerate(rs):
            if first and i==0: A(f"v_xor_b32 v{dst}, v{r}, v{V_TAG}")
            else: A(f"v_bitop3_b32 v{dst}, v{dst}, v{r}, v{V_TAG} bitop3:0xf6")
    def test(dst, ok):
        A(f"""v_cmp_ne_u32 vcc, 0, v{dst}
        s_add_u32 s{S_SPIN}, s{S_SPIN}, 1
        s_cmp_gt_u32 s{S_SPIN}, {SPIN_MAX}
        s_cbranch_vccz {ok}
        s_cbranch_scc1 {ok}""")
    def yloads():
        for k in range(4*NB):
            A(f"global_load_dwordx4 v[{CY+4*k}:{CY+4*k+3}], v{[V_OFF,V_OFF2,T+2,T+3][k//4]}, s[{S_Y}:{S_Y+1}] offset:{1024*(k%4)} sc1")
    def mlload():
        for k in range(NB): A(f"global_load_dwordx4 v[{CML+4*k}:{CML+4*k+3}], v{CMA}, s[{P_WS}:{P_WS+1}] offset:{1024*k} sc1")
    def red16(a0,a1,tmp):
        A(f"""s_nop 1
        v_permlane32_swap_b32 v{a0}, v{a1}
        v_add_f32 v{a0}, v{a0}, v{a1}
        s_nop 1
        v_add_f32_dpp v{a0}, v{a0}, v{a0} row_ror:4 row_mask:0xf bank_mask:0xf
        s_nop 1
        v_add_f32_dpp v{a0}, v{a0}, v{a0} row_ror:8 row_mask:0xf bank_mask:0xf
        v_mov_b32 v{tmp}, v{a0}
        s_nop 1
        v_permlane16_swap_b32 v{a0}, v{tmp}
        v_add_f32 v{a0}, v{a0}, v{tmp}""")
    mlload()
    A(f"v_add_u32 v{T+2}, 0x2000, v{V_OFF}\nv_add_u32 v{T+3}, 0x3000, v{V_OFF}")
    A(f"s_waitcnt vmcnt({NB})")
    A(f"{label}_zchk:")
    tagacc(XT, [CZ+2*i+1 for i in range(8)])
    test(XT, f"{label}_zok")
    zloads()
    A(f"s_waitcnt vmcnt(0)\ns_branch {label}_zchk\n{label}_zok:")
    for j in (0,2):
        A(f"v_add_f32 v{CZ+j}, v{CZ+j}, v{CZ+4+j}\nv_add_f32 v{CZ+8+j}, v{CZ+8+j}, v{CZ+12+j}")
    for j in (0,2): A(f"v_add_f32 v{CZ+j}, v{CZ+j}, v{CZ+8+j}")
    red16(CZ, CZ+2, CZ+1)
    A(f"""v_lshlrev_b32 v{CX}, 16, v{CX}
    v_lshlrev_b32 v{CB2}, 16, v{CB2}
    v_cvt_pk_bf16_f32 v{CG}, v{CZ}, v{CZ}
    v_lshlrev_b32 v{CG}, 16, v{CG}
    v_add_f32 v{CG}, v{CG}, v{CB2}
    v_cvt_pk_bf16_f32 v{CG}, v{CG}, v{CG}
    v_lshlrev_b32 v{CG}, 16, v{CG}
    v_mul_f32 v{XT+5}, {hex(f2u(-LOG2E))}, v{CG}
    v_exp_f32 v{XT+5}, v{XT+5}
    s_nop 0
    v_add_f32 v{XT+5}, 1.0, v{XT+5}
    v_rcp_f32 v{XT+5}, v{XT+5}
    s_nop 0
    v_mul_f32 v{CG}, v{CG}, v{XT+5}
    v_cvt_pk_bf16_f32 v{CG}, v{CG}, v{CG}
    v_lshlrev_b32 v{CG}, 16, v{CG}""")
    if TH==0:
        A(f"{label}_mlw:\ns_waitcnt vmcnt(0)")
        tagacc(XT, [CML+2*i+1 for i in range(2*NB)])
        test(XT, f"{label}_mlok")
        mlload()
        A(f"s_branch {label}_mlw\n{label}_mlok:")
        yloads()
    else:
        A(f"{label}_mlw:\ns_waitcnt vmcnt(0)")
        tagacc(XT, [CML+2*i+1 for i in range(2*NB)])
        test(XT, f"{label}_mlok0")
        A(f"s_bcnt1_i32_b64 s{S_T}, vcc")
        mlload()
        A(f"s_cmp_gt_u32 s{S_T}, {TH}\ns_cbranch_scc1 {label}_mlw")
        A(f"{label}_mlw2:")
        yloads()
        A(f"s_waitcnt vmcnt({4*NB})")
        tagacc(XT, [CML+2*i+1 for i in range(2*NB)])
        test(XT, f"{label}_mlok")
        mlload()
        A(f"s_branch {label}_mlw2\n{label}_mlok0:")
        yloads()
        A(f"{label}_mlok:")
    if NB==4:
        for k in range(4): A(f"v_max_f32_dpp v{CML+4*k+1}, v{CML+4*k}, v{CML+4*k} row_ror:8 row_mask:0xf bank_mask:0xf")
        for r in (4,2,1):
            for k in range(4): A(f"v_max_f32_dpp v{CML+4*k+1}, v{CML+4*k+1}, v{CML+4*k+1} row_ror:{r} row_mask:0xf bank_mask:0xf")
        for k in range(4): A(f"v_sub_f32 v{CML+4*k}, v{CML+4*k}, v{CML+4*k+1}")
        for k in range(4): A(f"v_exp_f32 v{CML+4*k}, v{CML+4*k}")
        for k in range(4): A(f"v_mul_f32 v{CML+4*k+2}, v{CML+4*k+2}, v{CML+4*k}")
        for r in (8,4,2,1):
            for k in range(4): A(f"v_add_f32_dpp v{CML+4*k+2}, v{CML+4*k+2}, v{CML+4*k+2} row_ror:{r} row_mask:0xf bank_mask:0xf")
        for k in range(4): A(f"v_rcp_f32 v{CML+4*k+2}, v{CML+4*k+2}")
        for k in range(4): A(f"v_mul_f32 v{CML+4*k}, v{CML+4*k}, v{CML+4*k+2}")
        for k in range(16): A(f"ds_bpermute_b32 v{CF+k}, v{CBP}, v{CML+4*(k//4)} offset:{64*(k%4)}")
    else:
        A(f"""v_max_f32_dpp v{CML+1}, v{CML}, v{CML} quad_perm:[1,0,3,2] row_mask:0xf bank_mask:0xf
        s_nop 1
        v_max_f32_dpp v{CML+1}, v{CML+1}, v{CML+1} quad_perm:[2,3,0,1] row_mask:0xf bank_mask:0xf
        v_sub_f32 v{CML}, v{CML}, v{CML+1}
        v_exp_f32 v{CML}, v{CML}
        s_nop 0
        v_mul_f32 v{CML+2}, v{CML+2}, v{CML}
        s_nop 1
        v_add_f32_dpp v{CML+2}, v{CML+2}, v{CML+2} quad_perm:[1,0,3,2] row_mask:0xf bank_mask:0xf
        s_nop 1
        v_add_f32_dpp v{CML+2}, v{CML+2}, v{CML+2} quad_perm:[2,3,0,1] row_mask:0xf bank_mask:0xf
        v_rcp_f32 v{CML+2}, v{CML+2}
        s_nop 0
        v_mul_f32 v{CML}, v{CML}, v{CML+2}""")
        for k in range(4): A(f"ds_bpermute_b32 v{CF+k}, v{CBP}, v{CML} offset:{64*k}")
    A("s_waitcnt lgkmcnt(0)")
    A(f"{label}_yw:")
    for k in range(4*NB):
        A(f"s_waitcnt vmcnt({4*NB-1-k})")
        if k==0: A(f"v_mul_f32 v{XT}, v{CY}, v{CF}\nv_mul_f32 v{XT+2}, v{CY+2}, v{CF}")
        else: A(f"v_fmac_f32 v{XT}, v{CY+4*k}, v{CF+k}\nv_fmac_f32 v{XT+2}, v{CY+4*k+2}, v{CF+k}")
        tagacc(XT+4, [CY+4*k+1, CY+4*k+3], first=(k==0))
    test(XT+4, f"{label}_yok")
    yloads()
    A(f"s_branch {label}_yw\n{label}_yok:")
    if stamps!=2: stamp()
    red16(XT, XT+2, XT+1)
    A(f"""v_cvt_pk_bf16_f32 v{XT}, v{XT}, v{XT}
    v_lshlrev_b32 v{XT}, 16, v{XT}
    v_mul_f32 v{XT}, v{XT}, v{CG}
    v_cvt_pk_bf16_f32 v{XT}, v{XT}, v{XT}
    v_lshlrev_b32 v{XT}, 16, v{XT}
    v_add_f32 v{XT}, v{XT}, v{CX}
    v_cvt_pk_bf16_f32 v{XT}, v{XT}, v{XT}
    s_mov_b32 exec_lo, 0xf
    s_mov_b32 exec_hi, 0xf
    global_store_short v{COUT}, v{XT}, s[{P_OUT}:{P_OUT+1}] {OF}
    s_mul_i32 s{S_T}, s{S_CB}, 56
    s_cmp_lg_u32 s{S_CG}, s{S_T}
    s_cbranch_scc1 {label}_done
    v_mov_b32 v{XT+1}, 64
    s_mov_b64 exec, 1
    global_atomic_add v{V_ZERO}, v{XT+1}, s[{P_WS}:{P_WS+1}] sc1""")
    A(f"{label}_done:")
    if DELAY:
        A(f"""s_cmp_lg_u32 s2, 0
        s_cbranch_scc1 {label}_end
        {label}_dl:
        s_memrealtime s[92:93]
        s_waitcnt lgkmcnt(0)
        s_sub_u32 s92, s92, s94
        s_cmp_lt_u32 s92, {DELAY}
        s_cbranch_scc1 {label}_dl""")
    if stamps:
        A("s_mov_b64 exec, -1")
        stamp()
        assert nst[0]<=15
        A(f"s_cmp_lg_u32 s{S_W}, {STW}\ns_cbranch_scc1 {label}_end")
        A(f"s_lshl_b32 s{S_T}, s2, 7\ns_add_u32 s{S_T}, s{S_T}, 0x10000000\ns_add_u32 s{P_WS}, s{P_WS}, s{S_T}\ns_addc_u32 s{P_WS+1}, s{P_WS+1}, 0")
        A("s_waitcnt lgkmcnt(0) vmcnt(0)\nv_mov_b32 v1, 0")
        for k in range(nst[0]):
            A(f"v_mov_b32 v{KST+2*k}, s{S_ST+2*k}\nv_mov_b32 v{KST+2*k+1}, s{S_ST+2*k+1}\nglobal_store_dwordx2 v1, v[{KST+2*k}:{KST+2*k+1}], s[{P_WS}:{P_WS+1}] offset:{8*k}")
        A(f"s_mul_i32 s{S_T}, s{S_NU}, 100\ns_add_u32 s{S_T}, s{S_T}, s{S_ST}\nv_mov_b32 v{KST+40}, s{S_T}\nv_mov_b32 v{KST+41}, s{S_ST+1}\nglobal_store_dwordx2 v1, v[{KST+40}:{KST+41}], s[{P_WS}:{P_WS+1}] offset:120")
        A(f"v_mov_b32 v{KST+42}, s{S_SPIN}\ns_mov_b64 exec, 1\nglobal_atomic_add v1, v{KST+42}, s[{P_DBG}:{P_DBG+1}]")
    A(f"{label}_end:\ns_endpgm")
    return A.text()

def kdesc(label, vgpr, accum, sgpr):
    return f""".amdhsa_kernel {label}
  .amdhsa_next_free_vgpr {vgpr}
  .amdhsa_next_free_sgpr {sgpr}
  .amdhsa_accum_offset {accum}
  .amdhsa_group_segment_fixed_size 0
  .amdhsa_kernarg_size 104
  .amdhsa_user_sgpr_count 2
  .amdhsa_user_sgpr_kernarg_segment_ptr 1
  .amdhsa_system_sgpr_workgroup_id_x 1
  .amdhsa_float_denorm_mode_32 3
.end_amdhsa_kernel
"""
def full(stamps=0, **kw):
    ref=open(f"cdna_kernels/{NAME}.s.ref").read().split("\n")
    hdr=[l for l in ref if l.startswith(";") and "@launch" not in l]
    main=NAME+"_kernel"
    t="\n".join(hdr)+"\n"
    t+=f"; @launch grid=(256,1,1) block=(256,1,1) lds={LDS_TOTAL}\n"
    t+='.amdgcn_target "amdgcn-amd-amdhsa--gfx950"\n.text\n'
    t+=gen_main(main, stamps, **kw)
    t+='.section .rodata,"a"\n.p2align 6\n'+kdesc(main, 256+224, 256, 100)
    return t, [(main,256)]
def variant(name, **kw):
    t,ks=full(0, **kw)
    open(f"work/{name}.s","w").write(t)
    build(t,name,ks)
    t,ks=full(1, **kw); build(t,name+"_s",ks)
    t,ks=full(2, **kw); build(t,name+"_p",ks)
if __name__=="__main__":
    for p in range(56): assert (p*37)>>9 == p//14
    for p in range(448): assert (p*4682)>>16 == p//14
    if len(sys.argv)>1:
        for spec in sys.argv[1:]:
            nm,_,args=spec.partition(":")
            variant(nm,**eval("dict(%s)"%args))
    else:
        t,ks=full(0)
        open(f"cdna_kernels/{NAME}.s","w").write(t)
    print("LDS",LDS_TOTAL)
```

```python
import sys, struct
from asmlib import build
NAME="recurrent_scan__mha_block_cached__dense_activation_squared_relu__decode"
def f2u(x): return struct.unpack("<I", struct.pack("<f", x))[0]
LOG2E=1.4426950408889634
CSC=f2u(LOG2E/16.0)
NEG=0xff7fffff
class E:
    def __init__(s): s.o=[]
    def __call__(s, t):
        for ln in t.split("\n"):
            ln=ln.strip()
            if ln: s.o.append(("" if ln.endswith(":") or ln.startswith(";") else "    ")+ln)
    def text(s): return "\n".join(s.o)+"\n"

V_TID=0; V_LANE=1; V_OFF=2; V_OFF2=3
MK=4; QW=8; OA=12; LA=16; VM=17; PA=18; PB=19
SV=20
XT=32
BA=40; BB=44
KST=48; VST=80
W1D=112
KX=W1D; VX=W1D+32
WA=200
V_TRA=207
V_T=208
QALL=232
V_LDSR=232; V_QPA=233; V_B1=234; V_TAG=235; V_ZERO=236; V_CLM=237; V_ONE=238
V_AW=239; V_AR=240; V_YA=241; CMA=242; CBP=243; CCOL=244; COUT=245; CX=246; CB2=247; CG=248
QN=249
QNX=W1D+64
QPL=W1D+32+0
S_W=3; S_K=4; S_V=6; S_LB=8; S_RO=9; S_IT=10; S_M=11; S_T=12; S_H=13; S_B=14; S_SP=15
P_X=16;P_K=18;P_V=20;P_WQ=22;P_WO=24;P_W1=28;P_B1=30;P_W2=32;P_B2=34;P_OUT=36;P_DBG=38;P_WS=40
S_NU=42; S_FS=43; S_C=44; S_T2=45; S_T3=46; S_J=47; S_ROT=48; S_TAG=49; S_STG=50; S_PART=51; S_WOP=52; S_ROLE=54; S_U=55; S_SPIN=56; S_REM=57
S_CB=58; S_CG=59; S_Y=60; S_Z=62; S_CNT=26; S_TG=96; S_G=97
S_ST=64
STG=131072; STGW=7168
L_SM=STG+4*STGW
L_MS=L_SM; L_ML=L_SM+64; L_H=L_SM+256
LDS_TOTAL=L_H+1024
AROW=528
QXOFF=0x1000; MLOFF=0x20000; CNTOFF=0x30000; ZOFF=0x100000; YOFF=0x200000
NCONS=56
SPIN_MAX=1<<18

def gen_main(label, stamps=0, WF="nt", KF="nt", VF="nt", MAP=4, STW=0, QPRE=4, QSP=0, FSP=3, ROT=None, WOF='', DELAY=0, JORD=0, NB=1, NS=12, TH=0, OF='', ROTH=0, ABL=0, MO=1, ORD=1, MUL=1, FP=0, PD=8, MLR=1):
    WPG=64 if NB==4 else 16
    POOL=256*NB-WPG*NS
    NP=64*NB
    YB=NP*64
    if ROT is None: ROT=16 if NB==4 else 4
    cnt=[0]
    A=E()
    nst=[0]
    trace = stamps==3
    if trace: stamps=0
    def stamp():
        if stamps:
            A(f"s_memrealtime s[{S_ST+2*nst[0]}:{S_ST+2*nst[0]+1}]"); nst[0]+=1
    def pstamp(k):
        if stamps==2:
            A(f"s_memrealtime s[{S_ST+2*k}:{S_ST+2*k+1}]"); nst[0]=max(nst[0],k+1)
    T=V_T; U=T+8
    A(f".globl {label}\n.p2align 8\n.type {label},@function\n{label}:")
    A(f"s_cmp_ge_u32 s2, 256\ns_cbranch_scc1 {label}_end")
    stamp()
    if trace: A("s_memrealtime s[90:91]\nv_mov_b32 v250, 0")
    if DELAY: A("s_memrealtime s[94:95]")
    A("s_load_dwordx16 s[16:31], s[0:1], 0\ns_load_dwordx2 s[40:41], s[0:1], 96\ns_load_dwordx8 s[32:39], s[0:1], 64")
    A(f"v_lshrrev_b32 v{XT}, 6, v0\nv_and_b32 v{V_LANE}, 63, v0\nv_lshlrev_b32 v{V_OFF}, 4, v{V_LANE}")
    A(f"v_readfirstlane_b32 s{S_W}, v{XT}")
    if MAP==0:
        A(f"""s_and_b32 s{S_H}, s2, 7
        s_lshl_b32 s{S_H}, s{S_H}, 1
        s_bfe_u32 s{S_T}, s2, 0x10003
        s_or_b32 s{S_H}, s{S_H}, s{S_T}
        s_bfe_u32 s{S_B}, s2, 0x20004
        s_lshr_b32 s{S_SP}, s2, 6""")
    elif MAP in (1,4):
        if MAP==1: A(f"s_bfe_u32 s{S_H}, s2, 0x20001\ns_mov_b32 s{S_T}, s2")
        else: A(f"""s_lshr_b32 s{S_T}, s2, 1
        s_xor_b32 s{S_H}, s2, s{S_T}
        s_and_b32 s{S_H}, s{S_H}, 1
        s_and_b32 s{S_B}, s{S_T}, 2
        s_or_b32 s{S_H}, s{S_H}, s{S_B}""")
        A(f"""s_lshl_b32 s{S_H}, s{S_H}, 2
        s_bfe_u32 s{S_B}, s2, 0x20003
        s_or_b32 s{S_H}, s{S_H}, s{S_B}
        s_bfe_u32 s{S_B}, s2, 0x20005
        s_lshr_b32 s{S_SP}, s2, 7
        s_lshl_b32 s{S_SP}, s{S_SP}, 1
        s_and_b32 s{S_T}, s{S_T}, 1
        s_or_b32 s{S_SP}, s{S_SP}, s{S_T}""")
    elif MAP==3:
        A(f"""s_bfe_u32 s{S_SP}, s2, 0x20001
        s_xor_b32 s{S_H}, s2, s{S_SP}
        s_and_b32 s{S_H}, s{S_H}, 1
        s_lshl_b32 s{S_H}, s{S_H}, 3
        s_bfe_u32 s{S_T}, s2, 0x30003
        s_or_b32 s{S_H}, s{S_H}, s{S_T}
        s_lshr_b32 s{S_B}, s2, 6""")
    A(f"v_add_u32 v{V_OFF2}, 0x1000, v{V_OFF}\nv_mov_b32 v{V_ZERO}, 0")
    if JORD==0: A(f"s_lshl_b32 s{S_J}, s{S_B}, 2\ns_add_u32 s{S_J}, s{S_J}, s{S_SP}")
    else: A(f"s_lshl_b32 s{S_J}, s{S_SP}, 2\ns_add_u32 s{S_J}, s{S_J}, s{S_B}")
    A(f"s_lshl_b32 s{S_G}, s{S_B}, 4\ns_add_u32 s{S_G}, s{S_G}, s{S_H}")
    if NB==4: A(f"s_mov_b32 s{S_G}, s{S_H}")
    else: A(f"s_mov_b32 s{S_J}, s{S_SP}")
    if JORD==2: A(f"s_lshl_b32 s{S_U}, s{S_W}, 2\ns_add_u32 s{S_U}, s{S_U}, s{S_J}")
    else: A(f"s_lshl_b32 s{S_U}, s{S_J}, 2\ns_add_u32 s{S_U}, s{S_U}, s{S_W}")
    if ORD==0: A(f"s_mul_i32 s{S_U}, s{S_U}, {NS}")
    if ORD==2: A(f"s_lshl_b32 s{S_U}, s{S_U}, 1")
    if ROTH: A(f"s_lshl_b32 s{S_ROT}, s{S_H}, 2\ns_add_u32 s{S_ROT}, s{S_ROT}, s{S_B}\ns_mul_i32 s{S_ROT}, s{S_ROT}, {ROT}")
    else: A(f"s_mul_i32 s{S_ROT}, s{S_G}, {ROT}")
    A(f"""s_lshl_b32 s{S_T}, s{S_G}, 21
    s_lshl_b32 s{S_LB}, s{S_W}, 15
    s_mul_i32 s{S_STG}, s{S_W}, {STGW}
    s_add_u32 s{S_STG}, s{S_STG}, {STG}
    s_lshl_b32 s{S_FS}, s{S_B}, 4
    s_add_u32 s{S_FS}, s{S_FS}, s{S_H}
    s_mov_b32 s{S_RO}, 0""")
    A(f"v_lshrrev_b32 v{T}, 4, v{V_LANE}\nv_and_b32 v{T+1}, 15, v{V_LANE}")
    def kvbase():
        A(f"""s_load_dword s{S_TAG}, s[{P_WS}:{P_WS+1}], 0
        s_add_u32 s{P_K}, s{P_K}, s{S_T}
        s_addc_u32 s{P_K+1}, s{P_K+1}, 0
        s_add_u32 s{P_V}, s{P_V}, s{S_T}
        s_addc_u32 s{P_V+1}, s{P_V+1}, 0""")
    def setptr():
        if MUL!=1: A(f"s_mul_i32 s{S_V}, s{S_U}, {MUL}")
        A(f"""s_add_u32 s{S_V}, s{S_U if MUL==1 else S_V}, s{S_ROT}
        s_and_b32 s{S_V}, s{S_V}, 0xff
        s_lshl_b32 s{S_V}, s{S_V}, 13""")
        if NB==4: A(f"""s_lshr_b32 s{S_K}, s{S_U}, 8
        s_lshl_b32 s{S_K}, s{S_K}, 25
        s_or_b32 s{S_V}, s{S_V}, s{S_K}""")
        A(f"""s_add_u32 s{S_K}, s{P_K}, s{S_V}
        s_addc_u32 s{S_K+1}, s{P_K+1}, 0
        s_add_u32 s{S_V}, s{P_V}, s{S_V}
        s_addc_u32 s{S_V+1}, s{P_V+1}, 0
        s_add_u32 s{S_U}, s{S_U}, {WPG if ORD==1 else 1}""")
        if ORD==2: A(f"s_and_b32 s{S_T}, s{S_U}, 1\ns_cselect_b32 s{S_T}, 0, {2*WPG-2}\ns_add_u32 s{S_U}, s{S_U}, s{S_T}")
    def direct(reg, sb, js=range(8)):
        for j in js:
            vo = V_OFF if j<4 else V_OFF2
            A(f"global_load_dwordx4 v[{reg+4*j}:{reg+4*j+3}], v{vo}, s[{sb}:{sb+1}] offset:{(j%4)*1024} {KF if sb==S_K else VF}")
    def dma(sb, m0src):
        A(m0src+"\ns_nop 0")
        for j in range(8):
            vo = V_OFF if j<4 else V_OFF2
            if j==4: A("s_add_u32 m0, m0, 0x1000\ns_nop 0")
            A(f"global_load_lds_dwordx4 v{vo}, s[{sb}:{sb+1}] offset:{(j%4)*1024} {KF if sb==S_K else VF}")
    QL=V_T-0
    QL=W1D+64-8
    XA=W1D; XS=W1D+14; TB=W1D+28; F=VST
    S=U+4; MEAN=S+4; RD=S+5
    A(f"""s_cmp_eq_u32 s{S_SP}, {QSP}
    s_cselect_b32 s{S_ROLE}, 1, 0
    s_cmp_lg_u32 s{S_SP}, {FSP}
    s_cbranch_scc1 {label}_rset
    s_cmp_lt_u32 s{S_FS}, {0 if ABL&2 else 56}
    s_cselect_b32 s{S_ROLE}, 2, 0
    {label}_rset:
    s_cmp_lg_u32 s{S_ROLE}, 0
    s_cbranch_scc1 {label}_role
    s_waitcnt lgkmcnt(0)""")
    pstamp(1)
    kvbase(); setptr()
    direct(KST,S_K)
    A(f"s_branch {label}_stream0")
    A(f"{label}_role:")
    A(f"v_mul_u32_u24 v{T+2}, 896, v{T}\nv_mul_u32_u24 v{T+3}, 56, v{T+1}\nv_add_u32 v{T+2}, v{T+2}, v{T+3}")
    A(f"s_mul_i32 s{S_T2}, s{S_W}, 224\nv_mul_u32_u24 v{T+3}, 896, v{T+1}\nv_lshl_add_u32 v{T+3}, v{T}, 3, v{T+3}\nv_add_u32 v{T+3}, s{S_T2}, v{T+3}")
    A(f"v_cmp_eq_u32 vcc, 4, v{T+1}\nv_mov_b32 v{T+5}, 0x3f803f80\ns_add_u32 m0, s{S_LB}, 0x4000\nv_cndmask_b32 v{XA}, 0, v{T+5}, vcc")
    for i in range(1,14): A(f"v_mov_b32 v{XA+i}, v{XA}")
    A(f"v_mov_b32 v{T+6}, {L_MS}\nv_lshl_add_u32 v{T+6}, v{T}, 3, v{T+6}")
    def xloads():
        A(f"s_cmp_lg_u32 s{S_W}, 0\ns_cbranch_scc1 {label}_nx{cnt[0]}")
        for i in range(3): A(f"global_load_dwordx4 v[{XS+4*i}:{XS+4*i+3}], v{T+2}, s[{P_X}:{P_X+1}] offset:{16*i}")
        A(f"global_load_dwordx2 v[{XS+12}:{XS+13}], v{T+2}, s[{P_X}:{P_X+1}] offset:48")
        A(f"{label}_nx{cnt[0]}:"); cnt[0]+=1
        A("s_mov_b32 exec_lo, 0x000f000f\ns_mov_b32 exec_hi, 0x000f000f")
        for i in range(7): A(f"global_load_dwordx2 v[{XA+2*i}:{XA+2*i+1}], v{T+3}, s[{P_X}:{P_X+1}] offset:{32*i}")
        A("s_mov_b64 exec, -1")
    def rsum(r):
        for k in (8,4,2,1): A(f"s_nop 1\nv_add_f32_dpp v{r}, v{r}, v{r} row_ror:{k} row_mask:0xf bank_mask:0xf")
    def stats(nyounger, FF):
        A(f"s_cmp_lg_u32 s{S_W}, 0\ns_cbranch_scc1 {label}_ns{cnt[0]}")
        A(f"s_waitcnt vmcnt({nyounger})")
        for i in range(14): A(f"v_lshlrev_b32 v{FF+2*i}, 16, v{XS+i}\nv_and_b32 v{FF+2*i+1}, 0xffff0000, v{XS+i}")
        A(f"v_add_f32 v{S}, v{FF}, v{FF+1}\nv_add_f32 v{S+1}, v{FF+2}, v{FF+3}")
        for i in range(4,28,2): A(f"v_add_f32 v{S}, v{S}, v{FF+i}\nv_add_f32 v{S+1}, v{S+1}, v{FF+i+1}")
        A(f"v_add_f32 v{S}, v{S}, v{S+1}")
        rsum(S)
        A(f"v_mul_f32 v{S}, {hex(f2u(1.0/448))}, v{S}")
        for i in range(28): A(f"v_sub_f32 v{FF+i}, v{FF+i}, v{S}")
        A(f"v_mul_f32 v{S+1}, v{FF}, v{FF}\nv_mul_f32 v{S+2}, v{FF+1}, v{FF+1}")
        for i in range(2,28,2): A(f"v_fmac_f32 v{S+1}, v{FF+i}, v{FF+i}\nv_fmac_f32 v{S+2}, v{FF+i+1}, v{FF+i+1}")
        A(f"v_add_f32 v{S+1}, v{S+1}, v{S+2}")
        rsum(S+1)
        A(f"""v_mul_f32 v{S+1}, {hex(f2u(1.0/448))}, v{S+1}
        v_cvt_pk_bf16_f32 v{S+1}, v{S+1}, v{S}
        v_and_b32 v{MEAN}, 0xffff0000, v{S+1}
        v_lshlrev_b32 v{S+1}, 16, v{S+1}
        v_add_f32 v{S+1}, {hex(f2u(1e-5))}, v{S+1}
        v_cvt_pk_bf16_f32 v{S+1}, v{S+1}, v{S+1}
        v_lshlrev_b32 v{S+1}, 16, v{S+1}
        v_sqrt_f32 v{S+1}, v{S+1}
        s_nop 0
        v_cvt_pk_bf16_f32 v{S+1}, v{S+1}, v{S+1}
        v_lshlrev_b32 v{S+1}, 16, v{S+1}
        v_rcp_f32 v{RD}, v{S+1}
        s_nop 0
        ds_write_b64 v{T+6}, v[{MEAN}:{MEAN+1}]
        {label}_ns{cnt[0]}:"""); cnt[0]+=1
    def mktag(dst): A(f"s_lshr_b32 s{dst}, s{S_TAG}, 8\ns_add_u32 s{dst}, s{dst}, 1\ns_or_b32 s{dst}, s{dst}, 0x80000000")
    A(f"s_cmp_eq_u32 s{S_ROLE}, 2\ns_cbranch_scc1 {label}_ffn")
    A(f"""s_mul_i32 s{S_T2}, s{S_W}, {112*8192}
    s_lshl_b32 s{S_T3}, s{S_H}, 9
    s_add_u32 s{S_T2}, s{S_T2}, s{S_T3}
    s_lshl_b32 s{S_T3}, s{S_B}, 7
    s_add_u32 s{S_T2}, s{S_T2}, s{S_T3}
    v_lshrrev_b32 v{T+4}, 3, v{V_LANE}
    v_lshlrev_b32 v{T+4}, 13, v{T+4}
    v_and_b32 v{T+5}, 7, v{V_LANE}
    v_lshl_add_u32 v{T+4}, v{T+5}, 4, v{T+4}
    v_add_u32 v{T+4}, s{S_T2}, v{T+4}
    s_mov_b32 s{S_T2}, 0x10000
    v_lshrrev_b32 v{T+5}, 2, v{V_LANE}
    v_lshlrev_b32 v{T+5}, 7, v{T+5}
    v_and_b32 v{U+3}, 3, v{V_LANE}
    v_lshl_add_u32 v{T+5}, v{U+3}, 3, v{T+5}
    s_add_u32 s{S_T3}, s{S_LB}, 0x4000
    v_add_u32 v{T+5}, s{S_T3}, v{T+5}
    s_waitcnt lgkmcnt(0)""")
    pstamp(1)
    xloads()
    for i in range(14):
        if ABL&4: A(f"global_load_lds_dwordx4 v{V_OFF}, s[{P_WQ}:{P_WQ+1}]")
        else: A(f"global_load_lds_dwordx4 v{T+4}, s[{P_WQ}:{P_WQ+1}] {WF}")
        if i<13: A(f"s_add_u32 m0, m0, 0x400\nv_add_u32 v{T+4}, s{S_T2}, v{T+4}")
    kvbase(); setptr()
    direct(KST,S_K,range(QPRE))
    A(f"""v_add_u32 v{U}, s{S_STG}, v{V_OFF}
    s_lshl_b32 s{S_T2}, s{S_W}, 9
    s_add_u32 s{S_T2}, s{S_T2}, {STG}
    v_lshlrev_b32 v{U+2}, 4, v{T+1}
    v_add_u32 v{U+2}, s{S_T2}, v{U+2}
    v_lshl_add_u32 v{U+1}, v{T}, 2, v{U+2}
    s_lshl_b32 s{S_T2}, s{S_H}, 12
    s_lshl_b32 s{S_T3}, s{S_B}, 8
    s_add_u32 s{S_T2}, s{S_T2}, s{S_T3}
    s_lshl_b32 s{S_T3}, s{S_W}, 6
    s_add_u32 s{S_T2}, s{S_T2}, s{S_T3}
    s_add_u32 s{S_T2}, s{S_T2}, {QXOFF}
    v_lshlrev_b32 v{T+2}, 10, v{T}
    v_lshl_add_u32 v{T+2}, v{T+1}, 2, v{T+2}
    v_add_u32 v{T+2}, s{S_T2}, v{T+2}
    s_lshl_b32 s{S_T2}, s{S_G}, 8
    s_add_u32 s{S_T2}, s{S_T2}, {CNTOFF}
    v_mov_b32 v{T+4}, s{S_T2}""")
    pstamp(2)
    stats(7+14+QPRE, F)
    A(f"s_waitcnt vmcnt({QPRE})")
    pstamp(3)
    QD=F
    for i in range(7):
        for k in range(4): A(f"ds_read_b64_tr_b16 v[{TB+8*i+2*k}:{TB+8*i+2*k+1}], v{T+5} offset:{2048*i+32*k}")
    for i in range(7):
        A(f"s_waitcnt lgkmcnt({min(15,4*(6-i))})")
        for k in range(4):
            c = "0" if i==0 else f"v[{QD+4*k}:{QD+4*k+3}]"
            A(f"v_mfma_f32_16x16x16_bf16 v[{QD+4*k}:{QD+4*k+3}], v[{XA+2*i}:{XA+2*i+1}], v[{TB+8*i+2*k}:{TB+8*i+2*k+1}], {c}")
    A("s_mov_b32 exec_hi, 0\ns_nop 3")
    for k in range(4): A(f"ds_write_b128 v{U}, v[{QD+4*k}:{QD+4*k+3}] offset:{512*k}")
    A("s_mov_b64 exec, -1\ns_waitcnt lgkmcnt(0)\ns_barrier")
    for w in range(4): A(f"ds_read_b32 v{XT+w}, v{U+1} offset:{STGW*w}\nds_read_b32 v{XT+4+w}, v{U+2} offset:{STGW*w+256}")
    A(f"ds_read_b64 v[{MEAN}:{MEAN+1}], v{T+6}")
    mktag(S_T2)
    A(f"""v_mov_b32 v{U+3}, s{S_T2}
    s_or_b32 s{S_T3}, s{S_W}, s{S_B if NB==4 else S_W}
    s_waitcnt lgkmcnt(0)
    v_add_f32 v{XT}, v{XT}, v{XT+1}
    v_add_f32 v{XT+4}, v{XT+4}, v{XT+5}
    v_add_f32 v{XT+2}, v{XT+2}, v{XT+3}
    v_add_f32 v{XT+6}, v{XT+6}, v{XT+7}
    v_add_f32 v{XT}, v{XT}, v{XT+2}
    v_add_f32 v{XT+4}, v{XT+4}, v{XT+6}
    v_fma_f32 v{XT}, -v{MEAN}, v{XT+4}, v{XT}
    v_mul_f32 v{XT}, v{XT}, v{RD}
    v_mov_b32 v{XT+3}, v{U+3}
    v_lshlrev_b32 v{XT+4}, 12, v{U+3}
    v_mov_b32_dpp v{XT+1}, v{XT} quad_perm:[1,0,3,2] row_mask:0xf bank_mask:0xf
    v_cvt_pk_bf16_f32 v{XT+2}, v{XT}, v{XT+1}
    s_mov_b32 exec_lo, 0x55555555
    s_mov_b32 exec_hi, 0x55555555
    global_store_dwordx2 v{T+2}, v[{XT+2}:{XT+3}], s[{P_WS}:{P_WS+1}] sc1
    s_mov_b64 exec, 1
    s_cmp_lg_u32 s{S_T3}, 0
    s_cbranch_scc1 {label}_noinit
    global_store_dword v{T+4}, v{XT+4}, s[{P_WS}:{P_WS+1}] sc1
    s_cmp_lg_u32 s{S_FS}, 0
    s_cbranch_scc1 {label}_noinit
    v_mov_b32 v{XT+5}, 0xffffff00
    global_atomic_and v{V_ZERO}, v{XT+5}, s[{P_WS}:{P_WS+1}] sc1
    {label}_noinit:
    s_mov_b64 exec, -1""")
    stamp()
    direct(KST,S_K,range(QPRE,8))
    A(f"s_branch {label}_stream0")
    A(f"{label}_ffn:")
    A(f"""s_mul_i32 s{S_T2}, s{S_W}, {112*3584}
    s_lshl_b32 s{S_T3}, s{S_FS}, 6
    s_add_u32 s{S_T2}, s{S_T2}, s{S_T3}
    v_lshrrev_b32 v{T+4}, 2, v{V_LANE}
    v_mul_u32_u24 v{T+4}, 3584, v{T+4}
    v_and_b32 v{T+5}, 3, v{V_LANE}
    v_lshl_add_u32 v{T+4}, v{T+5}, 4, v{T+4}
    v_add_u32 v{T+4}, s{S_T2}, v{T+4}
    s_mul_i32 s{S_T2}, s{S_FS}, {32*896}
    s_mul_i32 s{S_T3}, s{S_W}, 224
    s_add_u32 s{S_T2}, s{S_T2}, s{S_T3}""")
    for i in range(7):
        A(f"""v_add_u32 v{TB+i}, {64*i}, v{V_LANE}
        v_mul_u32_u24 v{U}, 4682, v{TB+i}
        v_lshrrev_b32 v{U}, 16, v{U}
        v_mul_u32_u24 v{U}, 672, v{U}
        v_lshl_add_u32 v{TB+i}, v{TB+i}, 4, v{U}
        v_add_u32 v{TB+i}, s{S_T2}, v{TB+i}""")
    A(f"""s_mov_b32 s{S_T2}, {16*3584}
    s_lshl_b32 s{S_T3}, s{S_FS}, 6
    v_lshlrev_b32 v{T+7}, 2, v{T+1}
    v_add_u32 v{T+7}, s{S_T3}, v{T+7}
    s_waitcnt lgkmcnt(0)""")
    kvbase(); setptr()
    direct(KST,S_K)
    xloads()
    for i in range(7):
        A(f"global_load_lds_dwordx4 v{TB+i}, s[{P_W2}:{P_W2+1}] {WF}\ns_add_u32 m0, m0, 0x400\ns_nop 0")
    A(f"s_add_u32 m0, s{S_LB}, 0x6000\ns_nop 0")
    for i in range(7):
        A(f"global_load_lds_dwordx4 v{T+4}, s[{P_W1}:{P_W1+1}] {WF}")
        if i<6: A(f"s_add_u32 m0, m0, 0x400\nv_add_u32 v{T+4}, s{S_T2}, v{T+4}")
    A(f"global_load_dword v{V_B1}, v{T+7}, s[{P_B1}:{P_B1+1}]")
    A(f"{label}_stream0:")
    direct(VST,S_V)
    setptr()
    pstamp(5)
    A(f"s_lshl_b32 s{S_T3}, s{S_H}, 12\ns_add_u32 s{S_T3}, s{S_T3}, {QXOFF}\nv_and_b32 v{V_QPA}, 31, v{V_LANE}\nv_lshlrev_b32 v{V_QPA}, 5, v{V_QPA}\nv_add_u32 v{V_QPA}, s{S_T3}, v{V_QPA}")
    if NB==1: A(f"s_lshl_b32 s{S_T3}, s{S_B}, 10\nv_add_u32 v{V_QPA}, s{S_T3}, v{V_QPA}")
    A(f"s_lshl_b32 s{S_T2}, s{S_G}, 8\ns_add_u32 s{S_T2}, s{S_T2}, {CNTOFF}\ns_add_u32 s{S_CNT}, s{P_WS}, s{S_T2}\ns_addc_u32 s{S_CNT+1}, s{P_WS+1}, 0\nv_mov_b32 v{V_ONE}, 1")
    A(f"""v_and_b32 v{U}, 1, v{V_LANE}
    v_mov_b32 v{U+1}, 0xffff
    v_lshlrev_b32 v{U}, 4, v{U}
    v_lshlrev_b32 v{U+1}, v{U}, v{U+1}
    v_lshrrev_b32 v{U+3}, 1, v{V_LANE}
    v_xor_b32 v{U+3}, v{U+3}, v{V_LANE}
    v_and_b32 v{U+3}, 8, v{U+3}
    v_bfe_u32 v{U+2}, v{V_LANE}, 1, 2
    v_or_b32 v{U+2}, v{U+2}, v{U+3}""")
    for j in range(4):
        A(f"v_cmp_eq_u32 vcc, {j}, v{U+2}\ns_nop 1\nv_cndmask_b32 v{MK+j}, 0, v{U+1}, vcc")
    A(f"v_add_u32 v{V_LDSR}, s{S_LB}, v{V_OFF}")
    A(f"v_mov_b32 v{LA}, 0\nv_mov_b32 v{VM}, {hex(NEG)}\ns_mov_b32 s{S_M}, {hex(NEG)}\ns_mov_b32 s{S_C}, {hex(CSC)}")
    for j in range(4): A(f"v_mov_b32 v{OA+j}, 0")
    A(f"s_mov_b32 s{S_IT}, 0\ns_mov_b32 s{S_NU}, 0x7fff\ns_mov_b32 s{S_SPIN}, 0\ns_waitcnt lgkmcnt(0)")
    mktag(S_TAG)
    A(f"v_mov_b32 v{V_TAG}, s{S_TAG}\ns_and_b32 s{S_TG}, s{S_TAG}, 0xfffff")
    dma(S_K, f"s_mov_b32 m0, s{S_LB}")
    pstamp(6)
    for i in range(7):
        A(f"""v_add_u32 v{WA+i}, {64*i}, v{V_LANE}
        v_mul_u32_u24 v{U}, 4682, v{WA+i}
        v_lshrrev_b32 v{U}, 16, v{U}
        v_mul_u32_u24 v{U+1}, 14, v{U}
        v_sub_u32 v{WA+i}, v{WA+i}, v{U+1}
        v_and_b32 v{U+1}, 3, v{U}
        v_lshrrev_b32 v{U}, 2, v{U}
        v_lshl_add_u32 v{U}, v{U+1}, 3, v{U}
        v_mul_u32_u24 v{U}, 896, v{U}
        v_lshl_add_u32 v{WA+i}, v{WA+i}, 4, v{U}""")
    A(f"""s_mul_i32 s{S_T}, s{S_H}, {256*896}
    s_mul_i32 s{S_T3}, s{S_W}, 224
    s_add_u32 s{S_T}, s{S_T}, s{S_T3}
    s_add_u32 s{S_WOP}, s{P_WO}, s{S_T}
    s_addc_u32 s{S_WOP+1}, s{P_WO+1}, 0
    s_lshl_b32 s{S_PART}, s{S_H}, {4 if NB==4 else 2}
    s_add_u32 s{S_PART}, s{S_PART}, s{S_J}""")
    dma(S_V, f"s_add_u32 m0, s{S_LB}, 0x2000")
    setptr()
    pstamp(7)
    A(f"s_cmp_eq_u32 s{S_ROLE}, 2\ns_cbranch_scc1 {label}_ffn2\n{label}_ffn2x:")
    dma(S_K, f"s_add_u32 m0, s{S_LB}, 0x4000")
    pstamp(8)
    A(f"""v_bfe_u32 v{V_TRA}, v{V_LANE}, 2, 2
    v_lshl_add_u32 v{V_TRA}, v{T}, 3, v{V_TRA}
    v_mul_u32_u24 v{V_TRA}, 224, v{V_TRA}
    v_and_b32 v{U}, 3, v{V_LANE}
    v_lshl_add_u32 v{V_TRA}, v{U}, 3, v{V_TRA}
    v_add_u32 v{V_TRA}, s{S_STG}, v{V_TRA}
    v_lshlrev_b32 v{V_AW}, 3, v{V_LANE}
    v_add_u32 v{V_AW}, s{S_STG}, v{V_AW}
    v_mul_u32_u24 v{V_AR}, {STGW}, v{U}
    v_bfe_u32 v{U+1}, v{V_LANE}, 2, 2
    v_mul_u32_u24 v{U+1}, {AROW if NB==4 else 0}, v{U+1}
    v_add_u32 v{V_AR}, v{V_AR}, v{U+1}
    v_lshl_add_u32 v{V_AR}, v{T}, 4, v{V_AR}
    v_add_u32 v{V_AR}, {STG}, v{V_AR}""")
    A(f"""s_mul_i32 s{S_T}, s{S_W}, {14*YB}
    s_lshl_b32 s{S_T3}, s{S_PART}, 6
    s_add_u32 s{S_T}, s{S_T}, s{S_T3}
    s_mul_i32 s{S_T3}, s{S_B}, {0 if NB==4 else 56*YB}
    s_add_u32 s{S_T}, s{S_T}, s{S_T3}
    s_add_u32 s{S_T}, s{S_T}, {YOFF}
    v_mul_u32_u24 v{V_YA}, {56*YB if NB==4 else 2*YB}, v{T}
    v_bfe_u32 v{U}, v{V_LANE}, 3, 1
    v_lshl_add_u32 v{V_YA}, v{U}, {14 if NB==4 else 12}, v{V_YA}
    v_and_b32 v{U}, 7, v{V_LANE}
    v_lshl_add_u32 v{V_YA}, v{U}, 3, v{V_YA}
    v_add_u32 v{V_YA}, s{S_T}, v{V_YA}""")
    dma(S_V, f"s_add_u32 m0, s{S_LB}, 0x6000")
    setptr()
    A(f"""s_mul_i32 s{S_CB}, s2, 37
    s_lshr_b32 s{S_CB}, s{S_CB}, 9
    s_lshl_b32 s{S_CG}, s2, 2
    s_add_u32 s{S_CG}, s{S_CG}, s{S_W}
    s_lshl_b32 s{S_T}, s{S_CG}, {14 if NB==4 else 12}
    s_add_u32 s{S_T3}, s{S_T}, {YOFF}
    s_add_u32 s{S_Y}, s{P_WS}, s{S_T3}
    s_addc_u32 s{S_Y+1}, s{P_WS+1}, 0
    s_lshl_b32 s{S_T}, s{S_CG}, 12
    s_add_u32 s{S_T3}, s{S_T}, {ZOFF}
    s_add_u32 s{S_Z}, s{P_WS}, s{S_T3}
    s_addc_u32 s{S_Z+1}, s{P_WS+1}, 0
    s_lshl_b32 s{S_T}, s{2 if MLR else S_CB}, {12 if NB==4 else 10}
    s_add_u32 s{S_T}, s{S_T}, {MLOFF}
    v_add_u32 v{CMA}, s{S_T}, v{V_OFF}
    v_and_b32 v{COUT}, 3, v{V_LANE}
    v_lshlrev_b32 v{COUT}, 2, v{COUT}
    v_lshrrev_b32 v{CCOL}, 5, v{V_LANE}
    v_lshl_add_u32 v{COUT}, v{CCOL}, 1, v{COUT}
    s_lshl_b32 s{S_T}, s{S_CG}, 4
    v_add_u32 v{COUT}, s{S_T}, v{COUT}
    s_mul_i32 s{S_T}, s{S_CB}, 896
    v_subrev_u32 v{CCOL}, s{S_T}, v{COUT}
    v_and_b32 v{CBP}, 0xfc, v{V_LANE}""")
    direct(KX,S_K)
    pstamp(9)
    QLs=[SV, W1D+64, W1D+72, W1D+80]
    def qpoll():
        for b in range(NB):
            A(f"global_load_dwordx4 v[{QLs[b]}:{QLs[b]+3}], v{V_QPA}, s[{P_WS}:{P_WS+1}] offset:{1024*b} sc1\nglobal_load_dwordx4 v[{QLs[b]+4}:{QLs[b]+7}], v{V_QPA}, s[{P_WS}:{P_WS+1}] offset:{1024*b+16} sc1")
    qpoll()
    direct(VX,S_V)
    pstamp(10)
    A(f"s_waitcnt vmcnt(8)")
    A(f"{label}_qchk:\nv_mov_b32 v{XT}, 0")
    for b in range(NB):
        for i in range(4): A(f"v_bitop3_b32 v{XT}, v{XT}, v{QLs[b]+2*i+1}, v{V_TAG} bitop3:0xf6")
    A(f"""v_cmp_ne_u32 vcc, 0, v{XT}
    s_add_u32 s{S_SPIN}, s{S_SPIN}, 1
    s_cmp_gt_u32 s{S_SPIN}, {SPIN_MAX}
    s_cbranch_vccz {label}_qok
    s_cbranch_scc1 {label}_qok""")
    qpoll()
    A(f"s_waitcnt vmcnt(0)\ns_branch {label}_qchk\n{label}_qok:")
    for i in range(4): A(f"v_mov_b32 v{QW+i}, v{QLs[0]+2*i}")
    stamp()
    A(f"s_branch {label}_kcomp")
    A(f"{label}_ffn2:")
    FF=TB+28
    stats(24+7+15, FF)
    A(f"""v_lshrrev_b32 v{U}, 2, v{V_LANE}
    v_lshlrev_b32 v{U}, 6, v{U}
    v_and_b32 v{U+1}, 3, v{V_LANE}
    v_lshl_add_u32 v{U}, v{U+1}, 3, v{U}
    s_add_u32 s{S_T2}, s{S_LB}, 0x6000
    v_add_u32 v{U}, s{S_T2}, v{U}
    s_waitcnt vmcnt(24)""")
    for i in range(7):
        for k in range(2): A(f"ds_read_b64_tr_b16 v[{TB+4*i+2*k}:{TB+4*i+2*k+1}], v{U} offset:{1024*i+32*k}")
    A(f"""v_lshlrev_b32 v{U+1}, 9, v{T}
    v_lshl_add_u32 v{U+1}, v{T+1}, 2, v{U+1}
    v_add_u32 v{U+1}, s{S_STG}, v{U+1}
    v_lshlrev_b32 v{U+3}, 3, v{T+1}
    v_add_u32 v{U+3}, {STG}, v{U+3}
    v_lshl_add_u32 v{U+2}, v{T}, 7, v{U+3}
    s_waitcnt lgkmcnt(0)""")
    for i in range(7):
        for k in range(2):
            c = "0" if i==0 else f"v[{BA+4*k}:{BA+4*k+3}]"
            A(f"v_mfma_f32_16x16x16_bf16 v[{BA+4*k}:{BA+4*k+3}], v[{XA+2*i}:{XA+2*i+1}], v[{TB+4*i+2*k}:{TB+4*i+2*k+1}], {c}")
    A(f"""v_bfe_u32 v{T+4}, v{V_LANE}, 2, 2
    v_lshl_add_u32 v{T+4}, v{T}, 3, v{T+4}
    v_mul_u32_u24 v{T+4}, 224, v{T+4}
    v_and_b32 v{T+5}, 3, v{V_LANE}
    v_lshl_add_u32 v{T+4}, v{T+5}, 3, v{T+4}
    s_add_u32 s{S_T2}, s{S_LB}, 0x4000
    v_add_u32 v{T+4}, s{S_T2}, v{T+4}
    s_mov_b32 exec_hi, 0""")
    for k in range(2):
        for r in range(4): A(f"ds_write_b32 v{U+1}, v{BA+4*k+r} offset:{128*r+64*k}")
    A("s_mov_b64 exec, -1")
    for j in range(7):
        A(f"ds_read_b64_tr_b16 v[{TB+4*j}:{TB+4*j+1}], v{T+4} offset:{32*j}\nds_read_b64_tr_b16 v[{TB+4*j+2}:{TB+4*j+3}], v{T+4} offset:{32*j+896}")
    A("s_waitcnt lgkmcnt(0)\ns_barrier")
    HR=FF
    for w in range(4): A(f"ds_read_b64 v[{HR+2*w}:{HR+2*w+1}], v{U+2} offset:{STGW*w}\nds_read_b64 v[{HR+8+2*w}:{HR+9+2*w}], v{U+3} offset:{STGW*w+512}")
    A(f"ds_read_b64 v[{MEAN}:{MEAN+1}], v{T+6}")
    A(f"""s_lshl_b32 s{S_T2}, s{S_W}, 8
    s_add_u32 s{S_T2}, s{S_T2}, {L_H}
    v_lshlrev_b32 v{U}, 2, v{V_LANE}
    v_add_u32 v{U}, s{S_T2}, v{U}
    v_and_b32 v{U+1}, 3, v{V_LANE}
    v_lshlrev_b32 v{U+1}, 6, v{U+1}
    v_lshl_add_u32 v{U+1}, v{T}, 4, v{U+1}
    v_add_u32 v{U+1}, s{S_T2}, v{U+1}
    v_lshlrev_b32 v{XT+4}, 16, v{V_B1}
    v_and_b32 v{XT+5}, 0xffff0000, v{V_B1}
    s_waitcnt lgkmcnt(0)
    s_barrier""")
    for e in range(2):
        A(f"""v_add_f32 v{HR+e}, v{HR+e}, v{HR+2+e}
        v_add_f32 v{HR+4+e}, v{HR+4+e}, v{HR+6+e}
        v_add_f32 v{HR+8+e}, v{HR+8+e}, v{HR+10+e}
        v_add_f32 v{HR+12+e}, v{HR+12+e}, v{HR+14+e}
        v_add_f32 v{HR+e}, v{HR+e}, v{HR+4+e}
        v_add_f32 v{HR+8+e}, v{HR+8+e}, v{HR+12+e}
        v_fma_f32 v{HR+e}, -v{MEAN}, v{HR+8+e}, v{HR+e}
        v_mul_f32 v{HR+e}, v{HR+e}, v{RD}""")
    A(f"""v_cvt_pk_bf16_f32 v{HR}, v{HR}, v{HR+1}
    v_and_b32 v{HR+1}, 0xffff0000, v{HR}
    v_lshlrev_b32 v{HR}, 16, v{HR}
    v_add_f32 v{HR}, v{HR}, v{XT+4}
    v_add_f32 v{HR+1}, v{HR+1}, v{XT+5}
    v_cvt_pk_bf16_f32 v{HR}, v{HR}, v{HR+1}
    v_and_b32 v{HR+1}, 0xffff0000, v{HR}
    v_lshlrev_b32 v{HR}, 16, v{HR}
    v_max_f32 v{HR}, 0, v{HR}
    v_max_f32 v{HR+1}, 0, v{HR+1}
    v_mul_f32 v{HR}, v{HR}, v{HR}
    v_mul_f32 v{HR+1}, v{HR+1}, v{HR+1}
    v_cvt_pk_bf16_f32 v{HR}, v{HR}, v{HR+1}
    ds_write_b32 v{U}, v{HR}
    ds_read_b128 v[{BA}:{BA+3}], v{U+1}""")
    A(f"""s_lshl_b32 s{S_T2}, s{S_FS}, 6
    s_mul_i32 s{S_T3}, s{S_W}, {14*4096}
    s_add_u32 s{S_T2}, s{S_T2}, s{S_T3}
    s_add_u32 s{S_T2}, s{S_T2}, {ZOFF}
    v_mul_u32_u24 v{U+2}, {56*4096}, v{T}
    v_bfe_u32 v{U+3}, v{V_LANE}, 3, 1
    v_lshl_add_u32 v{U+2}, v{U+3}, 12, v{U+2}
    v_and_b32 v{U+3}, 7, v{V_LANE}
    v_lshl_add_u32 v{U+2}, v{U+3}, 3, v{U+2}
    v_add_u32 v{U+2}, s{S_T2}, v{U+2}
    s_mov_b32 s{S_T2}, 0x2000
    s_waitcnt lgkmcnt(0)""")
    ZD=FF
    for j in range(7): A(f"v_mfma_f32_16x16x32_bf16 v[{ZD+4*j}:{ZD+4*j+3}], v[{BA}:{BA+3}], v[{TB+4*j}:{TB+4*j+3}], 0")
    A("s_nop 2")
    for j in range(7): A(f"v_permlane16_swap_b32 v{ZD+4*j}, v{ZD+4*j+1}\nv_permlane16_swap_b32 v{ZD+4*j+2}, v{ZD+4*j+3}")
    for j in range(7): A(f"v_permlane32_swap_b32 v{ZD+4*j}, v{ZD+4*j+2}")
    for j in range(7): A(f"v_mov_b32_dpp v{ZD+4*j+2}, v{ZD+4*j} quad_perm:[1,0,3,2] row_mask:0xf bank_mask:0xf\nv_mov_b32 v{ZD+4*j+1}, v{V_TAG}\nv_mov_b32 v{ZD+4*j+3}, v{V_TAG}")
    A("s_mov_b32 exec_lo, 0x55555555\ns_mov_b32 exec_hi, 0x55555555")
    for j in range(7):
        A(f"global_store_dwordx4 v{U+2}, v[{ZD+4*j}:{ZD+4*j+3}], s[{P_WS}:{P_WS+1}] sc1")
        if j<6: A(f"v_add_u32 v{U+2}, s{S_T2}, v{U+2}")
    A(f"s_mov_b64 exec, -1\ns_branch {label}_ffn2x")
    A(f"{label}_loop:")
    A(f"s_sub_u32 s{S_REM}, s{S_NU}, s{S_IT}")
    A(f"s_cmp_eq_u32 s{S_IT}, 3\ns_cbranch_scc1 {label}_xk")
    A(f"s_cmp_ge_u32 s{S_REM}, 2\ns_cbranch_scc1 {label}_wk24\ns_waitcnt vmcnt(8)\n{label}_wk24:\ns_waitcnt vmcnt(24)")
    A(f"v_add_u32 v{V_T}, s{S_RO}, v{V_LDSR}")
    for j in range(8): A(f"ds_read_b128 v[{KST+4*j}:{KST+4*j+3}], v{V_T} offset:{1024*j}")
    if MO<2: A("s_waitcnt lgkmcnt(0)")
    A(f"{label}_kcomp:")
    if MO<2:
        for j in range(4):
            for t in range(8):
                if j==0: A(f"v_dot2_f32_bf16 v{XT+t}, v{KST+4*t}, v{QW}, 0")
                else: A(f"v_dot2c_f32_bf16 v{XT+t}, v{KST+4*t+j}, v{QW+j}")
    else:
        for h in range(2):
            A(f"s_waitcnt lgkmcnt({4-4*h})")
            for j in range(4):
                for t in range(4*h,4*h+4):
                    if j==0: A(f"v_dot2_f32_bf16 v{XT+t}, v{KST+4*t}, v{QW}, 0")
                    else: A(f"v_dot2c_f32_bf16 v{XT+t}, v{KST+4*t+j}, v{QW+j}")
    A("s_nop 2")
    for u in range(4): A(f"v_permlane16_swap_b32 v{XT+2*u}, v{XT+2*u+1}")
    for u in range(4): A(f"v_add_f32 v{XT+2*u}, v{XT+2*u}, v{XT+2*u+1}")
    y=[XT,XT+2,XT+4,XT+6]
    A(f"""s_nop 0
    v_add_f32_dpp v{y[0]}, v{y[0]}, v{y[0]} row_ror:8 row_mask:0xf bank_mask:0x3
    v_add_f32_dpp v{y[2]}, v{y[2]}, v{y[2]} row_ror:8 row_mask:0xf bank_mask:0x3
    v_add_f32_dpp v{y[0]}, v{y[1]}, v{y[1]} row_ror:8 row_mask:0xf bank_mask:0xc
    v_add_f32_dpp v{y[2]}, v{y[3]}, v{y[3]} row_ror:8 row_mask:0xf bank_mask:0xc
    s_nop 1
    v_add_f32_dpp v{y[0]}, v{y[0]}, v{y[0]} row_shl:4 row_mask:0xf bank_mask:0x5
    s_nop 0
    v_add_f32_dpp v{y[0]}, v{y[2]}, v{y[2]} row_shr:4 row_mask:0xf bank_mask:0xa
    s_nop 1
    v_add_f32_dpp v{y[0]}, v{y[0]}, v{y[0]} quad_perm:[1,0,3,2] row_mask:0xf bank_mask:0xf
    s_nop 1
    v_add_f32_dpp v{y[0]}, v{y[0]}, v{y[0]} quad_perm:[2,3,0,1] row_mask:0xf bank_mask:0xf
    v_mul_f32 v{XT}, s{S_C}, v{XT}
    v_max_f32 v{XT+1}, s{S_M}, v{XT}
    s_nop 1
    v_max_f32_dpp v{XT+1}, v{XT+1}, v{XT+1} row_ror:4 row_mask:0xf bank_mask:0xf
    s_nop 1
    v_max_f32_dpp v{XT+1}, v{XT+1}, v{XT+1} row_ror:8 row_mask:0xf bank_mask:0xf
    s_nop 1
    v_max_f32_dpp v{XT+1}, v{XT+1}, v{XT+1} row_bcast:15 row_mask:0xa bank_mask:0xf
    s_nop 1
    v_max_f32_dpp v{XT+1}, v{XT+1}, v{XT+1} row_bcast:31 row_mask:0xc bank_mask:0xf
    s_nop 0
    v_readlane_b32 s{S_M}, v{XT+1}, 63
    s_nop 1
    v_subrev_f32 v{XT}, s{S_M}, v{XT}
    v_subrev_f32 v{XT+1}, s{S_M}, v{VM}
    v_exp_f32 v{XT}, v{XT}
    v_exp_f32 v{XT+1}, v{XT+1}
    v_mov_b32 v{VM}, s{S_M}
    v_cvt_pk_bf16_f32 v{PA}, v{XT}, v{XT}
    v_fma_f32 v{LA}, v{LA}, v{XT+1}, v{XT}
    v_mov_b32 v{PB}, v{PA}""")
    for j in range(4): A(f"v_mul_f32 v{OA+j}, v{XT+1}, v{OA+j}")
    A(f"v_permlane16_swap_b32 v{PA}, v{PB}")
    A(f"s_cmp_eq_u32 s{S_IT}, 0\ns_cbranch_scc1 {label}_vcomp")
    A(f"s_cmp_eq_u32 s{S_IT}, 3\ns_cbranch_scc1 {label}_xv")
    A(f"s_cmp_ge_u32 s{S_REM}, 2\ns_cbranch_scc1 {label}_wv16\ns_waitcnt vmcnt(0)\n{label}_wv16:\ns_waitcnt vmcnt(16)")
    A(f"v_add_u32 v{V_T}, s{S_RO}, v{V_LDSR}")
    for j in range(8): A(f"ds_read_b128 v[{VST+4*j}:{VST+4*j+3}], v{V_T} offset:{8192+1024*j}")
    if not ABL&1: A(f"s_cmp_lt_u32 s{S_IT}, 11\ns_cbranch_scc1 {label}_wold")
    A(f"{label}_woret:")
    A(f"s_cmp_lt_u32 s{S_REM}, 3\ns_cbranch_scc1 {label}_noiss")
    A(f"""s_cmp_lt_u32 s{S_IT}, {NS-2}
    s_cbranch_scc1 {label}_haveu
    v_readfirstlane_b32 s{S_T}, v{V_CLM}
    s_nop 0
    s_lshr_b32 s{S_T2}, s{S_T}, 12
    s_and_b32 s{S_T}, s{S_T}, 0xfff
    s_cmp_lg_u32 s{S_T2}, s{S_TG}
    s_cselect_b32 s{S_T}, 0xfff, s{S_T}
    s_add_u32 s{S_U}, s{S_T}, {WPG*NS}
    s_cmp_lt_u32 s{S_T}, {POOL}
    s_cbranch_scc1 {label}_haveu
    s_add_u32 s{S_NU}, s{S_IT}, 2
    s_branch {label}_noiss
    {label}_haveu:
    s_cmp_lt_u32 s{S_IT}, {NS-3}
    s_cbranch_scc1 {label}_noclaim
    s_mov_b64 exec, 1
    global_atomic_add v{V_CLM}, v{V_ZERO}, v{V_ONE}, s[{S_CNT}:{S_CNT+1}] sc0 sc1
    s_mov_b64 exec, -1
    {label}_noclaim:""")
    setptr()
    dma(S_K, f"s_add_u32 m0, s{S_LB}, s{S_RO}")
    A(f"s_add_u32 m0, m0, 0x1000\ns_waitcnt lgkmcnt(0)")
    for j in range(8):
        vo = V_OFF if j<4 else V_OFF2
        if j==4: A("s_add_u32 m0, m0, 0x1000\ns_nop 0")
        A(f"global_load_lds_dwordx4 v{vo}, s[{S_V}:{S_V+1}] offset:{(j%4)*1024} {VF}")
    A(f"{label}_noiss:")
    A(f"s_xor_b32 s{S_RO}, s{S_RO}, 0x4000")
    if not MO: A("s_waitcnt lgkmcnt(0)")
    A(f"{label}_vcomp:")
    if trace: A(f"s_memrealtime s[92:93]\ns_waitcnt lgkmcnt(0)\ns_mov_b32 m0, s{S_IT}\nv_writelane_b32 v250, s92, m0")
    def build_b(dst, src, k, mk):
        for j in range(4): A(f"v_and_b32_dpp v{dst+j}, v{src}, v{mk+j} row_newbcast:{k} row_mask:0xf bank_mask:0xf")
    def beta(t): return (t>>2) | (((t>>1)&1)<<1)
    A("s_nop 1")
    build_b(BA, PA, 4*beta(0), MK)
    for t in range(8):
        cur = BA if t%2==0 else BB
        nxt = BB if t%2==0 else BA
        if t+1<8: build_b(nxt, PB if (t+1)&1 else PA, 4*beta(t+1), MK)
        else: A("s_nop 1")
        if MO: A(f"s_waitcnt lgkmcnt({7-t})")
        A(f"v_mfma_f32_16x16x32_bf16 v[{OA}:{OA+3}], v[{VST+4*t}:{VST+4*t+3}], v[{cur}:{cur+3}], v[{OA}:{OA+3}]")
    A(f"{label}_next:")
    if stamps:
        for k in ((2,4,8,12) if stamps==1 else (1,)):
            A(f"s_cmp_lg_u32 s{S_IT}, {k}\ns_cbranch_scc1 {label}_st{k}")
            stamp()
            A(f"{label}_st{k}:")
    A(f"s_add_u32 s{S_IT}, s{S_IT}, 1")
    if NB==4: A(f"s_and_b32 s{S_T}, s{S_IT}, 0x13\ns_cbranch_scc0 {label}_bsw")
    A(f"""{label}_bswx:
    s_cmp_lt_u32 s{S_IT}, s{S_NU}
    s_cbranch_scc1 {label}_loop
    s_branch {label}_tail""")
    def lred():
        for k in (8,4): A(f"s_nop 1\nv_add_f32_dpp v{LA}, v{LA}, v{LA} row_ror:{k} row_mask:0xf bank_mask:0xf")
        A(f"s_nop 1\nv_add_f32_dpp v{LA}, v{LA}, v{LA} row_bcast:15 row_mask:0xa bank_mask:0xf")
        A(f"s_nop 1\nv_add_f32_dpp v{LA}, v{LA}, v{LA} row_bcast:31 row_mask:0xc bank_mask:0xf")
    if NB==4:
        A(f"{label}_bsw:\ns_cmp_gt_u32 s{S_IT}, 12\ns_cbranch_scc1 {label}_bswx")
        lred()
        for i in range(8): A(f"v_mov_b32 v{SV+i}, v{SV+4+i}")
        A(f"""v_cvt_pk_bf16_f32 v{SV+8}, v{OA}, v{OA+1}
        v_cvt_pk_bf16_f32 v{SV+9}, v{OA+2}, v{OA+3}
        v_mov_b32 v{SV+10}, v{LA}
        v_mov_b32 v{SV+11}, v{VM}
        v_mov_b32 v{LA}, 0
        v_mov_b32 v{VM}, {hex(NEG)}
        s_mov_b32 s{S_M}, {hex(NEG)}""")
        for j in range(4): A(f"v_mov_b32 v{OA+j}, 0")
        for i in range(4): A(f"v_mov_b32 v{QW+i}, v{QLs[1]+2*i}\nv_mov_b32 v{QLs[1]+2*i}, v{QLs[2]+2*i}\nv_mov_b32 v{QLs[2]+2*i}, v{QLs[3]+2*i}")
        A(f"s_branch {label}_bswx")
    A(f"{label}_wold:")
    its=[1,2,4,5,6,7,8,9,10]
    for st,itv in enumerate(its):
        if st<8: A(f"s_cmp_lg_u32 s{S_IT}, {itv}\ns_cbranch_scc1 {label}_wo{st+1}")
        if st>0:
            for j in range(7):
                r=((st-1)*7+j)*4
                A(f"ds_read_b64_tr_b16 a[{r}:{r+1}], v{V_TRA} offset:{32*j}\nds_read_b64_tr_b16 a[{r+2}:{r+3}], v{V_TRA} offset:{32*j+896}")
        if st<8:
            base=(128*(st&1)+32*(st>>1))*896
            A(f"s_add_u32 s{S_T2}, s{S_WOP}, {base}\ns_addc_u32 s{S_T3}, s{S_WOP+1}, 0\ns_branch {label}_woiss")
            A(f"{label}_wo{st+1}:")
        else: A(f"s_branch {label}_woret")
    assert S_T3==S_T2+1
    A(f"{label}_woiss:\ns_mov_b32 s{S_K}, s{S_T2}\ns_mov_b32 s{S_K+1}, s{S_T3}\ns_mov_b32 m0, s{S_STG}\ns_waitcnt lgkmcnt(0)")
    for i in range(7):
        A(f"global_load_lds_dwordx4 v{WA+i}, s[{S_K}:{S_K+1}] {WOF}")
        if i<6: A("s_add_u32 m0, m0, 0x400\ns_nop 0")
    A(f"s_branch {label}_woret")
    A(f"{label}_xk:")
    for i in range(32): A(f"v_mov_b32 v{KST+i}, v{KX+i}")
    A(f"s_branch {label}_kcomp")
    A(f"{label}_xv:\ns_waitcnt vmcnt(32)")
    for i in range(32): A(f"v_mov_b32 v{VST+i}, v{VX+i}")
    A(f"s_branch {label}_vcomp")
    A(f"{label}_tail:")
    stamp()
    lred()
    A(f"""v_cvt_pk_bf16_f32 v{OA}, v{OA}, v{OA+1}
    v_cvt_pk_bf16_f32 v{OA+1}, v{OA+2}, v{OA+3}
    s_lshl_b32 s{S_T}, s{S_W}, 3
    s_add_u32 s{S_T}, s{S_T}, {L_ML}
    v_mov_b32 v{T}, s{S_T}""")
    for b in range(NB-1): A(f"ds_write_b64 v{V_AW}, v[{SV+4*b}:{SV+4*b+1}] offset:{AROW*b}")
    A(f"ds_write_b64 v{V_AW}, v[{OA}:{OA+1}] offset:{AROW*(NB-1)}")
    A("s_mov_b32 exec_lo, 0\ns_mov_b32 exec_hi, 0x80000000")
    for b in range(NB-1): A(f"ds_write_b64 v{T}, v[{SV+4*b+2}:{SV+4*b+3}] offset:{32*b}")
    A(f"ds_write_b64 v{T}, v[{LA}:{LA+1}] offset:{32*(NB-1)}\ns_mov_b64 exec, -1")
    CZ=W1D; CF=W1D; CY=W1D+16; CML=U; CM=XT+2
    A(f"s_cmp_ge_u32 s2, {NCONS}\ns_cbranch_scc1 {label}_nocons0")
    def zloads():
        for k in range(4):
            if k==3: A("s_mov_b32 exec_hi, 0")
            A(f"global_load_dwordx4 v[{CZ+4*k}:{CZ+4*k+3}], v{V_OFF}, s[{S_Z}:{S_Z+1}] offset:{1024*k} sc1")
        A("s_mov_b64 exec, -1")
    for k in (12,14): A(f"v_mov_b32 v{CZ+k}, 0\nv_mov_b32 v{CZ+k+1}, v{V_TAG}")
    zloads()
    A(f"""global_load_ushort v{CX}, v{COUT}, s[{P_X}:{P_X+1}]
    global_load_ushort v{CB2}, v{CCOL}, s[{P_B2}:{P_B2+1}]
    {label}_nocons0:""")
    A(f"v_lshrrev_b32 v{T+2}, 4, v{V_LANE}" if NB==4 else f"v_mov_b32 v{T+2}, 0")
    A(f"""v_lshlrev_b32 v{T}, 5, v{T+2}
    v_add_u32 v{T}, {L_ML}, v{T}
    s_lshl_b32 s{S_T2}, s{S_PART}, 4
    s_add_u32 s{S_T2}, s{S_T2}, {MLOFF}
    v_lshlrev_b32 v{T+1}, 12, v{T+2}
    v_add_u32 v{T+1}, s{S_T2}, v{T+1}
    s_mov_b32 s{S_T2}, {hex(2*YB if NB==4 else 8*YB)}""")
    if NB==1 and not MLR: A(f"s_lshl_b32 s{S_T3}, s{S_B}, 10\nv_add_u32 v{T+1}, s{S_T3}, v{T+1}")
    if MLR:
        assert NB==1
        A(f"s_mul_i32 s{S_T3}, s{S_B}, {14*1024}\nv_lshl_add_u32 v{T+1}, v{V_LANE}, 10, v{T+1}\nv_add_u32 v{T+1}, s{S_T3}, v{T+1}")
    ML=U; M=T+4; AF=KST; D=VST
    A(f"v_mov_b32 v{M+1}, v{V_TAG}\nv_mov_b32 v{M+3}, v{V_TAG}")
    A("s_waitcnt lgkmcnt(0)\ns_barrier")
    if stamps==1: stamp()
    A(f"ds_read_b128 v[{ML}:{ML+3}], v{T}\nds_read_b128 v[{ML+4}:{ML+7}], v{T} offset:16")
    for s_ in range(8): A(f"ds_read_b128 v[{AF+4*s_}:{AF+4*s_+3}], v{V_AR} offset:{64*s_}")
    A("s_waitcnt lgkmcnt(7)")
    def fact():
        r=[f"v_max3_f32 v{M}, v{ML+1}, v{ML+3}, v{ML+5}", f"v_max_f32 v{M}, v{M}, v{ML+7}"]
        r+=[f"v_sub_f32 v{ML+2*w+1}, v{ML+2*w+1}, v{M}" for w in range(4)]
        r+=[f"v_exp_f32 v{ML+2*w+1}, v{ML+2*w+1}" for w in range(4)]
        r+=[f"v_mul_f32 v{M+2}, v{ML}, v{ML+1}"]+[f"v_fmac_f32 v{M+2}, v{ML+2*w}, v{ML+2*w+1}" for w in range(1,4)]
        return r
    def post(j):
        d=D+4*j
        return [f"v_mul_f32 v{d}, v{d}, v{ML+1}", f"v_fmac_f32 v{d}, v{d+1}, v{ML+3}", f"v_fmac_f32 v{d}, v{d+2}, v{ML+5}", f"v_fmac_f32 v{d}, v{d+3}, v{ML+7}",
                f"v_mov_b32 v{d+1}, v{V_TAG}", f"v_mov_b32 v{d+3}, v{V_TAG}",
                f"v_mov_b32_dpp v{d+2}, v{d} quad_perm:[1,0,3,2] row_mask:0xf bank_mask:0xf",
                f"s_mov_b32 exec_lo, 0x55555555\ns_mov_b32 exec_hi, 0x55555555\nglobal_store_dwordx4 v{V_YA}, v[{d}:{d+3}], s[{P_WS}:{P_WS+1}] sc1\ns_mov_b64 exec, -1\nv_add_u32 v{V_YA}, s{S_T2}, v{V_YA}"]
    def post1(j):
        d=D+4*j; mr=YM+4*(j//4)
        r=[f"v_mul_f32 v{d}, v{d}, v{ML+1}", f"v_fmac_f32 v{d}, v{d+1}, v{ML+3}", f"v_fmac_f32 v{d}, v{d+2}, v{ML+5}", f"v_fmac_f32 v{d}, v{d+3}, v{ML+7}",
           "s_nop 1",
           f"v_mov_b32_dpp v{mr}, v{d} quad_perm:[0,1,2,3] row_mask:{hex(1<<(j&3))} bank_mask:0xf",
           f"v_mov_b32_dpp v{mr+2}, v{d} quad_perm:[1,0,3,2] row_mask:{hex(1<<(j&3))} bank_mask:0xf"]
        if j in (3,6):
            r.append(f"s_mov_b32 exec_lo, 0x55555555\ns_mov_b32 exec_hi, {'0x55555555' if j==3 else '0x5555'}\nglobal_store_dwordx4 v{V_YA}, v[{mr}:{mr+3}], s[{P_WS}:{P_WS+1}] sc1\ns_mov_b64 exec, -1\nv_add_u32 v{V_YA}, s{S_T2}, v{V_YA}")
        return r
    YM=BA
    if NB==1:
        post=post1
    fill=fact()
    mlpub=f"""s_cmp_lg_u32 s{S_W}, 0
    s_cbranch_scc1 {label}_noml
    s_mov_b32 exec_lo, {'0x00010001' if NB==4 else ('0x3fff' if MLR else '1')}
    s_mov_b32 exec_hi, {'0x00010001' if NB==4 else '0'}
    global_store_dwordx4 v{T+1}, v[{M}:{M+3}], s[{P_WS}:{P_WS+1}] sc1
    s_mov_b64 exec, -1
    {label}_noml:"""
    for j in range(7):
        if j==1: fill=[mlpub]+([f"v_mov_b32 v{YM+i}, v{V_TAG}" for i in (1,3,5,7)] if NB==1 else [])
        if j>=2: fill=post(j-2)
        for s_ in range(8):
            if j==0 and s_>0: A(f"s_waitcnt lgkmcnt({7-s_})")
            r=(s_*7+j)*4
            c = "0" if s_==0 else f"v[{D+4*j}:{D+4*j+3}]"
            A(f"v_mfma_f32_16x16x32_bf16 v[{D+4*j}:{D+4*j+3}], v[{AF+4*s_}:{AF+4*s_+3}], a[{r}:{r+3}], {c}")
            for _ in range(2 if j==0 else 1):
                if fill: A(fill.pop(0))
        assert not fill
    for ln in post(5): A(ln)
    if NB==1: A("s_nop 0")
    for ln in post(6): A(ln)
    A(f"{label}_fin:")
    if stamps!=2: stamp()
    A(f"s_cmp_ge_u32 s2, {NCONS}\ns_cbranch_scc1 {label}_done")
    def tagacc(dst, rs, first=True):
        for i,r in enumerate(rs):
            if first and i==0: A(f"v_xor_b32 v{dst}, v{r}, v{V_TAG}")
            else: A(f"v_bitop3_b32 v{dst}, v{dst}, v{r}, v{V_TAG} bitop3:0xf6")
    def test(dst, ok):
        A(f"""v_cmp_ne_u32 vcc, 0, v{dst}
        s_add_u32 s{S_SPIN}, s{S_SPIN}, 1
        s_cmp_gt_u32 s{S_SPIN}, {SPIN_MAX}
        s_cbranch_vccz {ok}
        s_cbranch_scc1 {ok}""")
    def yloads():
        for k in range(4*NB):
            A(f"global_load_dwordx4 v[{CY+4*k}:{CY+4*k+3}], v{[V_OFF,V_OFF2,T+2,T+3][k//4]}, s[{S_Y}:{S_Y+1}] offset:{1024*(k%4)} sc1")
    def mlload():
        for k in range(NB): A(f"global_load_dwordx4 v[{CML+4*k}:{CML+4*k+3}], v{CMA}, s[{P_WS}:{P_WS+1}] offset:{1024*k} sc1")
    def red16(a0,a1,tmp):
        A(f"""s_nop 1
        v_permlane32_swap_b32 v{a0}, v{a1}
        v_add_f32 v{a0}, v{a0}, v{a1}
        s_nop 1
        v_add_f32_dpp v{a0}, v{a0}, v{a0} row_ror:4 row_mask:0xf bank_mask:0xf
        s_nop 1
        v_add_f32_dpp v{a0}, v{a0}, v{a0} row_ror:8 row_mask:0xf bank_mask:0xf
        v_mov_b32 v{tmp}, v{a0}
        s_nop 1
        v_permlane16_swap_b32 v{a0}, v{tmp}
        v_add_f32 v{a0}, v{a0}, v{tmp}""")
    mlload()
    A(f"v_add_u32 v{T+2}, 0x2000, v{V_OFF}\nv_add_u32 v{T+3}, 0x3000, v{V_OFF}")
    A(f"s_waitcnt vmcnt({NB})")
    A(f"{label}_zchk:")
    tagacc(XT, [CZ+2*i+1 for i in range(8)])
    if ABL&2: A(f"s_branch {label}_zok")
    test(XT, f"{label}_zok")
    zloads()
    A(f"s_waitcnt vmcnt(0)\ns_branch {label}_zchk\n{label}_zok:")
    for j in (0,2):
        A(f"v_add_f32 v{CZ+j}, v{CZ+j}, v{CZ+4+j}\nv_add_f32 v{CZ+8+j}, v{CZ+8+j}, v{CZ+12+j}")
    for j in (0,2): A(f"v_add_f32 v{CZ+j}, v{CZ+j}, v{CZ+8+j}")
    red16(CZ, CZ+2, CZ+1)
    A(f"""v_lshlrev_b32 v{CX}, 16, v{CX}
    v_lshlrev_b32 v{CB2}, 16, v{CB2}
    v_cvt_pk_bf16_f32 v{CG}, v{CZ}, v{CZ}
    v_lshlrev_b32 v{CG}, 16, v{CG}
    v_add_f32 v{CG}, v{CG}, v{CB2}
    v_cvt_pk_bf16_f32 v{CG}, v{CG}, v{CG}
    v_lshlrev_b32 v{CG}, 16, v{CG}
    v_mul_f32 v{XT+5}, {hex(f2u(-LOG2E))}, v{CG}
    v_exp_f32 v{XT+5}, v{XT+5}
    s_nop 0
    v_add_f32 v{XT+5}, 1.0, v{XT+5}
    v_rcp_f32 v{XT+5}, v{XT+5}
    s_nop 0
    v_mul_f32 v{CG}, v{CG}, v{XT+5}
    v_cvt_pk_bf16_f32 v{CG}, v{CG}, v{CG}
    v_lshlrev_b32 v{CG}, 16, v{CG}""")
    if FP:
        assert NB==1
        SM=[64,66,68,70,72] if not stamps else [86,88,90,92,98]
        SM=[84,86,88,90,92]
        A(f"{label}_mlw:\ns_waitcnt vmcnt(0)")
        tagacc(XT, [CML+1, CML+3])
        A(f"""v_cmp_ne_u32 vcc, 0, v{XT}
        s_add_u32 s{S_SPIN}, s{S_SPIN}, 1
        s_cmp_gt_u32 s{S_SPIN}, {SPIN_MAX}
        s_cbranch_scc1 {label}_stb
        s_bcnt1_i32_b64 s{S_T}, vcc
        s_cmp_le_u32 s{S_T}, {FP}
        s_cbranch_scc1 {label}_stb""")
        mlload()
        A(f"s_branch {label}_mlw\n{label}_stb:\ns_mov_b32 s{S_T2}, 0")
        mlload(); yloads()
        A(f"s_waitcnt vmcnt(0)\n{label}_pl:")
        A(f"v_xor_b32 v{XT+4}, v{CML+1}, v{V_TAG}")
        for k in range(4): A(f"v_xor_b32 v{XT+k}, v{CY+4*k+1}, v{V_TAG}")
        A(f"v_bitop3_b32 v{XT+4}, v{XT+4}, v{CML+3}, v{V_TAG} bitop3:0xf6")
        for k in range(4): A(f"v_bitop3_b32 v{XT+k}, v{XT+k}, v{CY+4*k+3}, v{V_TAG} bitop3:0xf6")
        A(f"v_cmp_ne_u32 s[{SM[4]}:{SM[4]+1}], 0, v{XT+4}")
        for k in range(4): A(f"v_cmp_ne_u32 s[{SM[k]}:{SM[k]+1}], 0, v{XT+k}")
        A(f"""s_cmp_lg_u32 s{S_T2}, 0
        s_cbranch_scc1 {label}_hf
        s_cmp_lg_u64 s[{SM[4]}:{SM[4]+1}], 0
        s_cbranch_scc1 {label}_iss
        s_mov_b32 s{S_T2}, 1
        s_nop 7
        v_max_f32_dpp v{XT+5}, v{CML}, v{CML} quad_perm:[1,0,3,2] row_mask:0xf bank_mask:0xf
        s_nop 1
        v_max_f32_dpp v{XT+5}, v{XT+5}, v{XT+5} quad_perm:[2,3,0,1] row_mask:0xf bank_mask:0xf
        v_sub_f32 v{XT+5}, v{CML}, v{XT+5}
        v_exp_f32 v{XT+5}, v{XT+5}
        s_nop 0
        v_mul_f32 v{XT+6}, v{CML+2}, v{XT+5}
        s_nop 1
        v_add_f32_dpp v{XT+6}, v{XT+6}, v{XT+6} quad_perm:[1,0,3,2] row_mask:0xf bank_mask:0xf
        s_nop 1
        v_add_f32_dpp v{XT+6}, v{XT+6}, v{XT+6} quad_perm:[2,3,0,1] row_mask:0xf bank_mask:0xf
        v_rcp_f32 v{XT+6}, v{XT+6}
        s_nop 0
        v_mul_f32 v{XT+5}, v{XT+5}, v{XT+6}""")
        for k in range(4): A(f"ds_bpermute_b32 v{CF+k}, v{CBP}, v{XT+5} offset:{64*k}")
        A(f"""{label}_hf:
        s_or_b64 vcc, s[{SM[0]}:{SM[0]+1}], s[{SM[1]}:{SM[1]+1}]
        s_or_b64 vcc, vcc, s[{SM[2]}:{SM[2]+1}]
        s_or_b64 vcc, vcc, s[{SM[3]}:{SM[3]+1}]
        s_cbranch_scc0 {label}_yok
        {label}_iss:
        s_add_u32 s{S_SPIN}, s{S_SPIN}, 1
        s_cmp_gt_u32 s{S_SPIN}, {SPIN_MAX*8}
        s_cbranch_scc1 {label}_yok
        s_or_b64 exec, s[{SM[4]}:{SM[4]+1}], 1""")
        mlload()
        for k in range(4):
            A(f"s_or_b64 exec, s[{SM[k]}:{SM[k]+1}], 1\nglobal_load_dwordx4 v[{CY+4*k}:{CY+4*k+3}], v{V_OFF}, s[{S_Y}:{S_Y+1}] offset:{1024*k} sc1")
        A(f"s_mov_b64 exec, -1\ns_waitcnt vmcnt({5*(PD-1)})\ns_branch {label}_pl\n{label}_yok:\ns_nop 15\ns_waitcnt lgkmcnt(0)")
        for k in range(4):
            if k==0: A(f"v_mul_f32 v{XT}, v{CY}, v{CF}\nv_mul_f32 v{XT+2}, v{CY+2}, v{CF}")
            else: A(f"v_fmac_f32 v{XT}, v{CY+4*k}, v{CF+k}\nv_fmac_f32 v{XT+2}, v{CY+4*k+2}, v{CF+k}")
    else:
        if TH==0:
            A(f"{label}_mlw:\ns_waitcnt vmcnt(0)")
            tagacc(XT, [CML+2*i+1 for i in range(2*NB)])
            test(XT, f"{label}_mlok")
            mlload()
            A(f"s_branch {label}_mlw\n{label}_mlok:")
            yloads()
        else:
            A(f"{label}_mlw:\ns_waitcnt vmcnt(0)")
            tagacc(XT, [CML+2*i+1 for i in range(2*NB)])
            test(XT, f"{label}_mlok0")
            A(f"s_bcnt1_i32_b64 s{S_T}, vcc")
            mlload()
            A(f"s_cmp_gt_u32 s{S_T}, {TH}\ns_cbranch_scc1 {label}_mlw")
            A(f"{label}_mlw2:")
            yloads()
            A(f"s_waitcnt vmcnt({4*NB})")
            tagacc(XT, [CML+2*i+1 for i in range(2*NB)])
            test(XT, f"{label}_mlok")
            mlload()
            A(f"s_branch {label}_mlw2\n{label}_mlok0:")
            yloads()
            A(f"{label}_mlok:")
        if NB==4:
            for k in range(4): A(f"v_max_f32_dpp v{CML+4*k+1}, v{CML+4*k}, v{CML+4*k} row_ror:8 row_mask:0xf bank_mask:0xf")
            for r in (4,2,1):
                for k in range(4): A(f"v_max_f32_dpp v{CML+4*k+1}, v{CML+4*k+1}, v{CML+4*k+1} row_ror:{r} row_mask:0xf bank_mask:0xf")
            for k in range(4): A(f"v_sub_f32 v{CML+4*k}, v{CML+4*k}, v{CML+4*k+1}")
            for k in range(4): A(f"v_exp_f32 v{CML+4*k}, v{CML+4*k}")
            for k in range(4): A(f"v_mul_f32 v{CML+4*k+2}, v{CML+4*k+2}, v{CML+4*k}")
            for r in (8,4,2,1):
                for k in range(4): A(f"v_add_f32_dpp v{CML+4*k+2}, v{CML+4*k+2}, v{CML+4*k+2} row_ror:{r} row_mask:0xf bank_mask:0xf")
            for k in range(4): A(f"v_rcp_f32 v{CML+4*k+2}, v{CML+4*k+2}")
            for k in range(4): A(f"v_mul_f32 v{CML+4*k}, v{CML+4*k}, v{CML+4*k+2}")
            for k in range(16): A(f"ds_bpermute_b32 v{CF+k}, v{CBP}, v{CML+4*(k//4)} offset:{64*(k%4)}")
        else:
            A(f"""v_max_f32_dpp v{CML+1}, v{CML}, v{CML} quad_perm:[1,0,3,2] row_mask:0xf bank_mask:0xf
            s_nop 1
            v_max_f32_dpp v{CML+1}, v{CML+1}, v{CML+1} quad_perm:[2,3,0,1] row_mask:0xf bank_mask:0xf
            v_sub_f32 v{CML}, v{CML}, v{CML+1}
            v_exp_f32 v{CML}, v{CML}
            s_nop 0
            v_mul_f32 v{CML+2}, v{CML+2}, v{CML}
            s_nop 1
            v_add_f32_dpp v{CML+2}, v{CML+2}, v{CML+2} quad_perm:[1,0,3,2] row_mask:0xf bank_mask:0xf
            s_nop 1
            v_add_f32_dpp v{CML+2}, v{CML+2}, v{CML+2} quad_perm:[2,3,0,1] row_mask:0xf bank_mask:0xf
            v_rcp_f32 v{CML+2}, v{CML+2}
            s_nop 0
            v_mul_f32 v{CML}, v{CML}, v{CML+2}""")
            for k in range(4): A(f"ds_bpermute_b32 v{CF+k}, v{CBP}, v{CML} offset:{64*k}")
        A("s_waitcnt lgkmcnt(0)")
        A(f"{label}_yw:")
        for k in range(4*NB):
            A(f"s_waitcnt vmcnt({4*NB-1-k})")
            if k==0: A(f"v_mul_f32 v{XT}, v{CY}, v{CF}\nv_mul_f32 v{XT+2}, v{CY+2}, v{CF}")
            else: A(f"v_fmac_f32 v{XT}, v{CY+4*k}, v{CF+k}\nv_fmac_f32 v{XT+2}, v{CY+4*k+2}, v{CF+k}")
            tagacc(XT+4, [CY+4*k+1, CY+4*k+3], first=(k==0))
        test(XT+4, f"{label}_yok")
        yloads()
        A(f"s_branch {label}_yw\n{label}_yok:")
    if stamps!=2: stamp()
    red16(XT, XT+2, XT+1)
    A(f"""v_cvt_pk_bf16_f32 v{XT}, v{XT}, v{XT}
    v_lshlrev_b32 v{XT}, 16, v{XT}
    v_mul_f32 v{XT}, v{XT}, v{CG}
    v_cvt_pk_bf16_f32 v{XT}, v{XT}, v{XT}
    v_lshlrev_b32 v{XT}, 16, v{XT}
    v_add_f32 v{XT}, v{XT}, v{CX}
    v_cvt_pk_bf16_f32 v{XT}, v{XT}, v{XT}
    s_mov_b32 exec_lo, 0xf
    s_mov_b32 exec_hi, 0xf
    global_store_short v{COUT}, v{XT}, s[{P_OUT}:{P_OUT+1}] {OF}
    s_mul_i32 s{S_T}, s{S_CB}, 56
    s_cmp_lg_u32 s{S_CG}, s{S_T}
    s_cbranch_scc1 {label}_done
    v_mov_b32 v{XT+1}, 64
    s_mov_b64 exec, 1
    global_atomic_add v{V_ZERO}, v{XT+1}, s[{P_WS}:{P_WS+1}] sc1""")
    A(f"{label}_done:")
    if trace:
        A(f"""s_mov_b64 exec, -1
        s_memrealtime s[92:93]
        s_waitcnt lgkmcnt(0)
        v_writelane_b32 v250, s90, 62
        v_writelane_b32 v250, s92, 63
        s_lshl_b32 s{S_T}, s2, 2
        s_add_u32 s{S_T}, s{S_T}, s{S_W}
        s_lshl_b32 s{S_T}, s{S_T}, 8
        s_add_u32 s{S_T}, s{S_T}, 0x10000000
        v_lshlrev_b32 v251, 2, v{V_LANE}
        v_add_u32 v251, s{S_T}, v251
        global_store_dword v251, v250, s[{P_WS}:{P_WS+1}]""")
    if DELAY:
        A(f"""s_cmp_lg_u32 s2, 0
        s_cbranch_scc1 {label}_end
        {label}_dl:
        s_memrealtime s[92:93]
        s_waitcnt lgkmcnt(0)
        s_sub_u32 s92, s92, s94
        s_cmp_lt_u32 s92, {DELAY}
        s_cbranch_scc1 {label}_dl""")
    if stamps:
        A("s_mov_b64 exec, -1")
        stamp()
        assert nst[0]<=15
        A(f"s_cmp_lg_u32 s{S_W}, {STW}\ns_cbranch_scc1 {label}_end")
        A(f"s_lshl_b32 s{S_T}, s2, 7\ns_add_u32 s{S_T}, s{S_T}, 0x10000000\ns_add_u32 s{P_WS}, s{P_WS}, s{S_T}\ns_addc_u32 s{P_WS+1}, s{P_WS+1}, 0")
        A("s_waitcnt lgkmcnt(0) vmcnt(0)\nv_mov_b32 v1, 0")
        for k in range(nst[0]):
            A(f"v_mov_b32 v{KST+2*k}, s{S_ST+2*k}\nv_mov_b32 v{KST+2*k+1}, s{S_ST+2*k+1}\nglobal_store_dwordx2 v1, v[{KST+2*k}:{KST+2*k+1}], s[{P_WS}:{P_WS+1}] offset:{8*k}")
        A(f"s_mul_i32 s{S_T}, s{S_NU}, 100\ns_add_u32 s{S_T}, s{S_T}, s{S_ST}\nv_mov_b32 v{KST+40}, s{S_T}\nv_mov_b32 v{KST+41}, s{S_ST+1}\nglobal_store_dwordx2 v1, v[{KST+40}:{KST+41}], s[{P_WS}:{P_WS+1}] offset:120")
        A(f"v_mov_b32 v{KST+42}, s{S_SPIN}\ns_mov_b64 exec, 1\nglobal_atomic_add v1, v{KST+42}, s[{P_DBG}:{P_DBG+1}]")
    A(f"{label}_end:\ns_endpgm")
    return A.text()

def kdesc(label, vgpr, accum, sgpr):
    return f""".amdhsa_kernel {label}
  .amdhsa_next_free_vgpr {vgpr}
  .amdhsa_next_free_sgpr {sgpr}
  .amdhsa_accum_offset {accum}
  .amdhsa_group_segment_fixed_size 0
  .amdhsa_kernarg_size 104
  .amdhsa_user_sgpr_count 2
  .amdhsa_user_sgpr_kernarg_segment_ptr 1
  .amdhsa_system_sgpr_workgroup_id_x 1
  .amdhsa_float_denorm_mode_32 3
.end_amdhsa_kernel
"""
DOC=""";
;   * hand-offs between workgroups are 8-byte {value, tag} granules written / read with sc1; the tag comes
"""
def full(stamps=0, **kw):
    ref=open(f"cdna_kernels/{NAME}.s.ref").read().split("\n")
    hdr=[l for l in ref if l.startswith(";") and "@launch" not in l]
    main=NAME+"_kernel"
    t="\n".join(hdr)+"\n"
    t+=f"; @launch grid=(256,1,1) block=(256,1,1) lds={LDS_TOTAL}\n"
    t+=DOC+'.amdgcn_target "amdgcn-amd-amdhsa--gfx950"\n.text\n'
    t+=gen_main(main, stamps, **kw)
    t+='.section .rodata,"a"\n.p2align 6\n'+kdesc(main, 256+224, 256, 100)
    return t, [(main,256)]
def variant(name, **kw):
    t,ks=full(0, **kw)
    open(f"work/{name}.s","w").write(t)
    build(t,name,ks)
    t,ks=full(1, **kw); build(t,name+"_s",ks)
    t,ks=full(2, **kw); build(t,name+"_p",ks)
    t,ks=full(3, **kw); build(t,name+"_t",ks)
if __name__=="__main__":
    for p in range(56): assert (p*37)>>9 == p//14
    for p in range(448): assert (p*4682)>>16 == p//14
    if len(sys.argv)>1:
        for spec in sys.argv[1:]:
            nm,_,args=spec.partition(":")
            variant(nm,**eval("dict(%s)"%args))
    else:
        t,ks=full(0)
        open(f"cdna_kernels/{NAME}.s","w").write(t)
    print("LDS",LDS_TOTAL)
```

```python
import sys, struct
from asmlib import build
NAME="recurrent_scan__mha_block_cached__dense_activation_squared_relu__decode"
def f2u(x): return struct.unpack("<I", struct.pack("<f", x))[0]
LOG2E=1.4426950408889634
CSC=f2u(LOG2E/16.0)
NEG=0xff7fffff
class E:
    def __init__(s): s.o=[]
    def __call__(s, t):
        for ln in t.split("\n"):
            ln=ln.strip()
            if ln: s.o.append(("" if ln.endswith(":") or ln.startswith(";") else "    ")+ln)
    def text(s): return "\n".join(s.o)+"\n"

V_TID=0; V_LANE=1; V_OFF=2; V_OFF2=3
MK=4; QW=8; OA=12; LA=16; VM=17; PA=18; PB=19
SV=20
XT=32
BA=40; BB=44
KST=48; VST=80
W1D=112
KX=W1D; VX=W1D+32
WA=200
V_TRA=207
V_T=208
QALL=232
V_LDSR=232; V_QPA=233; V_B1=234; V_TAG=235; V_ZERO=236; V_CLM=237; V_ONE=238
V_AW=239; V_AR=240; V_YA=241; CMA=242; CBP=243; CCOL=244; COUT=245; CX=246; CB2=247; CG=248
PUB=20; SG=24; S1=28; S2=29; V_SCL=30; PA2=249; PB2=250; VU=251; V_SCA=252
QN=249
QNX=W1D+64
QPL=W1D+32+0
S_W=3; S_K=4; S_V=6; S_LB=8; S_RO=9; S_IT=10; S_M=11; S_T=12; S_H=13; S_B=14; S_SP=15
P_X=16;P_K=18;P_V=20;P_WQ=22;P_WO=24;P_W1=28;P_B1=30;P_W2=32;P_B2=34;P_OUT=36;P_DBG=38;P_WS=40
S_NU=42; S_FS=43; S_C=44; S_T2=45; S_T3=46; S_J=47; S_ROT=48; S_TAG=49; S_STG=50; S_PART=51; S_WOP=52; S_ROLE=54; S_U=55; S_SPIN=56; S_REM=57
S_CB=58; S_CG=59; S_Y=60; S_Z=62; S_CNT=26; S_TG=96; S_G=97; S_PH=98; S_NI=99; S_TI=22; S_NKI=23; S_WIH=100; S_NSX=28; S_SC=30
S_ST=64
STG=131072; STGW=7168
L_SM=STG+4*STGW
L_MS=L_SM; L_ML=L_SM+64; L_H=L_SM+256; HW=512
LDS_TOTAL=L_H+4*HW
AROW=528
QXOFF=0x1000; MLOFF=0x20000; CNTOFF=0x30000; ZOFF=0x100000; YOFF=0x200000; SCOFF=0x400000
NCONS=28
SPIN_MAX=1<<18

def gen_main(label, stamps=0, WF="nt", KF="nt", VF="nt", MAP=4, STW=0, QPRE=4, QSP=0, FSP=3, ROT=None, WOF='', DELAY=0, JORD=0, NB=1, NS=12, TH=0, OF='', ROTH=0, ABL=0, MO=1, ORD=1, MUL=1, FP=0, PD=8, MLR=1, NSK=7, SF='sc1', PFW=0):
    NSV=NSK
    assert NB==1 and KF==VF
    WPG=64 if NB==4 else 16
    POOL=256*NB-WPG*NS
    NP=64*NB
    YB=NP*64
    if ROT is None: ROT=2
    cnt=[0]
    A=E()
    nst=[0]
    trace = stamps==3
    if trace: stamps=0
    def stamp():
        if stamps:
            A(f"s_memrealtime s[{S_ST+2*nst[0]}:{S_ST+2*nst[0]+1}]"); nst[0]+=1
    def pstamp(k):
        if stamps==2:
            A(f"s_memrealtime s[{S_ST+2*k}:{S_ST+2*k+1}]"); nst[0]=max(nst[0],k+1)
    T=V_T; U=T+8
    A(f".globl {label}\n.p2align 8\n.type {label},@function\n{label}:")
    A(f"s_cmp_ge_u32 s2, 256\ns_cbranch_scc1 {label}_end")
    stamp()
    if trace: A("s_memrealtime s[90:91]\nv_mov_b32 v253, 0")
    if DELAY: A("s_memrealtime s[94:95]")
    A("s_load_dwordx16 s[16:31], s[0:1], 0\ns_load_dwordx2 s[40:41], s[0:1], 96\ns_load_dwordx8 s[32:39], s[0:1], 64")
    A(f"v_lshrrev_b32 v{XT}, 6, v0\nv_and_b32 v{V_LANE}, 63, v0\nv_lshlrev_b32 v{V_OFF}, 4, v{V_LANE}")
    A(f"v_readfirstlane_b32 s{S_W}, v{XT}")
    if MAP==0:
        A(f"""s_and_b32 s{S_H}, s2, 7
        s_lshl_b32 s{S_H}, s{S_H}, 1
        s_bfe_u32 s{S_T}, s2, 0x10003
        s_or_b32 s{S_H}, s{S_H}, s{S_T}
        s_bfe_u32 s{S_B}, s2, 0x20004
        s_lshr_b32 s{S_SP}, s2, 6""")
    elif MAP in (1,4):
        if MAP==1: A(f"s_bfe_u32 s{S_H}, s2, 0x20001\ns_mov_b32 s{S_T}, s2")
        else: A(f"""s_lshr_b32 s{S_T}, s2, 1
        s_xor_b32 s{S_H}, s2, s{S_T}
        s_and_b32 s{S_H}, s{S_H}, 1
        s_and_b32 s{S_B}, s{S_T}, 2
        s_or_b32 s{S_H}, s{S_H}, s{S_B}""")
        A(f"""s_lshl_b32 s{S_H}, s{S_H}, 2
        s_bfe_u32 s{S_B}, s2, 0x20003
        s_or_b32 s{S_H}, s{S_H}, s{S_B}
        s_bfe_u32 s{S_B}, s2, 0x20005
        s_lshr_b32 s{S_SP}, s2, 7
        s_lshl_b32 s{S_SP}, s{S_SP}, 1
        s_and_b32 s{S_T}, s{S_T}, 1
        s_or_b32 s{S_SP}, s{S_SP}, s{S_T}""")
    elif MAP==3:
        A(f"""s_bfe_u32 s{S_SP}, s2, 0x20001
        s_xor_b32 s{S_H}, s2, s{S_SP}
        s_and_b32 s{S_H}, s{S_H}, 1
        s_lshl_b32 s{S_H}, s{S_H}, 3
        s_bfe_u32 s{S_T}, s2, 0x30003
        s_or_b32 s{S_H}, s{S_H}, s{S_T}
        s_lshr_b32 s{S_B}, s2, 6""")
    A(f"v_add_u32 v{V_OFF2}, 0x1000, v{V_OFF}\nv_mov_b32 v{V_ZERO}, 0")
    if JORD==0: A(f"s_lshl_b32 s{S_J}, s{S_B}, 2\ns_add_u32 s{S_J}, s{S_J}, s{S_SP}")
    else: A(f"s_lshl_b32 s{S_J}, s{S_SP}, 2\ns_add_u32 s{S_J}, s{S_J}, s{S_B}")
    A(f"s_lshl_b32 s{S_G}, s{S_B}, 4\ns_add_u32 s{S_G}, s{S_G}, s{S_H}")
    if NB==4: A(f"s_mov_b32 s{S_G}, s{S_H}")
    else: A(f"s_mov_b32 s{S_J}, s{S_SP}")
    if JORD==2: A(f"s_lshl_b32 s{S_U}, s{S_W}, 2\ns_add_u32 s{S_U}, s{S_U}, s{S_J}")
    else: A(f"s_lshl_b32 s{S_U}, s{S_J}, 2\ns_add_u32 s{S_U}, s{S_U}, s{S_W}")
    A(f"s_mov_b32 s{S_WIH}, s{S_U}")
    if ORD==0: A(f"s_mul_i32 s{S_U}, s{S_U}, {NS}")
    if ORD==2: A(f"s_lshl_b32 s{S_U}, s{S_U}, 1")
    if ROTH: A(f"s_lshl_b32 s{S_ROT}, s{S_H}, 2\ns_add_u32 s{S_ROT}, s{S_ROT}, s{S_B}\ns_mul_i32 s{S_ROT}, s{S_ROT}, {ROT}")
    else: A(f"s_mul_i32 s{S_ROT}, s{S_G}, {ROT}")
    A(f"""s_lshl_b32 s{S_T}, s{S_G}, 21
    s_lshl_b32 s{S_LB}, s{S_W}, 15
    s_mul_i32 s{S_STG}, s{S_W}, {STGW}
    s_add_u32 s{S_STG}, s{S_STG}, {STG}
    s_lshl_b32 s{S_FS}, s{S_B}, 4
    s_add_u32 s{S_FS}, s{S_FS}, s{S_H}
    s_mov_b32 s{S_RO}, 0""")
    A(f"v_lshrrev_b32 v{T}, 4, v{V_LANE}\nv_and_b32 v{T+1}, 15, v{V_LANE}")
    def kvbase():
        A(f"""s_load_dword s{S_TAG}, s[{P_WS}:{P_WS+1}], 0
        s_add_u32 s{P_K}, s{P_K}, s{S_T}
        s_addc_u32 s{P_K+1}, s{P_K+1}, 0
        s_add_u32 s{P_V}, s{P_V}, s{S_T}
        s_addc_u32 s{P_V+1}, s{P_V+1}, 0""")
    def setptr(adv=True):
        A(f"""s_add_u32 s{S_V}, s{S_U}, s{S_ROT}
        s_and_b32 s{S_V}, s{S_V}, 0x7f
        s_lshl_b32 s{S_V}, s{S_V}, 14
        s_add_u32 s{S_K}, s{P_K if adv else S_SC}, s{S_V}
        s_addc_u32 s{S_K+1}, s{(P_K if adv else S_SC)+1}, 0
        s_add_u32 s{S_V}, s{S_K}, 0x2000
        s_addc_u32 s{S_V+1}, s{S_K+1}, 0""")
        if adv: A(f"s_add_u32 s{S_U}, s{S_U}, 16")
    def direct(reg, sb, js=range(8)):
        for j in js:
            vo = V_OFF if j<4 else V_OFF2
            A(f"global_load_dwordx4 v[{reg+4*j}:{reg+4*j+3}], v{vo}, s[{sb}:{sb+1}] offset:{(j%4)*1024} {KF if sb==S_K else VF}")
    def dma(sb, m0src):
        A(m0src+"\ns_nop 0")
        for j in range(8):
            vo = V_OFF if j<4 else V_OFF2
            if j==4: A("s_add_u32 m0, m0, 0x1000\ns_nop 0")
            A(f"global_load_lds_dwordx4 v{vo}, s[{sb}:{sb+1}] offset:{(j%4)*1024} {KF if sb==S_K else VF}")
    QL=V_T-0
    QL=W1D+64-8
    XA=W1D; XS=W1D+14; TB=W1D+28; F=VST
    S=U+4; MEAN=S+4; RD=S+5
    A(f"""s_cmp_eq_u32 s{S_SP}, {QSP}
    s_cselect_b32 s{S_ROLE}, 1, 0
    s_cmp_lg_u32 s{S_SP}, {FSP}
    s_cbranch_scc1 {label}_rset
    s_cmp_lt_u32 s{S_FS}, {0 if ABL&2 else 56}
    s_cselect_b32 s{S_ROLE}, 2, 0
    {label}_rset:
    s_cmp_lg_u32 s{S_ROLE}, 0
    s_cbranch_scc1 {label}_role
    s_waitcnt lgkmcnt(0)""")
    pstamp(1)
    kvbase(); setptr()
    if PFW!=2: direct(KST,S_K)
    if PFW:
        assert (QSP,FSP)==(0,3)
        A(f"""s_cmp_eq_u32 s{S_SP}, 3
        s_cbranch_scc1 {label}_nopf
        s_lshl_b32 s{S_T2}, s{S_G}, 3
        s_add_u32 s{S_T2}, s{S_T2}, s{S_WIH}
        s_sub_u32 s{S_T2}, s{S_T2}, 4
        s_mul_i32 s{S_T2}, s{S_T2}, 7168
        v_add_u32 v{T+2}, s{S_T2}, v{V_OFF}
        v_add_u32 v{T+3}, s{S_T2}, v{V_OFF2}""")
        for i in range(7): A(f"global_load_dwordx4 v[{VX+4*i}:{VX+4*i+3}], v{T+2 if i<4 else T+3}, s[{P_WO}:{P_WO+1}] offset:{1024*(i%4)}")
        A(f"{label}_nopf:")
    if PFW==2: direct(KST,S_K)
    A(f"s_branch {label}_stream0")
    A(f"{label}_role:")
    A(f"v_mul_u32_u24 v{T+2}, 896, v{T}\nv_mul_u32_u24 v{T+3}, 56, v{T+1}\nv_add_u32 v{T+2}, v{T+2}, v{T+3}")
    A(f"s_mul_i32 s{S_T2}, s{S_W}, 224\nv_mul_u32_u24 v{T+3}, 896, v{T+1}\nv_lshl_add_u32 v{T+3}, v{T}, 3, v{T+3}\nv_add_u32 v{T+3}, s{S_T2}, v{T+3}")
    A(f"v_cmp_eq_u32 vcc, 4, v{T+1}\nv_mov_b32 v{T+5}, 0x3f803f80\ns_add_u32 m0, s{S_LB}, 0x4000\nv_cndmask_b32 v{XA}, 0, v{T+5}, vcc")
    for i in range(1,14): A(f"v_mov_b32 v{XA+i}, v{XA}")
    A(f"v_mov_b32 v{T+6}, {L_MS}\nv_lshl_add_u32 v{T+6}, v{T}, 3, v{T+6}")
    def xloads():
        A(f"s_cmp_lg_u32 s{S_W}, 0\ns_cbranch_scc1 {label}_nx{cnt[0]}")
        for i in range(3): A(f"global_load_dwordx4 v[{XS+4*i}:{XS+4*i+3}], v{T+2}, s[{P_X}:{P_X+1}] offset:{16*i}")
        A(f"global_load_dwordx2 v[{XS+12}:{XS+13}], v{T+2}, s[{P_X}:{P_X+1}] offset:48")
        A(f"{label}_nx{cnt[0]}:"); cnt[0]+=1
        A("s_mov_b32 exec_lo, 0x000f000f\ns_mov_b32 exec_hi, 0x000f000f")
        for i in range(7): A(f"global_load_dwordx2 v[{XA+2*i}:{XA+2*i+1}], v{T+3}, s[{P_X}:{P_X+1}] offset:{32*i}")
        A("s_mov_b64 exec, -1")
    def rsum(r):
        for k in (8,4,2,1): A(f"s_nop 1\nv_add_f32_dpp v{r}, v{r}, v{r} row_ror:{k} row_mask:0xf bank_mask:0xf")
    def stats(nyounger, FF):
        A(f"s_cmp_lg_u32 s{S_W}, 0\ns_cbranch_scc1 {label}_ns{cnt[0]}")
        A(f"s_waitcnt vmcnt({nyounger})")
        for i in range(14): A(f"v_lshlrev_b32 v{FF+2*i}, 16, v{XS+i}\nv_and_b32 v{FF+2*i+1}, 0xffff0000, v{XS+i}")
        A(f"v_add_f32 v{S}, v{FF}, v{FF+1}\nv_add_f32 v{S+1}, v{FF+2}, v{FF+3}")
        for i in range(4,28,2): A(f"v_add_f32 v{S}, v{S}, v{FF+i}\nv_add_f32 v{S+1}, v{S+1}, v{FF+i+1}")
        A(f"v_add_f32 v{S}, v{S}, v{S+1}")
        rsum(S)
        A(f"v_mul_f32 v{S}, {hex(f2u(1.0/448))}, v{S}")
        for i in range(28): A(f"v_sub_f32 v{FF+i}, v{FF+i}, v{S}")
        A(f"v_mul_f32 v{S+1}, v{FF}, v{FF}\nv_mul_f32 v{S+2}, v{FF+1}, v{FF+1}")
        for i in range(2,28,2): A(f"v_fmac_f32 v{S+1}, v{FF+i}, v{FF+i}\nv_fmac_f32 v{S+2}, v{FF+i+1}, v{FF+i+1}")
        A(f"v_add_f32 v{S+1}, v{S+1}, v{S+2}")
        rsum(S+1)
        A(f"""v_mul_f32 v{S+1}, {hex(f2u(1.0/448))}, v{S+1}
        v_cvt_pk_bf16_f32 v{S+1}, v{S+1}, v{S}
        v_and_b32 v{MEAN}, 0xffff0000, v{S+1}
        v_lshlrev_b32 v{S+1}, 16, v{S+1}
        v_add_f32 v{S+1}, {hex(f2u(1e-5))}, v{S+1}
        v_cvt_pk_bf16_f32 v{S+1}, v{S+1}, v{S+1}
        v_lshlrev_b32 v{S+1}, 16, v{S+1}
        v_sqrt_f32 v{S+1}, v{S+1}
        s_nop 0
        v_cvt_pk_bf16_f32 v{S+1}, v{S+1}, v{S+1}
        v_lshlrev_b32 v{S+1}, 16, v{S+1}
        v_rcp_f32 v{RD}, v{S+1}
        s_nop 0
        ds_write_b64 v{T+6}, v[{MEAN}:{MEAN+1}]
        {label}_ns{cnt[0]}:"""); cnt[0]+=1
    def mktag(dst): A(f"s_lshr_b32 s{dst}, s{S_TAG}, 8\ns_add_u32 s{dst}, s{dst}, 1\ns_or_b32 s{dst}, s{dst}, 0x80000000")
    A(f"s_cmp_eq_u32 s{S_ROLE}, 2\ns_cbranch_scc1 {label}_ffn")
    A(f"""s_mul_i32 s{S_T2}, s{S_W}, {112*8192}
    s_lshl_b32 s{S_T3}, s{S_H}, 9
    s_add_u32 s{S_T2}, s{S_T2}, s{S_T3}
    s_lshl_b32 s{S_T3}, s{S_B}, 7
    s_add_u32 s{S_T2}, s{S_T2}, s{S_T3}
    v_lshrrev_b32 v{T+4}, 3, v{V_LANE}
    v_lshlrev_b32 v{T+4}, 13, v{T+4}
    v_and_b32 v{T+5}, 7, v{V_LANE}
    v_lshl_add_u32 v{T+4}, v{T+5}, 4, v{T+4}
    v_add_u32 v{T+4}, s{S_T2}, v{T+4}
    s_mov_b32 s{S_T2}, 0x10000
    v_lshrrev_b32 v{T+5}, 2, v{V_LANE}
    v_lshlrev_b32 v{T+5}, 7, v{T+5}
    v_and_b32 v{U+3}, 3, v{V_LANE}
    v_lshl_add_u32 v{T+5}, v{U+3}, 3, v{T+5}
    s_add_u32 s{S_T3}, s{S_LB}, 0x4000
    v_add_u32 v{T+5}, s{S_T3}, v{T+5}
    s_waitcnt lgkmcnt(0)""")
    pstamp(1)
    xloads()
    for i in range(14):
        if ABL&4: A(f"global_load_lds_dwordx4 v{V_OFF}, s[{P_WQ}:{P_WQ+1}]")
        else: A(f"global_load_lds_dwordx4 v{T+4}, s[{P_WQ}:{P_WQ+1}] {WF}")
        if i<13: A(f"s_add_u32 m0, m0, 0x400\nv_add_u32 v{T+4}, s{S_T2}, v{T+4}")
    kvbase(); setptr()
    direct(KST,S_K,range(QPRE))
    A(f"""v_add_u32 v{U}, s{S_STG}, v{V_OFF}
    s_lshl_b32 s{S_T2}, s{S_W}, 9
    s_add_u32 s{S_T2}, s{S_T2}, {STG}
    v_lshlrev_b32 v{U+2}, 4, v{T+1}
    v_add_u32 v{U+2}, s{S_T2}, v{U+2}
    v_lshl_add_u32 v{U+1}, v{T}, 2, v{U+2}
    s_lshl_b32 s{S_T2}, s{S_H}, 12
    s_lshl_b32 s{S_T3}, s{S_B}, 8
    s_add_u32 s{S_T2}, s{S_T2}, s{S_T3}
    s_lshl_b32 s{S_T3}, s{S_W}, 6
    s_add_u32 s{S_T2}, s{S_T2}, s{S_T3}
    s_add_u32 s{S_T2}, s{S_T2}, {QXOFF}
    v_lshlrev_b32 v{T+2}, 10, v{T}
    v_lshl_add_u32 v{T+2}, v{T+1}, 2, v{T+2}
    v_add_u32 v{T+2}, s{S_T2}, v{T+2}
    s_lshl_b32 s{S_T2}, s{S_G}, 8
    s_add_u32 s{S_T2}, s{S_T2}, {CNTOFF}
    v_mov_b32 v{T+4}, s{S_T2}""")
    pstamp(2)
    stats(7+14+QPRE, F)
    A(f"s_waitcnt vmcnt({QPRE})")
    pstamp(3)
    QD=F
    for i in range(7):
        for k in range(4): A(f"ds_read_b64_tr_b16 v[{TB+8*i+2*k}:{TB+8*i+2*k+1}], v{T+5} offset:{2048*i+32*k}")
    for i in range(7):
        A(f"s_waitcnt lgkmcnt({min(15,4*(6-i))})")
        for k in range(4):
            c = "0" if i==0 else f"v[{QD+4*k}:{QD+4*k+3}]"
            A(f"v_mfma_f32_16x16x16_bf16 v[{QD+4*k}:{QD+4*k+3}], v[{XA+2*i}:{XA+2*i+1}], v[{TB+8*i+2*k}:{TB+8*i+2*k+1}], {c}")
    A("s_mov_b32 exec_hi, 0\ns_nop 3")
    for k in range(4): A(f"ds_write_b128 v{U}, v[{QD+4*k}:{QD+4*k+3}] offset:{512*k}")
    A("s_mov_b64 exec, -1\ns_waitcnt lgkmcnt(0)\ns_barrier")
    for w in range(4): A(f"ds_read_b32 v{XT+w}, v{U+1} offset:{STGW*w}\nds_read_b32 v{XT+4+w}, v{U+2} offset:{STGW*w+256}")
    A(f"ds_read_b64 v[{MEAN}:{MEAN+1}], v{T+6}")
    mktag(S_T2)
    A(f"""v_mov_b32 v{U+3}, s{S_T2}
    s_or_b32 s{S_T3}, s{S_W}, s{S_B if NB==4 else S_W}
    s_waitcnt lgkmcnt(0)
    v_add_f32 v{XT}, v{XT}, v{XT+1}
    v_add_f32 v{XT+4}, v{XT+4}, v{XT+5}
    v_add_f32 v{XT+2}, v{XT+2}, v{XT+3}
    v_add_f32 v{XT+6}, v{XT+6}, v{XT+7}
    v_add_f32 v{XT}, v{XT}, v{XT+2}
    v_add_f32 v{XT+4}, v{XT+4}, v{XT+6}
    v_fma_f32 v{XT}, -v{MEAN}, v{XT+4}, v{XT}
    v_mul_f32 v{XT}, v{XT}, v{RD}
    v_mov_b32 v{XT+3}, v{U+3}
    v_lshlrev_b32 v{XT+4}, 12, v{U+3}
    v_mov_b32_dpp v{XT+1}, v{XT} quad_perm:[1,0,3,2] row_mask:0xf bank_mask:0xf
    v_cvt_pk_bf16_f32 v{XT+2}, v{XT}, v{XT+1}
    s_mov_b32 exec_lo, 0x55555555
    s_mov_b32 exec_hi, 0x55555555
    global_store_dwordx2 v{T+2}, v[{XT+2}:{XT+3}], s[{P_WS}:{P_WS+1}] sc1
    s_mov_b64 exec, 1
    s_cmp_lg_u32 s{S_T3}, 0
    s_cbranch_scc1 {label}_noinit
    global_store_dword v{T+4}, v{XT+4}, s[{P_WS}:{P_WS+1}] sc1
    s_cmp_lg_u32 s{S_FS}, 0
    s_cbranch_scc1 {label}_noinit
    v_mov_b32 v{XT+5}, 0xffffff00
    global_atomic_and v{V_ZERO}, v{XT+5}, s[{P_WS}:{P_WS+1}] sc1
    {label}_noinit:
    s_mov_b64 exec, -1""")
    stamp()
    direct(KST,S_K,range(QPRE,8))
    A(f"s_branch {label}_stream0")
    A(f"{label}_ffn:")
    A(f"""s_mul_i32 s{S_T2}, s{S_W}, {112*3584}
    s_lshl_b32 s{S_T3}, s{S_FS}, 6
    s_add_u32 s{S_T2}, s{S_T2}, s{S_T3}
    v_lshrrev_b32 v{T+4}, 2, v{V_LANE}
    v_mul_u32_u24 v{T+4}, 3584, v{T+4}
    v_and_b32 v{T+5}, 3, v{V_LANE}
    v_lshl_add_u32 v{T+4}, v{T+5}, 4, v{T+4}
    v_add_u32 v{T+4}, s{S_T2}, v{T+4}
    s_mul_i32 s{S_T2}, s{S_FS}, {32*896}
    s_mul_i32 s{S_T3}, s{S_W}, 224
    s_add_u32 s{S_T2}, s{S_T2}, s{S_T3}""")
    for i in range(7):
        A(f"""v_add_u32 v{TB+i}, {64*i}, v{V_LANE}
        v_mul_u32_u24 v{U}, 4682, v{TB+i}
        v_lshrrev_b32 v{U}, 16, v{U}
        v_mul_u32_u24 v{U}, 672, v{U}
        v_lshl_add_u32 v{TB+i}, v{TB+i}, 4, v{U}
        v_add_u32 v{TB+i}, s{S_T2}, v{TB+i}""")
    A(f"""s_mov_b32 s{S_T2}, {16*3584}
    s_lshl_b32 s{S_T3}, s{S_FS}, 6
    v_lshlrev_b32 v{T+7}, 2, v{T+1}
    v_add_u32 v{T+7}, s{S_T3}, v{T+7}
    s_waitcnt lgkmcnt(0)""")
    kvbase(); setptr()
    direct(KST,S_K)
    xloads()
    for i in range(7):
        A(f"global_load_lds_dwordx4 v{TB+i}, s[{P_W2}:{P_W2+1}] {WF}\ns_add_u32 m0, m0, 0x400\ns_nop 0")
    A(f"s_add_u32 m0, s{S_LB}, 0x6000\ns_nop 0")
    for i in range(7):
        A(f"global_load_lds_dwordx4 v{T+4}, s[{P_W1}:{P_W1+1}] {WF}")
        if i<6: A(f"s_add_u32 m0, m0, 0x400\nv_add_u32 v{T+4}, s{S_T2}, v{T+4}")
    A(f"global_load_dword v{V_B1}, v{T+7}, s[{P_B1}:{P_B1+1}]")
    A(f"{label}_stream0:")
    direct(VST,S_V)
    setptr()
    pstamp(5)
    A(f"s_lshl_b32 s{S_T3}, s{S_H}, 12\ns_add_u32 s{S_T3}, s{S_T3}, {QXOFF}\nv_and_b32 v{V_QPA}, 31, v{V_LANE}\nv_lshlrev_b32 v{V_QPA}, 5, v{V_QPA}\nv_add_u32 v{V_QPA}, s{S_T3}, v{V_QPA}")
    if NB==1: A(f"s_lshl_b32 s{S_T3}, s{S_B}, 10\nv_add_u32 v{V_QPA}, s{S_T3}, v{V_QPA}")
    A(f"s_lshl_b32 s{S_T2}, s{S_G}, 8\ns_add_u32 s{S_T2}, s{S_T2}, {CNTOFF}\ns_add_u32 s{S_CNT}, s{P_WS}, s{S_T2}\ns_addc_u32 s{S_CNT+1}, s{P_WS+1}, 0\nv_mov_b32 v{V_ONE}, 1")
    A(f"""v_and_b32 v{U}, 1, v{V_LANE}
    v_mov_b32 v{U+1}, 0xffff
    v_lshlrev_b32 v{U}, 4, v{U}
    v_lshlrev_b32 v{U+1}, v{U}, v{U+1}
    v_lshrrev_b32 v{U+3}, 1, v{V_LANE}
    v_xor_b32 v{U+3}, v{U+3}, v{V_LANE}
    v_and_b32 v{U+3}, 8, v{U+3}
    v_bfe_u32 v{U+2}, v{V_LANE}, 1, 2
    v_or_b32 v{U+2}, v{U+2}, v{U+3}""")
    for j in range(4):
        A(f"v_cmp_eq_u32 vcc, {j}, v{U+2}\ns_nop 1\nv_cndmask_b32 v{MK+j}, 0, v{U+1}, vcc")
    A(f"v_add_u32 v{V_LDSR}, s{S_LB}, v{V_OFF}")
    A(f"v_mov_b32 v{LA}, 0\nv_mov_b32 v{VM}, {hex(NEG)}\ns_mov_b32 s{S_M}, {hex(NEG)}\ns_mov_b32 s{S_C}, {hex(CSC)}")
    for j in range(4): A(f"v_mov_b32 v{OA+j}, 0")
    A(f"s_mov_b32 s{S_IT}, 0\ns_mov_b32 s{S_NU}, 0x7fff\ns_mov_b32 s{S_SPIN}, 0\ns_waitcnt lgkmcnt(0)")
    mktag(S_TAG)
    A(f"v_mov_b32 v{V_TAG}, s{S_TAG}\ns_and_b32 s{S_TG}, s{S_TAG}, 0xfffff")
    dma(S_K, f"s_mov_b32 m0, s{S_LB}")
    pstamp(6)
    for i in range(7):
        A(f"""v_add_u32 v{WA+i}, {64*i}, v{V_LANE}
        v_mul_u32_u24 v{U}, 4682, v{WA+i}
        v_lshrrev_b32 v{U}, 16, v{U}
        v_mul_u32_u24 v{U+1}, 14, v{U}
        v_sub_u32 v{WA+i}, v{WA+i}, v{U+1}
        v_and_b32 v{U+1}, 3, v{U}
        v_lshrrev_b32 v{U}, 2, v{U}
        v_lshl_add_u32 v{U}, v{U+1}, 3, v{U}
        v_mul_u32_u24 v{U}, 896, v{U}
        v_lshl_add_u32 v{WA+i}, v{WA+i}, 4, v{U}""")
    A(f"""s_mul_i32 s{S_T}, s{S_H}, {256*896}
    s_mul_i32 s{S_T3}, s{S_W}, 224
    s_add_u32 s{S_T}, s{S_T}, s{S_T3}
    s_add_u32 s{S_WOP}, s{P_WO}, s{S_T}
    s_addc_u32 s{S_WOP+1}, s{P_WO+1}, 0
    s_lshl_b32 s{S_PART}, s{S_H}, {4 if NB==4 else 2}
    s_add_u32 s{S_PART}, s{S_PART}, s{S_J}""")
    dma(S_V, f"s_add_u32 m0, s{S_LB}, 0x2000")
    setptr()
    pstamp(7)
    A(f"s_cmp_eq_u32 s{S_ROLE}, 2\ns_cbranch_scc1 {label}_ffn2\n{label}_ffn2x:")
    dma(S_K, f"s_add_u32 m0, s{S_LB}, 0x4000")
    pstamp(8)
    A(f"""v_bfe_u32 v{V_TRA}, v{V_LANE}, 2, 2
    v_lshl_add_u32 v{V_TRA}, v{T}, 3, v{V_TRA}
    v_mul_u32_u24 v{V_TRA}, 224, v{V_TRA}
    v_and_b32 v{U}, 3, v{V_LANE}
    v_lshl_add_u32 v{V_TRA}, v{U}, 3, v{V_TRA}
    v_add_u32 v{V_TRA}, s{S_STG}, v{V_TRA}
    v_lshlrev_b32 v{V_AW}, 3, v{V_LANE}
    v_add_u32 v{V_AW}, s{S_STG}, v{V_AW}
    v_mul_u32_u24 v{V_AR}, {STGW}, v{U}
    v_bfe_u32 v{U+1}, v{V_LANE}, 2, 2
    v_mul_u32_u24 v{U+1}, {AROW if NB==4 else 0}, v{U+1}
    v_add_u32 v{V_AR}, v{V_AR}, v{U+1}
    v_lshl_add_u32 v{V_AR}, v{T}, 4, v{V_AR}
    v_add_u32 v{V_AR}, {STG}, v{V_AR}""")
    A(f"""s_mul_i32 s{S_T}, s{S_W}, {7*4096}
    s_lshl_b32 s{S_T3}, s{S_PART}, 6
    s_add_u32 s{S_T}, s{S_T}, s{S_T3}
    s_mul_i32 s{S_T3}, s{S_B}, {28*4096}
    s_add_u32 s{S_T}, s{S_T}, s{S_T3}
    s_add_u32 s{S_T}, s{S_T}, {YOFF}
    v_lshlrev_b32 v{V_YA}, 12, v{T}
    v_and_b32 v{U}, 12, v{V_LANE}
    v_lshl_add_u32 v{V_YA}, v{U}, 2, v{V_YA}
    v_add_u32 v{V_YA}, s{S_T}, v{V_YA}""")
    dma(S_V, f"s_add_u32 m0, s{S_LB}, 0x6000")
    setptr()
    A(f"""s_mul_i32 s{S_CB}, s2, 37
    s_lshr_b32 s{S_CB}, s{S_CB}, 8
    s_lshl_b32 s{S_CG}, s2, 2
    s_add_u32 s{S_CG}, s{S_CG}, s{S_W}
    s_lshl_b32 s{S_T}, s{S_CG}, {14 if NB==4 else 12}
    s_add_u32 s{S_T3}, s{S_T}, {YOFF}
    s_add_u32 s{S_Y}, s{P_WS}, s{S_T3}
    s_addc_u32 s{S_Y+1}, s{P_WS+1}, 0
    s_lshl_b32 s{S_T}, s{S_CG}, 12
    s_add_u32 s{S_T3}, s{S_T}, {ZOFF}
    s_add_u32 s{S_Z}, s{P_WS}, s{S_T3}
    s_addc_u32 s{S_Z+1}, s{P_WS+1}, 0
    s_lshl_b32 s{S_T}, s{2 if MLR else S_CB}, {12 if NB==4 else 10}
    s_add_u32 s{S_T}, s{S_T}, {MLOFF}
    v_add_u32 v{CMA}, s{S_T}, v{V_OFF}
    v_and_b32 v{COUT}, 3, v{V_LANE}
    v_lshlrev_b32 v{COUT}, 3, v{COUT}
    v_lshrrev_b32 v{CCOL}, 5, v{V_LANE}
    v_lshl_add_u32 v{COUT}, v{CCOL}, 1, v{COUT}
    v_bfe_u32 v{CCOL}, v{V_LANE}, 4, 1
    v_lshl_add_u32 v{COUT}, v{CCOL}, 2, v{COUT}
    s_lshl_b32 s{S_T}, s{S_CG}, 5
    v_add_u32 v{COUT}, s{S_T}, v{COUT}
    s_mul_i32 s{S_T}, s{S_CB}, 896
    v_subrev_u32 v{CCOL}, s{S_T}, v{COUT}
    v_and_b32 v{CBP}, 0xfc, v{V_LANE}""")
    A(f"""s_mov_b32 s{S_PH}, 0
    s_mov_b32 s{S_TI}, 4
""")
    direct(KX,S_K)
    pstamp(9)
    QLs=[SV, W1D+64, W1D+72, W1D+80]
    def qpoll():
        for b in range(NB):
            A(f"global_load_dwordx4 v[{QLs[b]}:{QLs[b]+3}], v{V_QPA}, s[{P_WS}:{P_WS+1}] offset:{1024*b} sc1\nglobal_load_dwordx4 v[{QLs[b]+4}:{QLs[b]+7}], v{V_QPA}, s[{P_WS}:{P_WS+1}] offset:{1024*b+16} sc1")
    qpoll()
    direct(VX,S_V)
    pstamp(10)
    A(f"s_waitcnt vmcnt(8)")
    A(f"{label}_qchk:\nv_mov_b32 v{XT}, 0")
    for b in range(NB):
        for i in range(4): A(f"v_bitop3_b32 v{XT}, v{XT}, v{QLs[b]+2*i+1}, v{V_TAG} bitop3:0xf6")
    A(f"""v_cmp_ne_u32 vcc, 0, v{XT}
    s_add_u32 s{S_SPIN}, s{S_SPIN}, 1
    s_cmp_gt_u32 s{S_SPIN}, {SPIN_MAX}
    s_cbranch_vccz {label}_qok
    s_cbranch_scc1 {label}_qok""")
    qpoll()
    A(f"s_waitcnt vmcnt(0)\ns_branch {label}_qchk\n{label}_qok:")
    for i in range(4): A(f"v_mov_b32 v{QW+i}, v{QLs[0]+2*i}")
    A(f"""s_lshl_b32 s{S_T}, s{S_W}, 9
    s_add_u32 s{S_T}, s{S_T}, {L_H}
    v_and_b32 v{V_SCL}, 0xfc, v{V_LANE}
    v_add_u32 v{V_SCL}, s{S_T}, v{V_SCL}""")
    stamp()
    A(f"s_branch {label}_k1")
    A(f"{label}_ffn2:")
    FF=TB+28
    stats(24+7+15, FF)
    A(f"""v_lshrrev_b32 v{U}, 2, v{V_LANE}
    v_lshlrev_b32 v{U}, 6, v{U}
    v_and_b32 v{U+1}, 3, v{V_LANE}
    v_lshl_add_u32 v{U}, v{U+1}, 3, v{U}
    s_add_u32 s{S_T2}, s{S_LB}, 0x6000
    v_add_u32 v{U}, s{S_T2}, v{U}
    s_waitcnt vmcnt(24)""")
    for i in range(7):
        for k in range(2): A(f"ds_read_b64_tr_b16 v[{TB+4*i+2*k}:{TB+4*i+2*k+1}], v{U} offset:{1024*i+32*k}")
    A(f"""v_lshlrev_b32 v{U+1}, 9, v{T}
    v_lshl_add_u32 v{U+1}, v{T+1}, 2, v{U+1}
    v_add_u32 v{U+1}, s{S_STG}, v{U+1}
    v_lshlrev_b32 v{U+3}, 3, v{T+1}
    v_add_u32 v{U+3}, {STG}, v{U+3}
    v_lshl_add_u32 v{U+2}, v{T}, 7, v{U+3}
    s_waitcnt lgkmcnt(0)""")
    for i in range(7):
        for k in range(2):
            c = "0" if i==0 else f"v[{BA+4*k}:{BA+4*k+3}]"
            A(f"v_mfma_f32_16x16x16_bf16 v[{BA+4*k}:{BA+4*k+3}], v[{XA+2*i}:{XA+2*i+1}], v[{TB+4*i+2*k}:{TB+4*i+2*k+1}], {c}")
    A(f"""v_bfe_u32 v{T+4}, v{V_LANE}, 2, 2
    v_lshl_add_u32 v{T+4}, v{T}, 3, v{T+4}
    v_mul_u32_u24 v{T+4}, 224, v{T+4}
    v_and_b32 v{T+5}, 3, v{V_LANE}
    v_lshl_add_u32 v{T+4}, v{T+5}, 3, v{T+4}
    s_add_u32 s{S_T2}, s{S_LB}, 0x4000
    v_add_u32 v{T+4}, s{S_T2}, v{T+4}
    s_mov_b32 exec_hi, 0""")
    for k in range(2):
        for r in range(4): A(f"ds_write_b32 v{U+1}, v{BA+4*k+r} offset:{128*r+64*k}")
    A("s_mov_b64 exec, -1")
    for j in range(7):
        A(f"ds_read_b64_tr_b16 v[{TB+4*j}:{TB+4*j+1}], v{T+4} offset:{32*j}\nds_read_b64_tr_b16 v[{TB+4*j+2}:{TB+4*j+3}], v{T+4} offset:{32*j+896}")
    A("s_waitcnt lgkmcnt(0)\ns_barrier")
    HR=FF
    for w in range(4): A(f"ds_read_b64 v[{HR+2*w}:{HR+2*w+1}], v{U+2} offset:{STGW*w}\nds_read_b64 v[{HR+8+2*w}:{HR+9+2*w}], v{U+3} offset:{STGW*w+512}")
    A(f"ds_read_b64 v[{MEAN}:{MEAN+1}], v{T+6}")
    A(f"""s_lshl_b32 s{S_T2}, s{S_W}, 9
    s_add_u32 s{S_T2}, s{S_T2}, {L_H}
    v_lshlrev_b32 v{U}, 2, v{V_LANE}
    v_add_u32 v{U}, s{S_T2}, v{U}
    v_and_b32 v{U+1}, 3, v{V_LANE}
    v_lshlrev_b32 v{U+1}, 6, v{U+1}
    v_lshl_add_u32 v{U+1}, v{T}, 4, v{U+1}
    v_add_u32 v{U+1}, s{S_T2}, v{U+1}
    v_lshlrev_b32 v{XT+4}, 16, v{V_B1}
    v_and_b32 v{XT+5}, 0xffff0000, v{V_B1}
    s_waitcnt lgkmcnt(0)
    s_barrier""")
    for e in range(2):
        A(f"""v_add_f32 v{HR+e}, v{HR+e}, v{HR+2+e}
        v_add_f32 v{HR+4+e}, v{HR+4+e}, v{HR+6+e}
        v_add_f32 v{HR+8+e}, v{HR+8+e}, v{HR+10+e}
        v_add_f32 v{HR+12+e}, v{HR+12+e}, v{HR+14+e}
        v_add_f32 v{HR+e}, v{HR+e}, v{HR+4+e}
        v_add_f32 v{HR+8+e}, v{HR+8+e}, v{HR+12+e}
        v_fma_f32 v{HR+e}, -v{MEAN}, v{HR+8+e}, v{HR+e}
        v_mul_f32 v{HR+e}, v{HR+e}, v{RD}""")
    A(f"""v_cvt_pk_bf16_f32 v{HR}, v{HR}, v{HR+1}
    v_and_b32 v{HR+1}, 0xffff0000, v{HR}
    v_lshlrev_b32 v{HR}, 16, v{HR}
    v_add_f32 v{HR}, v{HR}, v{XT+4}
    v_add_f32 v{HR+1}, v{HR+1}, v{XT+5}
    v_cvt_pk_bf16_f32 v{HR}, v{HR}, v{HR+1}
    v_and_b32 v{HR+1}, 0xffff0000, v{HR}
    v_lshlrev_b32 v{HR}, 16, v{HR}
    v_max_f32 v{HR}, 0, v{HR}
    v_max_f32 v{HR+1}, 0, v{HR+1}
    v_mul_f32 v{HR}, v{HR}, v{HR}
    v_mul_f32 v{HR+1}, v{HR+1}, v{HR+1}
    v_cvt_pk_bf16_f32 v{HR}, v{HR}, v{HR+1}
    ds_write_b32 v{U}, v{HR}
    ds_read_b128 v[{BA}:{BA+3}], v{U+1}""")
    A(f"""s_lshl_b32 s{S_T2}, s{S_FS}, 6
    s_mul_i32 s{S_T3}, s{S_W}, {7*4096}
    s_add_u32 s{S_T2}, s{S_T2}, s{S_T3}
    s_add_u32 s{S_T2}, s{S_T2}, {ZOFF}
    v_mul_u32_u24 v{U+2}, {28*4096}, v{T}
    v_and_b32 v{U+3}, 12, v{V_LANE}
    v_lshl_add_u32 v{U+2}, v{U+3}, 2, v{U+2}
    v_add_u32 v{U+2}, s{S_T2}, v{U+2}
    s_mov_b32 s{S_T2}, 0x1000
    s_waitcnt lgkmcnt(0)""")
    ZD=FF
    for j in range(7): A(f"v_mfma_f32_16x16x32_bf16 v[{ZD+4*j}:{ZD+4*j+3}], v[{BA}:{BA+3}], v[{TB+4*j}:{TB+4*j+3}], 0")
    A("s_nop 2")
    for j in range(7): A(f"v_permlane16_swap_b32 v{ZD+4*j}, v{ZD+4*j+1}\nv_permlane16_swap_b32 v{ZD+4*j+2}, v{ZD+4*j+3}")
    for j in range(7): A(f"v_permlane32_swap_b32 v{ZD+4*j}, v{ZD+4*j+2}")
    for j in range(7): A(f"v_mov_b32_dpp v{ZD+4*j+2}, v{ZD+4*j} quad_perm:[1,0,3,2] row_mask:0xf bank_mask:0xf\nv_mov_b32 v{ZD+4*j+1}, v{V_TAG}\nv_mov_b32 v{ZD+4*j+3}, v{V_TAG}")
    for j in range(7): A(f"v_cvt_pk_bf16_f32 v{ZD+4*j}, v{ZD+4*j}, v{ZD+4*j+2}")
    for j in range(7): A(f"v_mov_b32_dpp v{ZD+4*j+2}, v{ZD+4*j} quad_perm:[2,2,2,2] row_mask:0xf bank_mask:0xf")
    A("s_mov_b32 exec_lo, 0x11111111\ns_mov_b32 exec_hi, 0x11111111")
    for j in range(7):
        if not ABL&64 and not (ABL&128 and j>=3): A(f"global_store_dwordx4 v{U+2}, v[{ZD+4*j}:{ZD+4*j+3}], s[{P_WS}:{P_WS+1}] sc1")
        if j<6: A(f"v_add_u32 v{U+2}, s{S_T2}, v{U+2}")
    A(f"s_mov_b64 exec, -1\ns_branch {label}_ffn2x")
    def kscore(R, dst):
        for j in range(4):
            for t in range(8):
                if j==0: A(f"v_dot2_f32_bf16 v{XT+t}, v{R+4*t}, v{QW}, 0")
                else: A(f"v_dot2c_f32_bf16 v{XT+t}, v{R+4*t+j}, v{QW+j}")
        A("s_nop 2")
        for u in range(4): A(f"v_permlane16_swap_b32 v{XT+2*u}, v{XT+2*u+1}")
        for u in range(4): A(f"v_add_f32 v{XT+2*u}, v{XT+2*u}, v{XT+2*u+1}")
        y=[XT,XT+2,XT+4,XT+6]
        A(f"""s_nop 0
        v_add_f32_dpp v{y[0]}, v{y[0]}, v{y[0]} row_ror:8 row_mask:0xf bank_mask:0x3
        v_add_f32_dpp v{y[2]}, v{y[2]}, v{y[2]} row_ror:8 row_mask:0xf bank_mask:0x3
        v_add_f32_dpp v{y[0]}, v{y[1]}, v{y[1]} row_ror:8 row_mask:0xf bank_mask:0xc
        v_add_f32_dpp v{y[2]}, v{y[3]}, v{y[3]} row_ror:8 row_mask:0xf bank_mask:0xc
        s_nop 1
        v_add_f32_dpp v{y[0]}, v{y[0]}, v{y[0]} row_shl:4 row_mask:0xf bank_mask:0x5
        s_nop 0
        v_add_f32_dpp v{y[0]}, v{y[2]}, v{y[2]} row_shr:4 row_mask:0xf bank_mask:0xa
        s_nop 1
        v_add_f32_dpp v{y[0]}, v{y[0]}, v{y[0]} quad_perm:[1,0,3,2] row_mask:0xf bank_mask:0xf
        s_nop 1
        v_add_f32_dpp v{dst}, v{y[0]}, v{y[0]} quad_perm:[2,3,0,1] row_mask:0xf bank_mask:0xf""")
    def build_b(dst, src, k, mk):
        for j in range(4): A(f"v_and_b32_dpp v{dst+j}, v{src}, v{mk+j} row_newbcast:{k} row_mask:0xf bank_mask:0xf")
    def beta(t): return (t>>2) | (((t>>1)&1)<<1)
    def pv(R, pa, pb):
        build_b(BA, pa, 4*beta(0), MK)
        for t in range(8):
            cur = BA if t%2==0 else BB
            nxt = BB if t%2==0 else BA
            if t+1<8: build_b(nxt, pb if (t+1)&1 else pa, 4*beta(t+1), MK)
            else: A("s_nop 1")
            A(f"s_waitcnt lgkmcnt({7-t})")
            A(f"v_mfma_f32_16x16x32_bf16 v[{OA}:{OA+3}], v[{R+4*t}:{R+4*t+3}], v[{cur}:{cur+3}], v[{OA}:{OA+3}]")
    def scptr(ureg):
        A(f"s_lshl_b32 s{S_SC}, s{ureg}, 7\ns_add_u32 s{S_SC}, s{P_WS}, s{S_SC}\ns_addc_u32 s{S_SC+1}, s{P_WS+1}, 0")
    A(f"{label}_loop:")
    A(f"s_sub_u32 s{S_REM}, s{S_NU}, s{S_IT}")
    A(f"s_cmp_eq_u32 s{S_IT}, 3\ns_cbranch_scc1 {label}_xk")
    A(f"s_cmp_ge_u32 s{S_REM}, 2\ns_cbranch_scc1 {label}_wk24\ns_waitcnt vmcnt(8)\n{label}_wk24:\ns_waitcnt vmcnt(24)")
    A(f"""s_sub_u32 s{S_T}, s{S_IT}, {NSK}
    s_min_u32 s{S_T2}, s{S_T}, {NSK}
    s_and_b32 s{S_PH}, s{S_IT}, 1
    s_cmp_lt_u32 s{S_IT}, {2*NSK}
    s_cselect_b32 s{S_PH}, 1, s{S_PH}
    s_cmp_lt_u32 s{S_IT}, {NSK}
    s_cselect_b32 s{S_PH}, 0, s{S_PH}
    s_lshl_b32 s{S_T2}, s{S_T2}, 6
    v_add_u32 v{V_T+1}, s{S_T2}, v{V_SCL}
    v_add_u32 v{V_T}, s{S_RO}, v{V_LDSR}
    ds_read_b32 v{PUB}, v{V_T+1}""")
    for j in range(8): A(f"ds_read_b128 v[{KST+4*j}:{KST+4*j+3}], v{V_T} offset:{1024*j}")
    A(f"s_cmp_lg_u32 s{S_PH}, 0\ns_cbranch_scc1 {label}_v1")
    A(f"s_waitcnt lgkmcnt(0)\n{label}_k1:")
    kscore(KST, S1)
    A(f"s_cmp_eq_u32 s{S_IT}, 0\ns_cbranch_scc1 {label}_k2")
    A(f"s_cmp_eq_u32 s{S_IT}, 3\ns_cbranch_scc1 {label}_xv")
    A(f"s_branch {label}_sg2")
    A(f"""{label}_v1:
    s_waitcnt lgkmcnt(8)
    v_lshlrev_b32 v{S1}, 16, v{PUB}
    v_and_b32 v{S2}, 0xffff0000, v{PUB}
    v_mul_f32 v{S1}, s{S_C}, v{S1}
    v_mul_f32 v{S2}, s{S_C}, v{S2}
    v_max3_f32 v{XT+1}, v{S1}, v{S2}, s{S_M}
    s_nop 1
    v_max_f32_dpp v{XT+1}, v{XT+1}, v{XT+1} row_ror:4 row_mask:0xf bank_mask:0xf
    s_nop 1
    v_max_f32_dpp v{XT+1}, v{XT+1}, v{XT+1} row_ror:8 row_mask:0xf bank_mask:0xf
    s_nop 1
    v_max_f32_dpp v{XT+1}, v{XT+1}, v{XT+1} row_bcast:15 row_mask:0xa bank_mask:0xf
    s_nop 1
    v_max_f32_dpp v{XT+1}, v{XT+1}, v{XT+1} row_bcast:31 row_mask:0xc bank_mask:0xf
    s_nop 0
    v_readlane_b32 s{S_M}, v{XT+1}, 63
    s_nop 1
    v_subrev_f32 v{XT}, s{S_M}, v{S1}
    v_subrev_f32 v{XT+2}, s{S_M}, v{S2}
    v_subrev_f32 v{XT+1}, s{S_M}, v{VM}
    v_exp_f32 v{XT}, v{XT}
    v_exp_f32 v{XT+2}, v{XT+2}
    v_exp_f32 v{XT+1}, v{XT+1}
    v_mov_b32 v{VM}, s{S_M}
    v_cvt_pk_bf16_f32 v{PA}, v{XT}, v{XT}
    v_cvt_pk_bf16_f32 v{PA2}, v{XT+2}, v{XT+2}
    v_fma_f32 v{LA}, v{LA}, v{XT+1}, v{XT}
    v_mov_b32 v{PB}, v{PA}
    v_mov_b32 v{PB2}, v{PA2}
    v_add_f32 v{LA}, v{LA}, v{XT+2}""")
    for j in range(4): A(f"v_mul_f32 v{OA+j}, v{XT+1}, v{OA+j}")
    A(f"v_permlane16_swap_b32 v{PA}, v{PB}\nv_permlane16_swap_b32 v{PA2}, v{PB2}\ns_nop 0")
    pv(KST, PA, PB)
    A(f"{label}_sg2:")
    A(f"s_cmp_ge_u32 s{S_REM}, 2\ns_cbranch_scc1 {label}_wv16\ns_waitcnt vmcnt(0)\n{label}_wv16:\ns_waitcnt vmcnt(16)")
    A(f"v_add_u32 v{V_T}, s{S_RO}, v{V_LDSR}")
    for j in range(8): A(f"ds_read_b128 v[{VST+4*j}:{VST+4*j+3}], v{V_T} offset:{8192+1024*j}")
    if not ABL&1: A(f"s_cmp_lt_u32 s{S_IT}, 11\ns_cbranch_scc1 {label}_wold")
    A(f"{label}_woret:")
    A(f"s_cmp_lt_u32 s{S_REM}, 3\ns_cbranch_scc1 {label}_noiss")
    A(f"""s_cmp_ge_u32 s{S_TI}, {2*NSK}
    s_cbranch_scc1 {label}_dyn
    s_cmp_ge_u32 s{S_TI}, {NSK}
    s_cselect_b32 s{S_T}, {NSK}, 0
    s_cselect_b64 s[{S_SC}:{S_SC+1}], s[{P_V}:{P_V+1}], s[{P_K}:{P_K+1}]
    s_sub_u32 s{S_U}, s{S_TI}, s{S_T}
    s_lshl_b32 s{S_U}, s{S_U}, 4
    s_add_u32 s{S_U}, s{S_U}, s{S_WIH}
    s_cmp_eq_u32 s{S_TI}, {2*NSK-1}
    s_cbranch_scc1 {label}_claim
    s_branch {label}_noclaim
    {label}_dyn:
    s_mov_b64 s[{S_SC}:{S_SC+1}], s[{P_V}:{P_V+1}]
    s_and_b32 s{S_T}, s{S_TI}, 1
    s_cbranch_scc1 {label}_claim
    v_readfirstlane_b32 s{S_T}, v{V_CLM}
    s_mov_b64 s[{S_SC}:{S_SC+1}], s[{P_K}:{P_K+1}]
    s_lshr_b32 s{S_T2}, s{S_T}, 12
    s_and_b32 s{S_T}, s{S_T}, 0xfff
    s_cmp_lg_u32 s{S_T2}, s{S_TG}
    s_cselect_b32 s{S_T}, 0xfff, s{S_T}
    s_add_u32 s{S_U}, s{S_T}, {16*NSK}
    s_cmp_lt_u32 s{S_U}, 128
    s_cbranch_scc1 {label}_noclaim
    s_mov_b32 s{S_NU}, s{S_TI}
    s_branch {label}_noiss
    {label}_claim:
    s_mov_b64 exec, 1
    global_atomic_add v{V_CLM}, v{V_ZERO}, v{V_ONE}, s[{S_CNT}:{S_CNT+1}] sc0 sc1
    s_mov_b64 exec, -1
    {label}_noclaim:
    s_add_u32 s{S_TI}, s{S_TI}, 1""")
    setptr(False)
    dma(S_K, f"s_add_u32 m0, s{S_LB}, s{S_RO}")
    A(f"s_add_u32 m0, m0, 0x1000\ns_waitcnt lgkmcnt(0)")
    for j in range(8):
        vo = V_OFF if j<4 else V_OFF2
        if j==4: A("s_add_u32 m0, m0, 0x1000\ns_nop 0")
        A(f"global_load_lds_dwordx4 v{vo}, s[{S_V}:{S_V+1}] offset:{(j%4)*1024} {VF}")
    A(f"{label}_noiss:")
    A(f"s_xor_b32 s{S_RO}, s{S_RO}, 0x4000")
    if trace: A(f"s_memrealtime s[92:93]\ns_waitcnt lgkmcnt(0)\ns_mov_b32 m0, s{S_IT}\nv_writelane_b32 v253, s92, m0")
    A(f"s_cmp_lg_u32 s{S_PH}, 0\ns_cbranch_scc1 {label}_v2")
    A(f"s_waitcnt lgkmcnt(0)\n{label}_k2:")
    kscore(VST, S2)
    A(f"""s_min_u32 s{S_T2}, s{S_IT}, {NSK}
    s_lshl_b32 s{S_T2}, s{S_T2}, 6
    v_cvt_pk_bf16_f32 v{PUB}, v{S1}, v{S2}
    v_add_u32 v{V_T+1}, s{S_T2}, v{V_SCL}
    ds_write_b32 v{V_T+1}, v{PUB}
    s_branch {label}_next
    {label}_v2:""")
    pv(VST, PA2, PB2)
    A(f"{label}_next:")
    if stamps:
        for k in ((2,4,8,12) if stamps==1 else (1,)):
            A(f"s_cmp_lg_u32 s{S_IT}, {k}\ns_cbranch_scc1 {label}_st{k}")
            stamp()
            A(f"{label}_st{k}:")
    A(f"s_add_u32 s{S_IT}, s{S_IT}, 1")
    if NB==4: A(f"s_and_b32 s{S_T}, s{S_IT}, 0x13\ns_cbranch_scc0 {label}_bsw")
    A(f"""{label}_bswx:
    s_cmp_lt_u32 s{S_IT}, s{S_NU}
    s_cbranch_scc1 {label}_loop
    s_branch {label}_tail""")
    def lred():
        for k in (8,4): A(f"s_nop 1\nv_add_f32_dpp v{LA}, v{LA}, v{LA} row_ror:{k} row_mask:0xf bank_mask:0xf")
        A(f"s_nop 1\nv_add_f32_dpp v{LA}, v{LA}, v{LA} row_bcast:15 row_mask:0xa bank_mask:0xf")
        A(f"s_nop 1\nv_add_f32_dpp v{LA}, v{LA}, v{LA} row_bcast:31 row_mask:0xc bank_mask:0xf")
    if NB==4:
        A(f"{label}_bsw:\ns_cmp_gt_u32 s{S_IT}, 12\ns_cbranch_scc1 {label}_bswx")
        lred()
        for i in range(8): A(f"v_mov_b32 v{SV+i}, v{SV+4+i}")
        A(f"""v_cvt_pk_bf16_f32 v{SV+8}, v{OA}, v{OA+1}
        v_cvt_pk_bf16_f32 v{SV+9}, v{OA+2}, v{OA+3}
        v_mov_b32 v{SV+10}, v{LA}
        v_mov_b32 v{SV+11}, v{VM}
        v_mov_b32 v{LA}, 0
        v_mov_b32 v{VM}, {hex(NEG)}
        s_mov_b32 s{S_M}, {hex(NEG)}""")
        for j in range(4): A(f"v_mov_b32 v{OA+j}, 0")
        for i in range(4): A(f"v_mov_b32 v{QW+i}, v{QLs[1]+2*i}\nv_mov_b32 v{QLs[1]+2*i}, v{QLs[2]+2*i}\nv_mov_b32 v{QLs[2]+2*i}, v{QLs[3]+2*i}")
        A(f"s_branch {label}_bswx")
    A(f"{label}_wold:")
    its=[1,2,4,5,6,7,8,9,10]
    for st,itv in enumerate(its):
        if st<8: A(f"s_cmp_lg_u32 s{S_IT}, {itv}\ns_cbranch_scc1 {label}_wo{st+1}")
        if st>0:
            for j in range(7):
                r=((st-1)*7+j)*4
                A(f"ds_read_b64_tr_b16 a[{r}:{r+1}], v{V_TRA} offset:{32*j}\nds_read_b64_tr_b16 a[{r+2}:{r+3}], v{V_TRA} offset:{32*j+896}")
        if st<8:
            base=(128*(st&1)+32*(st>>1))*896
            A(f"s_add_u32 s{S_T2}, s{S_WOP}, {base}\ns_addc_u32 s{S_T3}, s{S_WOP+1}, 0\ns_branch {label}_woiss")
            A(f"{label}_wo{st+1}:")
        else: A(f"s_branch {label}_woret")
    assert S_T3==S_T2+1
    A(f"{label}_woiss:\ns_mov_b32 s{S_K}, s{S_T2}\ns_mov_b32 s{S_K+1}, s{S_T3}\ns_mov_b32 m0, s{S_STG}\ns_waitcnt lgkmcnt(0)")
    for i in range(7):
        A(f"global_load_lds_dwordx4 v{WA+i}, s[{S_K}:{S_K+1}] {WOF}")
        if i<6: A("s_add_u32 m0, m0, 0x400\ns_nop 0")
    A(f"s_branch {label}_woret")
    A(f"{label}_xk:")
    for i in range(32): A(f"v_mov_b32 v{KST+i}, v{KX+i}")
    A(f"s_branch {label}_k1")
    A(f"{label}_xv:\ns_waitcnt vmcnt(32)")
    for i in range(32): A(f"v_mov_b32 v{VST+i}, v{VX+i}")
    A(f"s_branch {label}_k2")
    A(f"{label}_tail:")
    stamp()
    lred()
    A(f"""v_cvt_pk_bf16_f32 v{OA}, v{OA}, v{OA+1}
    v_cvt_pk_bf16_f32 v{OA+1}, v{OA+2}, v{OA+3}
    s_lshl_b32 s{S_T}, s{S_W}, 3
    s_add_u32 s{S_T}, s{S_T}, {L_ML}
    v_mov_b32 v{T}, s{S_T}""")
    for b in range(NB-1): A(f"ds_write_b64 v{V_AW}, v[{SV+4*b}:{SV+4*b+1}] offset:{AROW*b}")
    A(f"ds_write_b64 v{V_AW}, v[{OA}:{OA+1}] offset:{AROW*(NB-1)}")
    A("s_mov_b32 exec_lo, 0\ns_mov_b32 exec_hi, 0x80000000")
    for b in range(NB-1): A(f"ds_write_b64 v{T}, v[{SV+4*b+2}:{SV+4*b+3}] offset:{32*b}")
    A(f"ds_write_b64 v{T}, v[{LA}:{LA+1}] offset:{32*(NB-1)}\ns_mov_b64 exec, -1")
    CZ=W1D; CF=W1D; CY=W1D+16; CML=U; CM=XT+2
    A(f"s_cmp_ge_u32 s2, {NCONS}\ns_cbranch_scc1 {label}_nocons0")
    def zloads():
        for k in range(4):
            if k==3: A("s_mov_b32 exec_hi, 0")
            A(f"global_load_dwordx4 v[{CZ+4*k}:{CZ+4*k+3}], v{V_OFF}, s[{S_Z}:{S_Z+1}] offset:{1024*k} sc1")
        A("s_mov_b64 exec, -1")
    for k in (12,14): A(f"v_mov_b32 v{CZ+k}, 0\nv_mov_b32 v{CZ+k+1}, v{V_TAG}")
    zloads()
    A(f"""global_load_ushort v{CX}, v{COUT}, s[{P_X}:{P_X+1}]
    global_load_ushort v{CB2}, v{CCOL}, s[{P_B2}:{P_B2+1}]
    {label}_nocons0:""")
    A(f"v_lshrrev_b32 v{T+2}, 4, v{V_LANE}" if NB==4 else f"v_mov_b32 v{T+2}, 0")
    A(f"""v_lshlrev_b32 v{T}, 5, v{T+2}
    v_add_u32 v{T}, {L_ML}, v{T}
    s_lshl_b32 s{S_T2}, s{S_PART}, 4
    s_add_u32 s{S_T2}, s{S_T2}, {MLOFF}
    v_lshlrev_b32 v{T+1}, 12, v{T+2}
    v_add_u32 v{T+1}, s{S_T2}, v{T+1}
    s_mov_b32 s{S_T2}, 0x4000""")
    if NB==1 and not MLR: A(f"s_lshl_b32 s{S_T3}, s{S_B}, 10\nv_add_u32 v{T+1}, s{S_T3}, v{T+1}")
    if MLR:
        assert NB==1
        A(f"s_mul_i32 s{S_T3}, s{S_B}, {7*1024}\nv_lshl_add_u32 v{T+1}, v{V_LANE}, 10, v{T+1}\nv_add_u32 v{T+1}, s{S_T3}, v{T+1}")
    ML=U; M=T+4; AF=KST; D=VST
    A(f"v_mov_b32 v{M+1}, v{V_TAG}\nv_mov_b32 v{M+3}, v{V_TAG}")
    A("s_waitcnt lgkmcnt(0)\ns_barrier")
    if stamps==1: stamp()
    A(f"ds_read_b128 v[{ML}:{ML+3}], v{T}\nds_read_b128 v[{ML+4}:{ML+7}], v{T} offset:16")
    for s_ in range(8): A(f"ds_read_b128 v[{AF+4*s_}:{AF+4*s_+3}], v{V_AR} offset:{64*s_}")
    A("s_waitcnt lgkmcnt(7)")
    def fact():
        r=[f"v_max3_f32 v{M}, v{ML+1}, v{ML+3}, v{ML+5}", f"v_max_f32 v{M}, v{M}, v{ML+7}"]
        r+=[f"v_sub_f32 v{ML+2*w+1}, v{ML+2*w+1}, v{M}" for w in range(4)]
        r+=[f"v_exp_f32 v{ML+2*w+1}, v{ML+2*w+1}" for w in range(4)]
        r+=[f"v_mul_f32 v{M+2}, v{ML}, v{ML+1}"]+[f"v_fmac_f32 v{M+2}, v{ML+2*w}, v{ML+2*w+1}" for w in range(1,4)]
        return r
    def post(j):
        d=D+4*j
        return [f"v_mul_f32 v{d}, v{d}, v{ML+1}", f"v_fmac_f32 v{d}, v{d+1}, v{ML+3}", f"v_fmac_f32 v{d}, v{d+2}, v{ML+5}", f"v_fmac_f32 v{d}, v{d+3}, v{ML+7}",
                f"v_mov_b32 v{d+1}, v{V_TAG}", f"v_mov_b32 v{d+3}, v{V_TAG}",
                f"v_mov_b32_dpp v{d+2}, v{d} quad_perm:[1,0,3,2] row_mask:0xf bank_mask:0xf",
                f"s_mov_b32 exec_lo, 0x55555555\ns_mov_b32 exec_hi, 0x55555555\nglobal_store_dwordx4 v{V_YA}, v[{d}:{d+3}], s[{P_WS}:{P_WS+1}] sc1\ns_mov_b64 exec, -1\nv_add_u32 v{V_YA}, s{S_T2}, v{V_YA}"]
    def post1(j):
        d=D+4*j; mr=YM+4*(j//4)
        r=[f"v_mul_f32 v{d}, v{d}, v{ML+1}", f"v_fmac_f32 v{d}, v{d+1}, v{ML+3}", f"v_fmac_f32 v{d}, v{d+2}, v{ML+5}", f"v_fmac_f32 v{d}, v{d+3}, v{ML+7}",
           "s_nop 1",
           f"v_mov_b32_dpp v{mr}, v{d} quad_perm:[0,1,2,3] row_mask:{hex(1<<(j&3))} bank_mask:0xf",
           f"v_mov_b32_dpp v{mr+2}, v{d} quad_perm:[1,0,3,2] row_mask:{hex(1<<(j&3))} bank_mask:0xf"]
        if j in (3,6):
            r.append(f"v_cvt_pk_bf16_f32 v{mr}, v{mr}, v{mr+2}\ns_mov_b32 vcc_lo, 0x11111111\ns_mov_b32 vcc_hi, {'0x11111111' if j==3 else '0x1111'}\nv_mov_b32_dpp v{mr+2}, v{mr} quad_perm:[2,2,2,2] row_mask:0xf bank_mask:0xf\ns_mov_b64 exec, vcc\nglobal_store_dwordx4 v{V_YA}, v[{mr}:{mr+3}], s[{P_WS}:{P_WS+1}] sc1\ns_mov_b64 exec, -1\nv_add_u32 v{V_YA}, s{S_T2}, v{V_YA}")
        return r
    YM=BA
    if NB==1:
        post=post1
    fill=fact()
    mlpub=f"""s_cmp_lg_u32 s{S_W}, 0
    s_cbranch_scc1 {label}_noml
    s_mov_b32 exec_lo, {'0x00010001' if NB==4 else ('0x7f' if MLR else '1')}
    s_mov_b32 exec_hi, {'0x00010001' if NB==4 else '0'}
    global_store_dwordx4 v{T+1}, v[{M}:{M+3}], s[{P_WS}:{P_WS+1}] sc1
    s_mov_b64 exec, -1
    {label}_noml:"""
    for j in range(7):
        if j==1: fill=[mlpub]+([f"v_mov_b32 v{YM+i}, v{V_TAG}" for i in (1,3,5,7)] if NB==1 else [])
        if j>=2: fill=post(j-2)
        for s_ in range(8):
            if j==0 and s_>0: A(f"s_waitcnt lgkmcnt({7-s_})")
            r=(s_*7+j)*4
            c = "0" if s_==0 else f"v[{D+4*j}:{D+4*j+3}]"
            A(f"v_mfma_f32_16x16x32_bf16 v[{D+4*j}:{D+4*j+3}], v[{AF+4*s_}:{AF+4*s_+3}], a[{r}:{r+3}], {c}")
            for _ in range(2 if j==0 else 1):
                if fill: A(fill.pop(0))
        assert not fill
    for ln in post(5): A(ln)
    if NB==1: A("s_nop 0")
    for ln in post(6): A(ln)
    A(f"{label}_fin:")
    if stamps!=2: stamp()
    A(f"s_cmp_ge_u32 s2, {NCONS}\ns_cbranch_scc1 {label}_done")
    def tagacc(dst, rs, first=True):
        for i,r in enumerate(rs):
            if first and i==0: A(f"v_xor_b32 v{dst}, v{r}, v{V_TAG}")
            else: A(f"v_bitop3_b32 v{dst}, v{dst}, v{r}, v{V_TAG} bitop3:0xf6")
    def test(dst, ok):
        A(f"""v_cmp_ne_u32 vcc, 0, v{dst}
        s_add_u32 s{S_SPIN}, s{S_SPIN}, 1
        s_cmp_gt_u32 s{S_SPIN}, {SPIN_MAX}
        s_cbranch_vccz {ok}
        s_cbranch_scc1 {ok}""")
    def yloads():
        for k in range(4*NB):
            A(f"global_load_dwordx4 v[{CY+4*k}:{CY+4*k+3}], v{[V_OFF,V_OFF2,T+2,T+3][k//4]}, s[{S_Y}:{S_Y+1}] offset:{1024*(k%4)} sc1")
    def mlload():
        for k in range(NB): A(f"global_load_dwordx4 v[{CML+4*k}:{CML+4*k+3}], v{CMA}, s[{P_WS}:{P_WS+1}] offset:{1024*k} sc1")
    def red4(c):
        A(f"""s_nop 1
        v_permlane32_swap_b32 v{c}, v{c+1}
        v_permlane32_swap_b32 v{c+2}, v{c+3}
        v_add_f32 v{c}, v{c}, v{c+1}
        v_add_f32 v{c+2}, v{c+2}, v{c+3}
        s_nop 1
        v_permlane16_swap_b32 v{c}, v{c+2}
        v_add_f32 v{c}, v{c}, v{c+2}
        s_nop 1
        v_add_f32_dpp v{c}, v{c}, v{c} row_ror:4 row_mask:0xf bank_mask:0xf
        s_nop 1
        v_add_f32_dpp v{c}, v{c}, v{c} row_ror:8 row_mask:0xf bank_mask:0xf""")
    mlload()
    A(f"s_waitcnt vmcnt({NB})")
    A(f"{label}_zchk:")
    tagacc(XT, [CZ+2*i+1 for i in range(8)])
    if ABL&(2|64|128): A(f"s_branch {label}_zok")
    test(XT, f"{label}_zok")
    zloads()
    A(f"s_waitcnt vmcnt(0)\ns_branch {label}_zchk\n{label}_zok:")
    for k in range(4):
        for h in range(2):
            r=CZ+4*k+2*h
            A(f"v_and_b32 v{r+1}, 0xffff0000, v{r}\nv_lshlrev_b32 v{r}, 16, v{r}")
    for j in range(4): A(f"v_add_f32 v{CZ+j}, v{CZ+j}, v{CZ+4+j}\nv_add_f32 v{CZ+8+j}, v{CZ+8+j}, v{CZ+12+j}")
    for j in range(4): A(f"v_add_f32 v{CZ+j}, v{CZ+j}, v{CZ+8+j}")
    red4(CZ)
    A(f"""v_lshlrev_b32 v{CX}, 16, v{CX}
    v_lshlrev_b32 v{CB2}, 16, v{CB2}
    v_cvt_pk_bf16_f32 v{CG}, v{CZ}, v{CZ}
    v_lshlrev_b32 v{CG}, 16, v{CG}
    v_add_f32 v{CG}, v{CG}, v{CB2}
    v_cvt_pk_bf16_f32 v{CG}, v{CG}, v{CG}
    v_lshlrev_b32 v{CG}, 16, v{CG}
    v_mul_f32 v{XT+5}, {hex(f2u(-LOG2E))}, v{CG}
    v_exp_f32 v{XT+5}, v{XT+5}
    s_nop 0
    v_add_f32 v{XT+5}, 1.0, v{XT+5}
    v_rcp_f32 v{XT+5}, v{XT+5}
    s_nop 0
    v_mul_f32 v{CG}, v{CG}, v{XT+5}
    v_cvt_pk_bf16_f32 v{CG}, v{CG}, v{CG}
    v_lshlrev_b32 v{CG}, 16, v{CG}""")
    if FP:
        assert NB==1
        SM=[64,66,68,70,72] if not stamps else [86,88,90,92,98]
        SM=[84,86,88,90,92]
        A(f"{label}_mlw:\ns_waitcnt vmcnt(0)")
        tagacc(XT, [CML+1, CML+3])
        A(f"""v_cmp_ne_u32 vcc, 0, v{XT}
        s_add_u32 s{S_SPIN}, s{S_SPIN}, 1
        s_cmp_gt_u32 s{S_SPIN}, {SPIN_MAX}
        s_cbranch_scc1 {label}_stb
        s_bcnt1_i32_b64 s{S_T}, vcc
        s_cmp_le_u32 s{S_T}, {FP}
        s_cbranch_scc1 {label}_stb""")
        mlload()
        A(f"s_branch {label}_mlw\n{label}_stb:\ns_mov_b32 s{S_T2}, 0")
        mlload(); yloads()
        A(f"s_waitcnt vmcnt(0)\n{label}_pl:")
        A(f"v_xor_b32 v{XT+4}, v{CML+1}, v{V_TAG}")
        for k in range(4): A(f"v_xor_b32 v{XT+k}, v{CY+4*k+1}, v{V_TAG}")
        A(f"v_bitop3_b32 v{XT+4}, v{XT+4}, v{CML+3}, v{V_TAG} bitop3:0xf6")
        for k in range(4): A(f"v_bitop3_b32 v{XT+k}, v{XT+k}, v{CY+4*k+3}, v{V_TAG} bitop3:0xf6")
        A(f"v_cmp_ne_u32 s[{SM[4]}:{SM[4]+1}], 0, v{XT+4}")
        for k in range(4): A(f"v_cmp_ne_u32 s[{SM[k]}:{SM[k]+1}], 0, v{XT+k}")
        A(f"""s_cmp_lg_u32 s{S_T2}, 0
        s_cbranch_scc1 {label}_hf
        s_cmp_lg_u64 s[{SM[4]}:{SM[4]+1}], 0
        s_cbranch_scc1 {label}_iss
        s_mov_b32 s{S_T2}, 1
        s_nop 7
        v_max_f32_dpp v{XT+5}, v{CML}, v{CML} quad_perm:[1,0,3,2] row_mask:0xf bank_mask:0xf
        s_nop 1
        v_max_f32_dpp v{XT+5}, v{XT+5}, v{XT+5} quad_perm:[2,3,0,1] row_mask:0xf bank_mask:0xf
        v_sub_f32 v{XT+5}, v{CML}, v{XT+5}
        v_exp_f32 v{XT+5}, v{XT+5}
        s_nop 0
        v_mul_f32 v{XT+6}, v{CML+2}, v{XT+5}
        s_nop 1
        v_add_f32_dpp v{XT+6}, v{XT+6}, v{XT+6} quad_perm:[1,0,3,2] row_mask:0xf bank_mask:0xf
        s_nop 1
        v_add_f32_dpp v{XT+6}, v{XT+6}, v{XT+6} quad_perm:[2,3,0,1] row_mask:0xf bank_mask:0xf
        v_rcp_f32 v{XT+6}, v{XT+6}
        s_nop 0
        v_mul_f32 v{XT+5}, v{XT+5}, v{XT+6}""")
        for k in range(4): A(f"ds_bpermute_b32 v{CF+k}, v{CBP}, v{XT+5} offset:{64*k}")
        A(f"""{label}_hf:
        s_or_b64 vcc, s[{SM[0]}:{SM[0]+1}], s[{SM[1]}:{SM[1]+1}]
        s_or_b64 vcc, vcc, s[{SM[2]}:{SM[2]+1}]
        s_or_b64 vcc, vcc, s[{SM[3]}:{SM[3]+1}]
        s_cbranch_scc0 {label}_yok
        {label}_iss:
        s_add_u32 s{S_SPIN}, s{S_SPIN}, 1
        s_cmp_gt_u32 s{S_SPIN}, {SPIN_MAX*8}
        s_cbranch_scc1 {label}_yok
        s_or_b64 exec, s[{SM[4]}:{SM[4]+1}], 1""")
        mlload()
        for k in range(4):
            A(f"s_or_b64 exec, s[{SM[k]}:{SM[k]+1}], 1\nglobal_load_dwordx4 v[{CY+4*k}:{CY+4*k+3}], v{V_OFF}, s[{S_Y}:{S_Y+1}] offset:{1024*k} sc1")
        A(f"s_mov_b64 exec, -1\ns_waitcnt vmcnt({5*(PD-1)})\ns_branch {label}_pl\n{label}_yok:\ns_nop 15\ns_waitcnt lgkmcnt(0)")
        for k in range(4):
            if k==0: A(f"v_mul_f32 v{XT}, v{CY}, v{CF}\nv_mul_f32 v{XT+2}, v{CY+2}, v{CF}")
            else: A(f"v_fmac_f32 v{XT}, v{CY+4*k}, v{CF+k}\nv_fmac_f32 v{XT+2}, v{CY+4*k+2}, v{CF+k}")
    else:
        if TH==0:
            A(f"{label}_mlw:\ns_waitcnt vmcnt(0)")
            tagacc(XT, [CML+2*i+1 for i in range(2*NB)])
            test(XT, f"{label}_mlok")
            mlload()
            A(f"s_branch {label}_mlw\n{label}_mlok:")
            yloads()
        else:
            A(f"{label}_mlw:\ns_waitcnt vmcnt(0)")
            tagacc(XT, [CML+2*i+1 for i in range(2*NB)])
            test(XT, f"{label}_mlok0")
            A(f"s_bcnt1_i32_b64 s{S_T}, vcc")
            mlload()
            A(f"s_cmp_gt_u32 s{S_T}, {TH}\ns_cbranch_scc1 {label}_mlw")
            A(f"{label}_mlw2:")
            yloads()
            A(f"s_waitcnt vmcnt({4*NB})")
            tagacc(XT, [CML+2*i+1 for i in range(2*NB)])
            test(XT, f"{label}_mlok")
            mlload()
            A(f"s_branch {label}_mlw2\n{label}_mlok0:")
            yloads()
            A(f"{label}_mlok:")
        if NB==4:
            for k in range(4): A(f"v_max_f32_dpp v{CML+4*k+1}, v{CML+4*k}, v{CML+4*k} row_ror:8 row_mask:0xf bank_mask:0xf")
            for r in (4,2,1):
                for k in range(4): A(f"v_max_f32_dpp v{CML+4*k+1}, v{CML+4*k+1}, v{CML+4*k+1} row_ror:{r} row_mask:0xf bank_mask:0xf")
            for k in range(4): A(f"v_sub_f32 v{CML+4*k}, v{CML+4*k}, v{CML+4*k+1}")
            for k in range(4): A(f"v_exp_f32 v{CML+4*k}, v{CML+4*k}")
            for k in range(4): A(f"v_mul_f32 v{CML+4*k+2}, v{CML+4*k+2}, v{CML+4*k}")
            for r in (8,4,2,1):
                for k in range(4): A(f"v_add_f32_dpp v{CML+4*k+2}, v{CML+4*k+2}, v{CML+4*k+2} row_ror:{r} row_mask:0xf bank_mask:0xf")
            for k in range(4): A(f"v_rcp_f32 v{CML+4*k+2}, v{CML+4*k+2}")
            for k in range(4): A(f"v_mul_f32 v{CML+4*k}, v{CML+4*k}, v{CML+4*k+2}")
            for k in range(16): A(f"ds_bpermute_b32 v{CF+k}, v{CBP}, v{CML+4*(k//4)} offset:{64*(k%4)}")
        else:
            A(f"""v_max_f32_dpp v{CML+1}, v{CML}, v{CML} quad_perm:[1,0,3,2] row_mask:0xf bank_mask:0xf
            s_nop 1
            v_max_f32_dpp v{CML+1}, v{CML+1}, v{CML+1} quad_perm:[2,3,0,1] row_mask:0xf bank_mask:0xf
            v_sub_f32 v{CML}, v{CML}, v{CML+1}
            v_exp_f32 v{CML}, v{CML}
            s_nop 0
            v_mul_f32 v{CML+2}, v{CML+2}, v{CML}
            s_nop 1
            v_add_f32_dpp v{CML+2}, v{CML+2}, v{CML+2} quad_perm:[1,0,3,2] row_mask:0xf bank_mask:0xf
            s_nop 1
            v_add_f32_dpp v{CML+2}, v{CML+2}, v{CML+2} quad_perm:[2,3,0,1] row_mask:0xf bank_mask:0xf
            v_rcp_f32 v{CML+2}, v{CML+2}
            s_nop 0
            v_mul_f32 v{CML}, v{CML}, v{CML+2}""")
            for k in range(4): A(f"ds_bpermute_b32 v{CF+k}, v{CBP}, v{CML} offset:{64*k}")
        A("s_waitcnt lgkmcnt(0)")
        A(f"{label}_yw:")
        for k in range(4*NB):
            A(f"s_waitcnt vmcnt({4*NB-1-k})")
            tagacc(XT+4, [CY+4*k+1, CY+4*k+3], first=(k==0))
            for h in range(2):
                r=CY+4*k+2*h
                A(f"v_and_b32 v{r+1}, 0xffff0000, v{r}\nv_lshlrev_b32 v{r}, 16, v{r}")
            for j in range(4): A(f"v_{'mul' if k==0 else 'fmac'}_f32 v{XT+j}, v{CY+4*k+j}, v{CF+k}")
        test(XT+4, f"{label}_yok")
        yloads()
        A(f"s_branch {label}_yw\n{label}_yok:")
    if stamps!=2: stamp()
    red4(XT)
    A(f"""v_cvt_pk_bf16_f32 v{XT}, v{XT}, v{XT}
    v_lshlrev_b32 v{XT}, 16, v{XT}
    v_mul_f32 v{XT}, v{XT}, v{CG}
    v_cvt_pk_bf16_f32 v{XT}, v{XT}, v{XT}
    v_lshlrev_b32 v{XT}, 16, v{XT}
    v_add_f32 v{XT}, v{XT}, v{CX}
    v_cvt_pk_bf16_f32 v{XT}, v{XT}, v{XT}
    s_mov_b32 exec_lo, 0x000f000f
    s_mov_b32 exec_hi, 0x000f000f
    global_store_short v{COUT}, v{XT}, s[{P_OUT}:{P_OUT+1}] {OF}
    s_mul_i32 s{S_T}, s{S_CB}, 28
    s_cmp_lg_u32 s{S_CG}, s{S_T}
    s_cbranch_scc1 {label}_done
    v_mov_b32 v{XT+1}, 64
    s_mov_b64 exec, 1
    global_atomic_add v{V_ZERO}, v{XT+1}, s[{P_WS}:{P_WS+1}] sc1""")
    A(f"{label}_done:")
    if trace:
        A(f"""s_mov_b64 exec, -1
        s_memrealtime s[92:93]
        s_waitcnt lgkmcnt(0)
        v_writelane_b32 v253, s90, 62
        v_writelane_b32 v253, s92, 63
        s_lshl_b32 s{S_T}, s2, 2
        s_add_u32 s{S_T}, s{S_T}, s{S_W}
        s_lshl_b32 s{S_T}, s{S_T}, 8
        s_add_u32 s{S_T}, s{S_T}, 0x10000000
        v_lshlrev_b32 v254, 2, v{V_LANE}
        v_add_u32 v254, s{S_T}, v254
        global_store_dword v254, v253, s[{P_WS}:{P_WS+1}]""")
    if DELAY:
        A(f"""s_cmp_lg_u32 s2, 0
        s_cbranch_scc1 {label}_end
        {label}_dl:
        s_memrealtime s[92:93]
        s_waitcnt lgkmcnt(0)
        s_sub_u32 s92, s92, s94
        s_cmp_lt_u32 s92, {DELAY}
        s_cbranch_scc1 {label}_dl""")
    if stamps:
        A("s_mov_b64 exec, -1")
        stamp()
        assert nst[0]<=15
        A(f"s_cmp_lg_u32 s{S_W}, {STW}\ns_cbranch_scc1 {label}_end")
        A(f"s_lshl_b32 s{S_T}, s2, 7\ns_add_u32 s{S_T}, s{S_T}, 0x10000000\ns_add_u32 s{P_WS}, s{P_WS}, s{S_T}\ns_addc_u32 s{P_WS+1}, s{P_WS+1}, 0")
        A("s_waitcnt lgkmcnt(0) vmcnt(0)\nv_mov_b32 v1, 0")
        for k in range(nst[0]):
            A(f"v_mov_b32 v{KST+2*k}, s{S_ST+2*k}\nv_mov_b32 v{KST+2*k+1}, s{S_ST+2*k+1}\nglobal_store_dwordx2 v1, v[{KST+2*k}:{KST+2*k+1}], s[{P_WS}:{P_WS+1}] offset:{8*k}")
        A(f"s_mul_i32 s{S_T}, s{S_NU}, 100\ns_add_u32 s{S_T}, s{S_T}, s{S_ST}\nv_mov_b32 v{KST+40}, s{S_T}\nv_mov_b32 v{KST+41}, s{S_ST+1}\nglobal_store_dwordx2 v1, v[{KST+40}:{KST+41}], s[{P_WS}:{P_WS+1}] offset:120")
        if stamps==1: A(f"s_getreg_b32 s{S_T}, hwreg(HW_REG_XCC_ID)\ns_and_b32 s{S_T}, s{S_T}, 15\ns_mul_i32 s{S_T}, s{S_T}, 100\ns_add_u32 s{S_T}, s{S_T}, s{S_ST}\nv_mov_b32 v{KST+44}, s{S_T}\nv_mov_b32 v{KST+45}, s{S_ST+1}\nglobal_store_dwordx2 v1, v[{KST+44}:{KST+45}], s[{P_WS}:{P_WS+1}] offset:112")
        A(f"v_mov_b32 v{KST+42}, s{S_SPIN}\ns_mov_b64 exec, 1\nglobal_atomic_add v1, v{KST+42}, s[{P_DBG}:{P_DBG+1}]")
    A(f"{label}_end:\ns_endpgm")
    return A.text()

def kdesc(label, vgpr, accum, sgpr):
    return f""".amdhsa_kernel {label}
  .amdhsa_next_free_vgpr {vgpr}
  .amdhsa_next_free_sgpr {sgpr}
  .amdhsa_accum_offset {accum}
  .amdhsa_group_segment_fixed_size 0
  .amdhsa_kernarg_size 104
  .amdhsa_user_sgpr_count 2
  .amdhsa_user_sgpr_kernarg_segment_ptr 1
  .amdhsa_system_sgpr_workgroup_id_x 1
  .amdhsa_float_denorm_mode_32 3
.end_amdhsa_kernel
"""
DOC=""";
;   * hand-offs between workgroups are 8-byte {data, tag} granules written / read with sc1; the tag comes
"""
def full(stamps=0, **kw):
    ref=open(f"cdna_kernels/{NAME}.s.ref").read().split("\n")
    hdr=[l for l in ref if l.startswith(";") and "@launch" not in l]
    main=NAME+"_kernel"
    t="\n".join(hdr)+"\n"
    t+=f"; @launch grid=(256,1,1) block=(256,1,1) lds={LDS_TOTAL}\n"
    t+=DOC+'.amdgcn_target "amdgcn-amd-amdhsa--gfx950"\n.text\n'
    t+=gen_main(main, stamps, **kw)
    t+='.section .rodata,"a"\n.p2align 6\n'+kdesc(main, 256+224, 256, 102)
    return t, [(main,256)]
def variant(name, **kw):
    t,ks=full(0, **kw)
    open(f"work/{name}.s","w").write(t)
    build(t,name,ks)
    t,ks=full(1, **kw); build(t,name+"_s",ks)
    t,ks=full(2, **kw); build(t,name+"_p",ks)
    t,ks=full(3, **kw); build(t,name+"_t",ks)
if __name__=="__main__":
    for p in range(28): assert (p*37)>>8 == p//7
    for p in range(448): assert (p*4682)>>16 == p//14
    if len(sys.argv)>1:
        for spec in sys.argv[1:]:
            nm,_,args=spec.partition(":")
            variant(nm,**eval("dict(%s)"%args))
    else:
        t,ks=full(0)
        open(f"cdna_kernels/{NAME}.s","w").write(t)
    print("LDS",LDS_TOTAL)
```

```python
import sys, struct
from asmlib import build
NAME="recurrent_scan__mha_block_cached__dense_activation_squared_relu__decode"
def f2u(x): return struct.unpack("<I", struct.pack("<f", x))[0]
LOG2E=1.4426950408889634
CSC=f2u(LOG2E/16.0)
NEG=0xff7fffff
class E:
    def __init__(s): s.o=[]
    def __call__(s, t):
        for ln in t.split("\n"):
            ln=ln.strip()
            if ln: s.o.append(("" if ln.endswith(":") or ln.startswith(";") else "    ")+ln)
    def text(s): return "\n".join(s.o)+"\n"

V_TID=0; V_LANE=1; V_OFF=2; V_OFF2=3
MK=4; QW=8; OA=12; LA=16; VM=17; PA=18; PB=19
SV=20
XT=32
BA=40; BB=44
KST=48; VST=80
W1D=112
KX=W1D; VX=W1D+32
WA=200
V_TRA=207
V_T=208
QALL=232
V_LDSR=232; V_QPA=233; V_B1=234; V_TAG=235; V_ZERO=236; V_CLM=237; V_ONE=238
V_AW=239; V_AR=240; V_YA=241; CMA=242; CBP=243; CCOL=244; COUT=245; CX=246; CB2=247; CG=248
PUB=20; SG=24; S1=28; S2=29; V_SCL=30; PA2=249; PB2=250; VU=251; V_SCA=252
QN=249
QNX=W1D+64
QPL=W1D+32+0
S_W=3; S_K=4; S_V=6; S_LB=8; S_RO=9; S_IT=10; S_M=11; S_T=12; S_H=13; S_B=14; S_SP=15
P_X=16;P_K=18;P_V=20;P_WQ=22;P_WO=24;P_W1=28;P_B1=30;P_W2=32;P_B2=34;P_OUT=36;P_DBG=38;P_WS=40
S_NU=42; S_FS=43; S_C=44; S_T2=45; S_T3=46; S_J=47; S_ROT=48; S_TAG=49; S_STG=50; S_PART=51; S_WOP=52; S_ROLE=54; S_U=55; S_SPIN=56; S_REM=57
S_CB=58; S_CG=59; S_Y=60; S_Z=62; S_CNT=26; S_TG=96; S_G=97; S_PH=98; S_NI=99; S_TI=22; S_NKI=23; S_WIH=100; S_NSX=28; S_SC=30
S_ST=64
STG=131072; STGW=7168
L_SM=STG+4*STGW
L_MS=L_SM; L_ML=L_SM+64; L_H=L_SM+256; HW=512
LDS_TOTAL=L_H+4*HW
AROW=528
QXOFF=0x1000; MLOFF=0x20000; CNTOFF=0x30000; ZOFF=0x100000; YOFF=0x200000; SCOFF=0x400000
NCONS=28
SPIN_MAX=1<<18

def gen_main(label, stamps=0, WF="nt", KF="nt", VF="nt", MAP=4, STW=0, QPRE=4, QSP=0, FSP=3, ROT=None, WOF='', DELAY=0, JORD=0, NB=1, NS=12, TH=0, OF='', ROTH=0, ABL=0, MO=1, ORD=1, MUL=1, FP=0, PD=8, MLR=1, NSK=7, SF='sc1', PFW=0):
    NSV=NSK
    assert NB==1 and KF==VF
    WPG=64 if NB==4 else 16
    POOL=256*NB-WPG*NS
    NP=64*NB
    YB=NP*64
    if ROT is None: ROT=2
    cnt=[0]
    A=E()
    nst=[0]
    trace = stamps==3
    if trace: stamps=0
    def stamp():
        if stamps:
            A(f"s_memrealtime s[{S_ST+2*nst[0]}:{S_ST+2*nst[0]+1}]"); nst[0]+=1
    def pstamp(k):
        if stamps==2:
            A(f"s_memrealtime s[{S_ST+2*k}:{S_ST+2*k+1}]"); nst[0]=max(nst[0],k+1)
    T=V_T; U=T+8
    A(f".globl {label}\n.p2align 8\n.type {label},@function\n{label}:")
    A(f"s_cmp_ge_u32 s2, 256\ns_cbranch_scc1 {label}_end")
    stamp()
    if trace: A("s_memrealtime s[90:91]\nv_mov_b32 v253, 0")
    if DELAY: A("s_memrealtime s[94:95]")
    A("s_load_dwordx16 s[16:31], s[0:1], 0\ns_load_dwordx2 s[40:41], s[0:1], 96\ns_load_dwordx8 s[32:39], s[0:1], 64")
    A(f"v_lshrrev_b32 v{XT}, 6, v0\nv_and_b32 v{V_LANE}, 63, v0\nv_lshlrev_b32 v{V_OFF}, 4, v{V_LANE}")
    A(f"v_readfirstlane_b32 s{S_W}, v{XT}")
    if MAP==0:
        A(f"""s_and_b32 s{S_H}, s2, 7
        s_lshl_b32 s{S_H}, s{S_H}, 1
        s_bfe_u32 s{S_T}, s2, 0x10003
        s_or_b32 s{S_H}, s{S_H}, s{S_T}
        s_bfe_u32 s{S_B}, s2, 0x20004
        s_lshr_b32 s{S_SP}, s2, 6""")
    elif MAP in (1,4):
        if MAP==1: A(f"s_bfe_u32 s{S_H}, s2, 0x20001\ns_mov_b32 s{S_T}, s2")
        else: A(f"""s_lshr_b32 s{S_T}, s2, 1
        s_xor_b32 s{S_H}, s2, s{S_T}
        s_and_b32 s{S_H}, s{S_H}, 1
        s_and_b32 s{S_B}, s{S_T}, 2
        s_or_b32 s{S_H}, s{S_H}, s{S_B}""")
        A(f"""s_lshl_b32 s{S_H}, s{S_H}, 2
        s_bfe_u32 s{S_B}, s2, 0x20003
        s_or_b32 s{S_H}, s{S_H}, s{S_B}
        s_bfe_u32 s{S_B}, s2, 0x20005
        s_lshr_b32 s{S_SP}, s2, 7
        s_lshl_b32 s{S_SP}, s{S_SP}, 1
        s_and_b32 s{S_T}, s{S_T}, 1
        s_or_b32 s{S_SP}, s{S_SP}, s{S_T}""")
    elif MAP==3:
        A(f"""s_bfe_u32 s{S_SP}, s2, 0x20001
        s_xor_b32 s{S_H}, s2, s{S_SP}
        s_and_b32 s{S_H}, s{S_H}, 1
        s_lshl_b32 s{S_H}, s{S_H}, 3
        s_bfe_u32 s{S_T}, s2, 0x30003
        s_or_b32 s{S_H}, s{S_H}, s{S_T}
        s_lshr_b32 s{S_B}, s2, 6""")
    A(f"v_add_u32 v{V_OFF2}, 0x1000, v{V_OFF}\nv_mov_b32 v{V_ZERO}, 0")
    if JORD==0: A(f"s_lshl_b32 s{S_J}, s{S_B}, 2\ns_add_u32 s{S_J}, s{S_J}, s{S_SP}")
    else: A(f"s_lshl_b32 s{S_J}, s{S_SP}, 2\ns_add_u32 s{S_J}, s{S_J}, s{S_B}")
    A(f"s_lshl_b32 s{S_G}, s{S_B}, 4\ns_add_u32 s{S_G}, s{S_G}, s{S_H}")
    if NB==4: A(f"s_mov_b32 s{S_G}, s{S_H}")
    else: A(f"s_mov_b32 s{S_J}, s{S_SP}")
    if JORD==2: A(f"s_lshl_b32 s{S_U}, s{S_W}, 2\ns_add_u32 s{S_U}, s{S_U}, s{S_J}")
    else: A(f"s_lshl_b32 s{S_U}, s{S_J}, 2\ns_add_u32 s{S_U}, s{S_U}, s{S_W}")
    A(f"s_mov_b32 s{S_WIH}, s{S_U}")
    if ORD==0: A(f"s_mul_i32 s{S_U}, s{S_U}, {NS}")
    if ORD==2: A(f"s_lshl_b32 s{S_U}, s{S_U}, 1")
    if ROTH: A(f"s_lshl_b32 s{S_ROT}, s{S_H}, 2\ns_add_u32 s{S_ROT}, s{S_ROT}, s{S_B}\ns_mul_i32 s{S_ROT}, s{S_ROT}, {ROT}")
    else: A(f"s_mul_i32 s{S_ROT}, s{S_G}, {ROT}")
    A(f"""s_lshl_b32 s{S_T}, s{S_G}, 21
    s_lshl_b32 s{S_LB}, s{S_W}, 15
    s_mul_i32 s{S_STG}, s{S_W}, {STGW}
    s_add_u32 s{S_STG}, s{S_STG}, {STG}
    s_lshl_b32 s{S_FS}, s{S_B}, 4
    s_add_u32 s{S_FS}, s{S_FS}, s{S_H}
    s_mov_b32 s{S_RO}, 0""")
    A(f"v_lshrrev_b32 v{T}, 4, v{V_LANE}\nv_and_b32 v{T+1}, 15, v{V_LANE}")
    def kvbase():
        A(f"""s_load_dword s{S_TAG}, s[{P_WS}:{P_WS+1}], 0
        s_add_u32 s{P_K}, s{P_K}, s{S_T}
        s_addc_u32 s{P_K+1}, s{P_K+1}, 0
        s_add_u32 s{P_V}, s{P_V}, s{S_T}
        s_addc_u32 s{P_V+1}, s{P_V+1}, 0""")
    def setptr(adv=True):
        A(f"""s_add_u32 s{S_V}, s{S_U}, s{S_ROT}
        s_and_b32 s{S_V}, s{S_V}, 0x7f
        s_lshl_b32 s{S_V}, s{S_V}, 14
        s_add_u32 s{S_K}, s{P_K if adv else S_SC}, s{S_V}
        s_addc_u32 s{S_K+1}, s{(P_K if adv else S_SC)+1}, 0
        s_add_u32 s{S_V}, s{S_K}, 0x2000
        s_addc_u32 s{S_V+1}, s{S_K+1}, 0""")
        if adv: A(f"s_add_u32 s{S_U}, s{S_U}, 16")
    def direct(reg, sb, js=range(8)):
        for j in js:
            vo = V_OFF if j<4 else V_OFF2
            A(f"global_load_dwordx4 v[{reg+4*j}:{reg+4*j+3}], v{vo}, s[{sb}:{sb+1}] offset:{(j%4)*1024} {KF if sb==S_K else VF}")
    def dma(sb, m0src):
        A(m0src+"\ns_nop 0")
        for j in range(8):
            vo = V_OFF if j<4 else V_OFF2
            if j==4: A("s_add_u32 m0, m0, 0x1000\ns_nop 0")
            A(f"global_load_lds_dwordx4 v{vo}, s[{sb}:{sb+1}] offset:{(j%4)*1024} {KF if sb==S_K else VF}")
    QL=V_T-0
    QL=W1D+64-8
    XA=W1D; XS=W1D+14; TB=W1D+28; F=VST
    S=U+4; MEAN=S+4; RD=S+5
    A(f"""s_cmp_eq_u32 s{S_SP}, {QSP}
    s_cselect_b32 s{S_ROLE}, 1, 0
    s_cmp_lg_u32 s{S_SP}, {FSP}
    s_cbranch_scc1 {label}_rset
    s_cmp_lt_u32 s{S_FS}, {0 if ABL&2 else 56}
    s_cselect_b32 s{S_ROLE}, 2, 0
    {label}_rset:
    s_cmp_lg_u32 s{S_ROLE}, 0
    s_cbranch_scc1 {label}_role
    s_waitcnt lgkmcnt(0)""")
    pstamp(1)
    kvbase(); setptr()
    if PFW!=2: direct(KST,S_K)
    if PFW:
        assert (QSP,FSP)==(0,3)
        A(f"""s_cmp_eq_u32 s{S_SP}, 3
        s_cbranch_scc1 {label}_nopf
        s_lshl_b32 s{S_T2}, s{S_G}, 3
        s_add_u32 s{S_T2}, s{S_T2}, s{S_WIH}
        s_sub_u32 s{S_T2}, s{S_T2}, 4
        s_mul_i32 s{S_T2}, s{S_T2}, 7168
        v_add_u32 v{T+2}, s{S_T2}, v{V_OFF}
        v_add_u32 v{T+3}, s{S_T2}, v{V_OFF2}""")
        for i in range(7): A(f"global_load_dwordx4 v[{VX+4*i}:{VX+4*i+3}], v{T+2 if i<4 else T+3}, s[{P_WO}:{P_WO+1}] offset:{1024*(i%4)}")
        A(f"{label}_nopf:")
    if PFW==2: direct(KST,S_K)
    A(f"s_branch {label}_stream0")
    A(f"{label}_role:")
    A(f"v_mul_u32_u24 v{T+2}, 896, v{T}\nv_mul_u32_u24 v{T+3}, 56, v{T+1}\nv_add_u32 v{T+2}, v{T+2}, v{T+3}")
    A(f"""s_mul_i32 s{S_T2}, s{S_W}, 224
    v_and_b32 v{T+6}, 3, v{V_LANE}
    v_mul_u32_u24 v{T+3}, 896, v{T+6}
    v_lshl_add_u32 v{T+3}, v{T}, 3, v{T+3}
    v_add_u32 v{T+3}, s{S_T2}, v{T+3}
    v_lshlrev_b32 v{T+6}, 6, v{T+6}
    s_add_u32 m0, s{S_LB}, 0x4000""")
    def xloads():
        for i in range(3): A(f"global_load_dwordx4 v[{XS+4*i}:{XS+4*i+3}], v{T+2}, s[{P_X}:{P_X+1}] offset:{16*i}")
        A(f"global_load_dwordx2 v[{XS+12}:{XS+13}], v{T+2}, s[{P_X}:{P_X+1}] offset:48")
        for i in range(7): A(f"global_load_dwordx2 v[{XA+2*i}:{XA+2*i+1}], v{T+3}, s[{P_X}:{P_X+1}] offset:{32*i}")
    def rsum(r):
        for k in (8,4,2,1): A(f"s_nop 1\nv_add_f32_dpp v{r}, v{r}, v{r} row_ror:{k} row_mask:0xf bank_mask:0xf")
    def stats(nyounger, FF):
        A(f"s_waitcnt vmcnt({nyounger})")
        for i in range(14): A(f"v_lshlrev_b32 v{FF+2*i}, 16, v{XS+i}\nv_and_b32 v{FF+2*i+1}, 0xffff0000, v{XS+i}")
        A(f"v_add_f32 v{S}, v{FF}, v{FF+1}\nv_add_f32 v{S+1}, v{FF+2}, v{FF+3}")
        for i in range(4,28,2): A(f"v_add_f32 v{S}, v{S}, v{FF+i}\nv_add_f32 v{S+1}, v{S+1}, v{FF+i+1}")
        A(f"v_add_f32 v{S}, v{S}, v{S+1}")
        rsum(S)
        A(f"v_mul_f32 v{S}, {hex(f2u(1.0/448))}, v{S}")
        for i in range(28): A(f"v_sub_f32 v{FF+i}, v{FF+i}, v{S}")
        A(f"v_mul_f32 v{S+1}, v{FF}, v{FF}\nv_mul_f32 v{S+2}, v{FF+1}, v{FF+1}")
        for i in range(2,28,2): A(f"v_fmac_f32 v{S+1}, v{FF+i}, v{FF+i}\nv_fmac_f32 v{S+2}, v{FF+i+1}, v{FF+i+1}")
        A(f"v_add_f32 v{S+1}, v{S+1}, v{S+2}")
        rsum(S+1)
        A(f"""v_mul_f32 v{S+1}, {hex(f2u(1.0/448))}, v{S+1}
        v_cvt_pk_bf16_f32 v{S+1}, v{S+1}, v{S}
        v_and_b32 v{MEAN}, 0xffff0000, v{S+1}
        v_lshlrev_b32 v{S+1}, 16, v{S+1}
        v_add_f32 v{S+1}, {hex(f2u(1e-5))}, v{S+1}
        v_cvt_pk_bf16_f32 v{S+1}, v{S+1}, v{S+1}
        v_lshlrev_b32 v{S+1}, 16, v{S+1}
        v_sqrt_f32 v{S+1}, v{S+1}
        s_nop 0
        v_cvt_pk_bf16_f32 v{S+1}, v{S+1}, v{S+1}
        v_lshlrev_b32 v{S+1}, 16, v{S+1}
        v_rcp_f32 v{RD}, v{S+1}
        ds_bpermute_b32 v{MEAN}, v{T+6}, v{MEAN}
        ds_bpermute_b32 v{RD}, v{T+6}, v{RD}
        s_waitcnt vmcnt({nyounger-7})""")
        for i in range(14): A(f"v_lshlrev_b32 v{FF+2*i}, 16, v{XA+i}\nv_and_b32 v{FF+2*i+1}, 0xffff0000, v{XA+i}")
        A("s_waitcnt lgkmcnt(0)")
        for i in range(28): A(f"v_sub_f32 v{FF+i}, v{FF+i}, v{MEAN}")
        for i in range(14): A(f"v_cvt_pk_bf16_f32 v{XA+i}, v{FF+2*i}, v{FF+2*i+1}")
        for i in range(14): A(f"v_lshlrev_b32 v{FF+2*i}, 16, v{XA+i}\nv_and_b32 v{FF+2*i+1}, 0xffff0000, v{XA+i}")
        for i in range(28): A(f"v_mul_f32 v{FF+i}, v{FF+i}, v{RD}")
        for i in range(14): A(f"v_cvt_pk_bf16_f32 v{XA+i}, v{FF+2*i}, v{FF+2*i+1}")
    def mktag(dst): A(f"s_lshr_b32 s{dst}, s{S_TAG}, 8\ns_add_u32 s{dst}, s{dst}, 1\ns_or_b32 s{dst}, s{dst}, 0x80000000")
    A(f"s_cmp_eq_u32 s{S_ROLE}, 2\ns_cbranch_scc1 {label}_ffn")
    A(f"""s_mul_i32 s{S_T2}, s{S_W}, {112*8192}
    s_lshl_b32 s{S_T3}, s{S_H}, 9
    s_add_u32 s{S_T2}, s{S_T2}, s{S_T3}
    s_lshl_b32 s{S_T3}, s{S_B}, 7
    s_add_u32 s{S_T2}, s{S_T2}, s{S_T3}
    v_lshrrev_b32 v{T+4}, 3, v{V_LANE}
    v_lshlrev_b32 v{T+4}, 13, v{T+4}
    v_and_b32 v{T+5}, 7, v{V_LANE}
    v_lshl_add_u32 v{T+4}, v{T+5}, 4, v{T+4}
    v_add_u32 v{T+4}, s{S_T2}, v{T+4}
    s_mov_b32 s{S_T2}, 0x10000
    v_lshrrev_b32 v{T+5}, 2, v{V_LANE}
    v_lshlrev_b32 v{T+5}, 7, v{T+5}
    v_and_b32 v{U+3}, 3, v{V_LANE}
    v_lshl_add_u32 v{T+5}, v{U+3}, 3, v{T+5}
    s_add_u32 s{S_T3}, s{S_LB}, 0x4000
    v_add_u32 v{T+5}, s{S_T3}, v{T+5}
    s_waitcnt lgkmcnt(0)""")
    pstamp(1)
    xloads()
    for i in range(14):
        if ABL&4: A(f"global_load_lds_dwordx4 v{V_OFF}, s[{P_WQ}:{P_WQ+1}]")
        else: A(f"global_load_lds_dwordx4 v{T+4}, s[{P_WQ}:{P_WQ+1}] {WF}")
        if i<13: A(f"s_add_u32 m0, m0, 0x400\nv_add_u32 v{T+4}, s{S_T2}, v{T+4}")
    kvbase(); setptr()
    direct(KST,S_K,range(QPRE))
    A(f"""v_add_u32 v{U}, s{S_STG}, v{V_OFF}
    s_lshl_b32 s{S_T2}, s{S_W}, 9
    s_add_u32 s{S_T2}, s{S_T2}, {STG}
    v_lshlrev_b32 v{U+2}, 4, v{T+1}
    v_add_u32 v{U+2}, s{S_T2}, v{U+2}
    v_lshl_add_u32 v{U+1}, v{T}, 2, v{U+2}
    s_lshl_b32 s{S_T2}, s{S_H}, 12
    s_lshl_b32 s{S_T3}, s{S_B}, 8
    s_add_u32 s{S_T2}, s{S_T2}, s{S_T3}
    s_lshl_b32 s{S_T3}, s{S_W}, 6
    s_add_u32 s{S_T2}, s{S_T2}, s{S_T3}
    s_add_u32 s{S_T2}, s{S_T2}, {QXOFF}
    v_lshlrev_b32 v{T+2}, 10, v{T}
    v_lshl_add_u32 v{T+2}, v{T+1}, 2, v{T+2}
    v_add_u32 v{T+2}, s{S_T2}, v{T+2}
    s_lshl_b32 s{S_T2}, s{S_G}, 8
    s_add_u32 s{S_T2}, s{S_T2}, {CNTOFF}
    v_mov_b32 v{T+4}, s{S_T2}""")
    pstamp(2)
    stats(7+14+QPRE, F)
    A(f"s_waitcnt vmcnt({QPRE})")
    pstamp(3)
    QD=F
    for i in range(7):
        for k in range(4): A(f"ds_read_b64_tr_b16 v[{TB+8*i+2*k}:{TB+8*i+2*k+1}], v{T+5} offset:{2048*i+32*k}")
    for i in range(7):
        A(f"s_waitcnt lgkmcnt({min(15,4*(6-i))})")
        for k in range(4):
            c = "0" if i==0 else f"v[{QD+4*k}:{QD+4*k+3}]"
            A(f"v_mfma_f32_16x16x16_bf16 v[{QD+4*k}:{QD+4*k+3}], v[{XA+2*i}:{XA+2*i+1}], v[{TB+8*i+2*k}:{TB+8*i+2*k+1}], {c}")
    A("s_mov_b64 exec, 0xffff\ns_nop 3")
    for k in range(4): A(f"ds_write_b128 v{U}, v[{QD+4*k}:{QD+4*k+3}] offset:{512*k}")
    A("s_mov_b64 exec, -1\ns_waitcnt lgkmcnt(0)\ns_barrier")
    for w in range(4): A(f"ds_read_b32 v{XT+w}, v{U+1} offset:{STGW*w}")
    mktag(S_T2)
    A(f"""v_mov_b32 v{U+3}, s{S_T2}
    s_or_b32 s{S_T3}, s{S_W}, s{S_B if NB==4 else S_W}
    s_waitcnt lgkmcnt(0)
    v_add_f32 v{XT}, v{XT}, v{XT+1}
    v_add_f32 v{XT+2}, v{XT+2}, v{XT+3}
    v_add_f32 v{XT}, v{XT}, v{XT+2}
    v_mov_b32 v{XT+3}, v{U+3}
    v_lshlrev_b32 v{XT+4}, 12, v{U+3}
    v_mov_b32_dpp v{XT+1}, v{XT} quad_perm:[1,0,3,2] row_mask:0xf bank_mask:0xf
    v_cvt_pk_bf16_f32 v{XT+2}, v{XT}, v{XT+1}
    s_mov_b32 exec_lo, 0x55555555
    s_mov_b32 exec_hi, 0x55555555
    global_store_dwordx2 v{T+2}, v[{XT+2}:{XT+3}], s[{P_WS}:{P_WS+1}] sc1
    s_mov_b64 exec, 1
    s_cmp_lg_u32 s{S_T3}, 0
    s_cbranch_scc1 {label}_noinit
    global_store_dword v{T+4}, v{XT+4}, s[{P_WS}:{P_WS+1}] sc1
    s_cmp_lg_u32 s{S_FS}, 0
    s_cbranch_scc1 {label}_noinit
    v_mov_b32 v{XT+5}, 0xffffff00
    global_atomic_and v{V_ZERO}, v{XT+5}, s[{P_WS}:{P_WS+1}] sc1
    {label}_noinit:
    s_mov_b64 exec, -1""")
    stamp()
    direct(KST,S_K,range(QPRE,8))
    A(f"s_branch {label}_stream0")
    A(f"{label}_ffn:")
    A(f"""s_mul_i32 s{S_T2}, s{S_W}, {112*3584}
    s_lshl_b32 s{S_T3}, s{S_FS}, 6
    s_add_u32 s{S_T2}, s{S_T2}, s{S_T3}
    v_lshrrev_b32 v{T+4}, 2, v{V_LANE}
    v_mul_u32_u24 v{T+4}, 3584, v{T+4}
    v_and_b32 v{T+5}, 3, v{V_LANE}
    v_lshl_add_u32 v{T+4}, v{T+5}, 4, v{T+4}
    v_add_u32 v{T+4}, s{S_T2}, v{T+4}
    s_mul_i32 s{S_T2}, s{S_FS}, {32*896}
    s_mul_i32 s{S_T3}, s{S_W}, 224
    s_add_u32 s{S_T2}, s{S_T2}, s{S_T3}""")
    for i in range(7):
        A(f"""v_add_u32 v{TB+i}, {64*i}, v{V_LANE}
        v_mul_u32_u24 v{U}, 4682, v{TB+i}
        v_lshrrev_b32 v{U}, 16, v{U}
        v_mul_u32_u24 v{U}, 672, v{U}
        v_lshl_add_u32 v{TB+i}, v{TB+i}, 4, v{U}
        v_add_u32 v{TB+i}, s{S_T2}, v{TB+i}""")
    A(f"""s_mov_b32 s{S_T2}, {16*3584}
    s_lshl_b32 s{S_T3}, s{S_FS}, 6
    v_lshlrev_b32 v{T+7}, 2, v{T+1}
    v_add_u32 v{T+7}, s{S_T3}, v{T+7}
    s_waitcnt lgkmcnt(0)""")
    kvbase(); setptr()
    direct(KST,S_K)
    xloads()
    for i in range(7):
        A(f"global_load_lds_dwordx4 v{TB+i}, s[{P_W2}:{P_W2+1}] {WF}\ns_add_u32 m0, m0, 0x400\ns_nop 0")
    A(f"s_add_u32 m0, s{S_LB}, 0x6000\ns_nop 0")
    for i in range(7):
        A(f"global_load_lds_dwordx4 v{T+4}, s[{P_W1}:{P_W1+1}] {WF}")
        if i<6: A(f"s_add_u32 m0, m0, 0x400\nv_add_u32 v{T+4}, s{S_T2}, v{T+4}")
    A(f"global_load_dword v{V_B1}, v{T+7}, s[{P_B1}:{P_B1+1}]")
    A(f"{label}_stream0:")
    direct(VST,S_V)
    setptr()
    pstamp(5)
    A(f"s_lshl_b32 s{S_T3}, s{S_H}, 12\ns_add_u32 s{S_T3}, s{S_T3}, {QXOFF}\nv_and_b32 v{V_QPA}, 31, v{V_LANE}\nv_lshlrev_b32 v{V_QPA}, 5, v{V_QPA}\nv_add_u32 v{V_QPA}, s{S_T3}, v{V_QPA}")
    if NB==1: A(f"s_lshl_b32 s{S_T3}, s{S_B}, 10\nv_add_u32 v{V_QPA}, s{S_T3}, v{V_QPA}")
    A(f"s_lshl_b32 s{S_T2}, s{S_G}, 8\ns_add_u32 s{S_T2}, s{S_T2}, {CNTOFF}\ns_add_u32 s{S_CNT}, s{P_WS}, s{S_T2}\ns_addc_u32 s{S_CNT+1}, s{P_WS+1}, 0\nv_mov_b32 v{V_ONE}, 1")
    A(f"""v_and_b32 v{U}, 1, v{V_LANE}
    v_mov_b32 v{U+1}, 0xffff
    v_lshlrev_b32 v{U}, 4, v{U}
    v_lshlrev_b32 v{U+1}, v{U}, v{U+1}
    v_lshrrev_b32 v{U+3}, 1, v{V_LANE}
    v_xor_b32 v{U+3}, v{U+3}, v{V_LANE}
    v_and_b32 v{U+3}, 8, v{U+3}
    v_bfe_u32 v{U+2}, v{V_LANE}, 1, 2
    v_or_b32 v{U+2}, v{U+2}, v{U+3}""")
    for j in range(4):
        A(f"v_cmp_eq_u32 vcc, {j}, v{U+2}\ns_nop 1\nv_cndmask_b32 v{MK+j}, 0, v{U+1}, vcc")
    A(f"v_add_u32 v{V_LDSR}, s{S_LB}, v{V_OFF}")
    A(f"v_mov_b32 v{LA}, 0\nv_mov_b32 v{VM}, {hex(NEG)}\ns_mov_b32 s{S_M}, {hex(NEG)}\ns_mov_b32 s{S_C}, {hex(CSC)}")
    for j in range(4): A(f"v_mov_b32 v{OA+j}, 0")
    A(f"s_mov_b32 s{S_IT}, 0\ns_mov_b32 s{S_NU}, 0x7fff\ns_mov_b32 s{S_SPIN}, 0\ns_waitcnt lgkmcnt(0)")
    mktag(S_TAG)
    A(f"v_mov_b32 v{V_TAG}, s{S_TAG}\ns_and_b32 s{S_TG}, s{S_TAG}, 0xfffff")
    dma(S_K, f"s_mov_b32 m0, s{S_LB}")
    pstamp(6)
    for i in range(7):
        A(f"""v_add_u32 v{WA+i}, {64*i}, v{V_LANE}
        v_mul_u32_u24 v{U}, 4682, v{WA+i}
        v_lshrrev_b32 v{U}, 16, v{U}
        v_mul_u32_u24 v{U+1}, 14, v{U}
        v_sub_u32 v{WA+i}, v{WA+i}, v{U+1}
        v_and_b32 v{U+1}, 3, v{U}
        v_lshrrev_b32 v{U}, 2, v{U}
        v_lshl_add_u32 v{U}, v{U+1}, 3, v{U}
        v_mul_u32_u24 v{U}, 896, v{U}
        v_lshl_add_u32 v{WA+i}, v{WA+i}, 4, v{U}""")
    A(f"""s_mul_i32 s{S_T}, s{S_H}, {256*896}
    s_mul_i32 s{S_T3}, s{S_W}, 224
    s_add_u32 s{S_T}, s{S_T}, s{S_T3}
    s_add_u32 s{S_WOP}, s{P_WO}, s{S_T}
    s_addc_u32 s{S_WOP+1}, s{P_WO+1}, 0
    s_lshl_b32 s{S_PART}, s{S_H}, {4 if NB==4 else 2}
    s_add_u32 s{S_PART}, s{S_PART}, s{S_J}""")
    dma(S_V, f"s_add_u32 m0, s{S_LB}, 0x2000")
    setptr()
    pstamp(7)
    A(f"s_cmp_eq_u32 s{S_ROLE}, 2\ns_cbranch_scc1 {label}_ffn2\n{label}_ffn2x:")
    dma(S_K, f"s_add_u32 m0, s{S_LB}, 0x4000")
    pstamp(8)
    A(f"""v_bfe_u32 v{V_TRA}, v{V_LANE}, 2, 2
    v_lshl_add_u32 v{V_TRA}, v{T}, 3, v{V_TRA}
    v_mul_u32_u24 v{V_TRA}, 224, v{V_TRA}
    v_and_b32 v{U}, 3, v{V_LANE}
    v_lshl_add_u32 v{V_TRA}, v{U}, 3, v{V_TRA}
    v_add_u32 v{V_TRA}, s{S_STG}, v{V_TRA}
    v_lshlrev_b32 v{V_AW}, 3, v{V_LANE}
    v_add_u32 v{V_AW}, s{S_STG}, v{V_AW}
    v_mul_u32_u24 v{V_AR}, {STGW}, v{U}
    v_bfe_u32 v{U+1}, v{V_LANE}, 2, 2
    v_mul_u32_u24 v{U+1}, {AROW if NB==4 else 0}, v{U+1}
    v_add_u32 v{V_AR}, v{V_AR}, v{U+1}
    v_lshl_add_u32 v{V_AR}, v{T}, 4, v{V_AR}
    v_add_u32 v{V_AR}, {STG}, v{V_AR}""")
    A(f"""s_mul_i32 s{S_T}, s{S_W}, {7*4096}
    s_lshl_b32 s{S_T3}, s{S_PART}, 6
    s_add_u32 s{S_T}, s{S_T}, s{S_T3}
    s_mul_i32 s{S_T3}, s{S_B}, {28*4096}
    s_add_u32 s{S_T}, s{S_T}, s{S_T3}
    s_add_u32 s{S_T}, s{S_T}, {YOFF}
    v_lshlrev_b32 v{V_YA}, 12, v{T}
    v_and_b32 v{U}, 12, v{V_LANE}
    v_lshl_add_u32 v{V_YA}, v{U}, 2, v{V_YA}
    v_add_u32 v{V_YA}, s{S_T}, v{V_YA}""")
    dma(S_V, f"s_add_u32 m0, s{S_LB}, 0x6000")
    setptr()
    A(f"""s_mul_i32 s{S_CB}, s2, 37
    s_lshr_b32 s{S_CB}, s{S_CB}, 8
    s_lshl_b32 s{S_CG}, s2, 2
    s_add_u32 s{S_CG}, s{S_CG}, s{S_W}
    s_lshl_b32 s{S_T}, s{S_CG}, {14 if NB==4 else 12}
    s_add_u32 s{S_T3}, s{S_T}, {YOFF}
    s_add_u32 s{S_Y}, s{P_WS}, s{S_T3}
    s_addc_u32 s{S_Y+1}, s{P_WS+1}, 0
    s_lshl_b32 s{S_T}, s{S_CG}, 12
    s_add_u32 s{S_T3}, s{S_T}, {ZOFF}
    s_add_u32 s{S_Z}, s{P_WS}, s{S_T3}
    s_addc_u32 s{S_Z+1}, s{P_WS+1}, 0
    s_lshl_b32 s{S_T}, s{2 if MLR else S_CB}, {12 if NB==4 else 10}
    s_add_u32 s{S_T}, s{S_T}, {MLOFF}
    v_add_u32 v{CMA}, s{S_T}, v{V_OFF}
    v_and_b32 v{COUT}, 3, v{V_LANE}
    v_lshlrev_b32 v{COUT}, 3, v{COUT}
    v_lshrrev_b32 v{CCOL}, 5, v{V_LANE}
    v_lshl_add_u32 v{COUT}, v{CCOL}, 1, v{COUT}
    v_bfe_u32 v{CCOL}, v{V_LANE}, 4, 1
    v_lshl_add_u32 v{COUT}, v{CCOL}, 2, v{COUT}
    s_lshl_b32 s{S_T}, s{S_CG}, 5
    v_add_u32 v{COUT}, s{S_T}, v{COUT}
    s_mul_i32 s{S_T}, s{S_CB}, 896
    v_subrev_u32 v{CCOL}, s{S_T}, v{COUT}
    v_and_b32 v{CBP}, 0xfc, v{V_LANE}""")
    A(f"""s_mov_b32 s{S_PH}, 0
    s_mov_b32 s{S_TI}, 4
""")
    direct(KX,S_K)
    pstamp(9)
    QLs=[SV, W1D+64, W1D+72, W1D+80]
    def qpoll():
        for b in range(NB):
            A(f"global_load_dwordx4 v[{QLs[b]}:{QLs[b]+3}], v{V_QPA}, s[{P_WS}:{P_WS+1}] offset:{1024*b} sc1\nglobal_load_dwordx4 v[{QLs[b]+4}:{QLs[b]+7}], v{V_QPA}, s[{P_WS}:{P_WS+1}] offset:{1024*b+16} sc1")
    qpoll()
    direct(VX,S_V)
    pstamp(10)
    A(f"s_waitcnt vmcnt(8)")
    A(f"{label}_qchk:\nv_mov_b32 v{XT}, 0")
    for b in range(NB):
        for i in range(4): A(f"v_bitop3_b32 v{XT}, v{XT}, v{QLs[b]+2*i+1}, v{V_TAG} bitop3:0xf6")
    A(f"""v_cmp_ne_u32 vcc, 0, v{XT}
    s_add_u32 s{S_SPIN}, s{S_SPIN}, 1
    s_cmp_gt_u32 s{S_SPIN}, {SPIN_MAX}
    s_cbranch_vccz {label}_qok
    s_cbranch_scc1 {label}_qok""")
    qpoll()
    A(f"s_waitcnt vmcnt(0)\ns_branch {label}_qchk\n{label}_qok:")
    for i in range(4): A(f"v_mov_b32 v{QW+i}, v{QLs[0]+2*i}")
    A(f"""s_lshl_b32 s{S_T}, s{S_W}, 9
    s_add_u32 s{S_T}, s{S_T}, {L_H}
    v_and_b32 v{V_SCL}, 0xfc, v{V_LANE}
    v_add_u32 v{V_SCL}, s{S_T}, v{V_SCL}""")
    stamp()
    A(f"s_branch {label}_k1")
    A(f"{label}_ffn2:")
    FF=TB+28
    stats(24+7+15, FF)
    A(f"""v_lshrrev_b32 v{U}, 2, v{V_LANE}
    v_lshlrev_b32 v{U}, 6, v{U}
    v_and_b32 v{U+1}, 3, v{V_LANE}
    v_lshl_add_u32 v{U}, v{U+1}, 3, v{U}
    s_add_u32 s{S_T2}, s{S_LB}, 0x6000
    v_add_u32 v{U}, s{S_T2}, v{U}
    s_waitcnt vmcnt(24)""")
    for i in range(7):
        for k in range(2): A(f"ds_read_b64_tr_b16 v[{TB+4*i+2*k}:{TB+4*i+2*k+1}], v{U} offset:{1024*i+32*k}")
    A(f"""v_lshlrev_b32 v{U+1}, 9, v{T}
    v_lshl_add_u32 v{U+1}, v{T+1}, 2, v{U+1}
    v_add_u32 v{U+1}, s{S_STG}, v{U+1}
    v_lshlrev_b32 v{U+3}, 3, v{T+1}
    v_add_u32 v{U+3}, {STG}, v{U+3}
    v_lshl_add_u32 v{U+2}, v{T}, 7, v{U+3}
    s_waitcnt lgkmcnt(0)""")
    for i in range(7):
        for k in range(2):
            c = "0" if i==0 else f"v[{BA+4*k}:{BA+4*k+3}]"
            A(f"v_mfma_f32_16x16x16_bf16 v[{BA+4*k}:{BA+4*k+3}], v[{XA+2*i}:{XA+2*i+1}], v[{TB+4*i+2*k}:{TB+4*i+2*k+1}], {c}")
    A(f"""v_bfe_u32 v{T+4}, v{V_LANE}, 2, 2
    v_lshl_add_u32 v{T+4}, v{T}, 3, v{T+4}
    v_mul_u32_u24 v{T+4}, 224, v{T+4}
    v_and_b32 v{T+5}, 3, v{V_LANE}
    v_lshl_add_u32 v{T+4}, v{T+5}, 3, v{T+4}
    s_add_u32 s{S_T2}, s{S_LB}, 0x4000
    v_add_u32 v{T+4}, s{S_T2}, v{T+4}
    s_mov_b64 exec, 0xffff""")
    for k in range(2):
        for r in range(4): A(f"ds_write_b32 v{U+1}, v{BA+4*k+r} offset:{128*r+64*k}")
    A("s_mov_b64 exec, -1")
    for j in range(7):
        A(f"ds_read_b64_tr_b16 v[{TB+4*j}:{TB+4*j+1}], v{T+4} offset:{32*j}\nds_read_b64_tr_b16 v[{TB+4*j+2}:{TB+4*j+3}], v{T+4} offset:{32*j+896}")
    A("s_waitcnt lgkmcnt(0)\ns_barrier")
    HR=FF
    for w in range(4): A(f"ds_read_b64 v[{HR+2*w}:{HR+2*w+1}], v{U+2} offset:{STGW*w}")
    A(f"""s_lshl_b32 s{S_T2}, s{S_W}, 9
    s_add_u32 s{S_T2}, s{S_T2}, {L_H}
    v_lshlrev_b32 v{U}, 2, v{V_LANE}
    v_add_u32 v{U}, s{S_T2}, v{U}
    v_and_b32 v{U+1}, 3, v{V_LANE}
    v_lshlrev_b32 v{U+1}, 6, v{U+1}
    v_lshl_add_u32 v{U+1}, v{T}, 4, v{U+1}
    v_add_u32 v{U+1}, s{S_T2}, v{U+1}
    v_lshlrev_b32 v{XT+4}, 16, v{V_B1}
    v_and_b32 v{XT+5}, 0xffff0000, v{V_B1}
    s_waitcnt lgkmcnt(0)
    s_barrier""")
    for e in range(2):
        A(f"""v_add_f32 v{HR+e}, v{HR+e}, v{HR+2+e}
        v_add_f32 v{HR+4+e}, v{HR+4+e}, v{HR+6+e}
        v_add_f32 v{HR+e}, v{HR+e}, v{HR+4+e}""")
    A(f"""v_cvt_pk_bf16_f32 v{HR}, v{HR}, v{HR+1}
    v_and_b32 v{HR+1}, 0xffff0000, v{HR}
    v_lshlrev_b32 v{HR}, 16, v{HR}
    v_add_f32 v{HR}, v{HR}, v{XT+4}
    v_add_f32 v{HR+1}, v{HR+1}, v{XT+5}
    v_cvt_pk_bf16_f32 v{HR}, v{HR}, v{HR+1}
    v_and_b32 v{HR+1}, 0xffff0000, v{HR}
    v_lshlrev_b32 v{HR}, 16, v{HR}
    v_max_f32 v{HR}, 0, v{HR}
    v_max_f32 v{HR+1}, 0, v{HR+1}
    v_mul_f32 v{HR}, v{HR}, v{HR}
    v_mul_f32 v{HR+1}, v{HR+1}, v{HR+1}
    v_cvt_pk_bf16_f32 v{HR}, v{HR}, v{HR+1}
    ds_write_b32 v{U}, v{HR}
    ds_read_b128 v[{BA}:{BA+3}], v{U+1}""")
    A(f"""s_lshl_b32 s{S_T2}, s{S_FS}, 6
    s_mul_i32 s{S_T3}, s{S_W}, {7*4096}
    s_add_u32 s{S_T2}, s{S_T2}, s{S_T3}
    s_add_u32 s{S_T2}, s{S_T2}, {ZOFF}
    v_mul_u32_u24 v{U+2}, {28*4096}, v{T}
    v_and_b32 v{U+3}, 12, v{V_LANE}
    v_lshl_add_u32 v{U+2}, v{U+3}, 2, v{U+2}
    v_add_u32 v{U+2}, s{S_T2}, v{U+2}
    s_mov_b32 s{S_T2}, 0x1000
    s_waitcnt lgkmcnt(0)""")
    ZD=FF
    for j in range(7): A(f"v_mfma_f32_16x16x32_bf16 v[{ZD+4*j}:{ZD+4*j+3}], v[{BA}:{BA+3}], v[{TB+4*j}:{TB+4*j+3}], 0")
    A("s_nop 2")
    for j in range(7): A(f"v_permlane16_swap_b32 v{ZD+4*j}, v{ZD+4*j+1}\nv_permlane16_swap_b32 v{ZD+4*j+2}, v{ZD+4*j+3}")
    for j in range(7): A(f"v_permlane32_swap_b32 v{ZD+4*j}, v{ZD+4*j+2}")
    for j in range(7): A(f"v_mov_b32_dpp v{ZD+4*j+2}, v{ZD+4*j} quad_perm:[1,0,3,2] row_mask:0xf bank_mask:0xf\nv_mov_b32 v{ZD+4*j+1}, v{V_TAG}\nv_mov_b32 v{ZD+4*j+3}, v{V_TAG}")
    for j in range(7): A(f"v_cvt_pk_bf16_f32 v{ZD+4*j}, v{ZD+4*j}, v{ZD+4*j+2}")
    for j in range(7): A(f"v_mov_b32_dpp v{ZD+4*j+2}, v{ZD+4*j} quad_perm:[2,2,2,2] row_mask:0xf bank_mask:0xf")
    A("s_mov_b32 exec_lo, 0x11111111\ns_mov_b32 exec_hi, 0x11111111")
    for j in range(7):
        if not ABL&64 and not (ABL&128 and j>=3): A(f"global_store_dwordx4 v{U+2}, v[{ZD+4*j}:{ZD+4*j+3}], s[{P_WS}:{P_WS+1}] sc1")
        if j<6: A(f"v_add_u32 v{U+2}, s{S_T2}, v{U+2}")
    A(f"s_mov_b64 exec, -1\ns_branch {label}_ffn2x")
    def kscore(R, dst):
        for j in range(4):
            for t in range(8):
                if j==0: A(f"v_dot2_f32_bf16 v{XT+t}, v{R+4*t}, v{QW}, 0")
                else: A(f"v_dot2c_f32_bf16 v{XT+t}, v{R+4*t+j}, v{QW+j}")
        A("s_nop 2")
        for u in range(4): A(f"v_permlane16_swap_b32 v{XT+2*u}, v{XT+2*u+1}")
        for u in range(4): A(f"v_add_f32 v{XT+2*u}, v{XT+2*u}, v{XT+2*u+1}")
        y=[XT,XT+2,XT+4,XT+6]
        A(f"""s_nop 0
        v_add_f32_dpp v{y[0]}, v{y[0]}, v{y[0]} row_ror:8 row_mask:0xf bank_mask:0x3
        v_add_f32_dpp v{y[2]}, v{y[2]}, v{y[2]} row_ror:8 row_mask:0xf bank_mask:0x3
        v_add_f32_dpp v{y[0]}, v{y[1]}, v{y[1]} row_ror:8 row_mask:0xf bank_mask:0xc
        v_add_f32_dpp v{y[2]}, v{y[3]}, v{y[3]} row_ror:8 row_mask:0xf bank_mask:0xc
        s_nop 1
        v_add_f32_dpp v{y[0]}, v{y[0]}, v{y[0]} row_shl:4 row_mask:0xf bank_mask:0x5
        s_nop 0
        v_add_f32_dpp v{y[0]}, v{y[2]}, v{y[2]} row_shr:4 row_mask:0xf bank_mask:0xa
        s_nop 1
        v_add_f32_dpp v{y[0]}, v{y[0]}, v{y[0]} quad_perm:[1,0,3,2] row_mask:0xf bank_mask:0xf
        s_nop 1
        v_add_f32_dpp v{dst}, v{y[0]}, v{y[0]} quad_perm:[2,3,0,1] row_mask:0xf bank_mask:0xf""")
    def build_b(dst, src, k, mk):
        for j in range(4): A(f"v_and_b32_dpp v{dst+j}, v{src}, v{mk+j} row_newbcast:{k} row_mask:0xf bank_mask:0xf")
    def beta(t): return (t>>2) | (((t>>1)&1)<<1)
    def pv(R, pa, pb):
        build_b(BA, pa, 4*beta(0), MK)
        for t in range(8):
            cur = BA if t%2==0 else BB
            nxt = BB if t%2==0 else BA
            if t+1<8: build_b(nxt, pb if (t+1)&1 else pa, 4*beta(t+1), MK)
            else: A("s_nop 1")
            A(f"s_waitcnt lgkmcnt({7-t})")
            A(f"v_mfma_f32_16x16x32_bf16 v[{OA}:{OA+3}], v[{R+4*t}:{R+4*t+3}], v[{cur}:{cur+3}], v[{OA}:{OA+3}]")
    def scptr(ureg):
        A(f"s_lshl_b32 s{S_SC}, s{ureg}, 7\ns_add_u32 s{S_SC}, s{P_WS}, s{S_SC}\ns_addc_u32 s{S_SC+1}, s{P_WS+1}, 0")
    A(f"{label}_loop:")
    A(f"s_sub_u32 s{S_REM}, s{S_NU}, s{S_IT}")
    A(f"s_cmp_eq_u32 s{S_IT}, 3\ns_cbranch_scc1 {label}_xk")
    A(f"s_cmp_ge_u32 s{S_REM}, 2\ns_cbranch_scc1 {label}_wk24\ns_waitcnt vmcnt(8)\n{label}_wk24:\ns_waitcnt vmcnt(24)")
    A(f"""s_sub_u32 s{S_T}, s{S_IT}, {NSK}
    s_min_u32 s{S_T2}, s{S_T}, {NSK}
    s_and_b32 s{S_PH}, s{S_IT}, 1
    s_cmp_lt_u32 s{S_IT}, {2*NSK}
    s_cselect_b32 s{S_PH}, 1, s{S_PH}
    s_cmp_lt_u32 s{S_IT}, {NSK}
    s_cselect_b32 s{S_PH}, 0, s{S_PH}
    s_lshl_b32 s{S_T2}, s{S_T2}, 6
    v_add_u32 v{V_T+1}, s{S_T2}, v{V_SCL}
    v_add_u32 v{V_T}, s{S_RO}, v{V_LDSR}
    ds_read_b32 v{PUB}, v{V_T+1}""")
    for j in range(8): A(f"ds_read_b128 v[{KST+4*j}:{KST+4*j+3}], v{V_T} offset:{1024*j}")
    A(f"s_cmp_lg_u32 s{S_PH}, 0\ns_cbranch_scc1 {label}_v1")
    A(f"s_waitcnt lgkmcnt(0)\n{label}_k1:")
    kscore(KST, S1)
    A(f"s_cmp_eq_u32 s{S_IT}, 0\ns_cbranch_scc1 {label}_k2")
    A(f"s_cmp_eq_u32 s{S_IT}, 3\ns_cbranch_scc1 {label}_xv")
    A(f"s_branch {label}_sg2")
    A(f"""{label}_v1:
    s_waitcnt lgkmcnt(8)
    v_lshlrev_b32 v{S1}, 16, v{PUB}
    v_and_b32 v{S2}, 0xffff0000, v{PUB}
    v_mul_f32 v{S1}, s{S_C}, v{S1}
    v_mul_f32 v{S2}, s{S_C}, v{S2}
    v_max3_f32 v{XT+1}, v{S1}, v{S2}, s{S_M}
    s_nop 1
    v_max_f32_dpp v{XT+1}, v{XT+1}, v{XT+1} row_ror:4 row_mask:0xf bank_mask:0xf
    s_nop 1
    v_max_f32_dpp v{XT+1}, v{XT+1}, v{XT+1} row_ror:8 row_mask:0xf bank_mask:0xf
    s_nop 1
    v_max_f32_dpp v{XT+1}, v{XT+1}, v{XT+1} row_bcast:15 row_mask:0xa bank_mask:0xf
    s_nop 1
    v_max_f32_dpp v{XT+1}, v{XT+1}, v{XT+1} row_bcast:31 row_mask:0xc bank_mask:0xf
    s_nop 0
    v_readlane_b32 s{S_M}, v{XT+1}, 63
    s_nop 1
    v_subrev_f32 v{XT}, s{S_M}, v{S1}
    v_subrev_f32 v{XT+2}, s{S_M}, v{S2}
    v_subrev_f32 v{XT+1}, s{S_M}, v{VM}
    v_exp_f32 v{XT}, v{XT}
    v_exp_f32 v{XT+2}, v{XT+2}
    v_exp_f32 v{XT+1}, v{XT+1}
    v_mov_b32 v{VM}, s{S_M}
    v_cvt_pk_bf16_f32 v{PA}, v{XT}, v{XT}
    v_cvt_pk_bf16_f32 v{PA2}, v{XT+2}, v{XT+2}
    v_fma_f32 v{LA}, v{LA}, v{XT+1}, v{XT}
    v_mov_b32 v{PB}, v{PA}
    v_mov_b32 v{PB2}, v{PA2}
    v_add_f32 v{LA}, v{LA}, v{XT+2}""")
    for j in range(4): A(f"v_mul_f32 v{OA+j}, v{XT+1}, v{OA+j}")
    A(f"v_permlane16_swap_b32 v{PA}, v{PB}\nv_permlane16_swap_b32 v{PA2}, v{PB2}\ns_nop 0")
    pv(KST, PA, PB)
    A(f"{label}_sg2:")
    A(f"s_cmp_ge_u32 s{S_REM}, 2\ns_cbranch_scc1 {label}_wv16\ns_waitcnt vmcnt(0)\n{label}_wv16:\ns_waitcnt vmcnt(16)")
    A(f"v_add_u32 v{V_T}, s{S_RO}, v{V_LDSR}")
    for j in range(8): A(f"ds_read_b128 v[{VST+4*j}:{VST+4*j+3}], v{V_T} offset:{8192+1024*j}")
    if not ABL&1: A(f"s_cmp_lt_u32 s{S_IT}, 11\ns_cbranch_scc1 {label}_wold")
    A(f"{label}_woret:")
    A(f"s_cmp_lt_u32 s{S_REM}, 3\ns_cbranch_scc1 {label}_noiss")
    A(f"""s_cmp_ge_u32 s{S_TI}, {2*NSK}
    s_cbranch_scc1 {label}_dyn
    s_cmp_ge_u32 s{S_TI}, {NSK}
    s_cselect_b32 s{S_T}, {NSK}, 0
    s_cselect_b64 s[{S_SC}:{S_SC+1}], s[{P_V}:{P_V+1}], s[{P_K}:{P_K+1}]
    s_sub_u32 s{S_U}, s{S_TI}, s{S_T}
    s_lshl_b32 s{S_U}, s{S_U}, 4
    s_add_u32 s{S_U}, s{S_U}, s{S_WIH}
    s_cmp_eq_u32 s{S_TI}, {2*NSK-1}
    s_cbranch_scc1 {label}_claim
    s_branch {label}_noclaim
    {label}_dyn:
    s_mov_b64 s[{S_SC}:{S_SC+1}], s[{P_V}:{P_V+1}]
    s_and_b32 s{S_T}, s{S_TI}, 1
    s_cbranch_scc1 {label}_claim
    v_readfirstlane_b32 s{S_T}, v{V_CLM}
    s_mov_b64 s[{S_SC}:{S_SC+1}], s[{P_K}:{P_K+1}]
    s_lshr_b32 s{S_T2}, s{S_T}, 12
    s_and_b32 s{S_T}, s{S_T}, 0xfff
    s_cmp_lg_u32 s{S_T2}, s{S_TG}
    s_cselect_b32 s{S_T}, 0xfff, s{S_T}
    s_add_u32 s{S_U}, s{S_T}, {16*NSK}
    s_cmp_lt_u32 s{S_U}, 128
    s_cbranch_scc1 {label}_noclaim
    s_mov_b32 s{S_NU}, s{S_TI}
    s_branch {label}_noiss
    {label}_claim:
    s_mov_b64 exec, 1
    global_atomic_add v{V_CLM}, v{V_ZERO}, v{V_ONE}, s[{S_CNT}:{S_CNT+1}] sc0 sc1
    s_mov_b64 exec, -1
    {label}_noclaim:
    s_add_u32 s{S_TI}, s{S_TI}, 1""")
    setptr(False)
    dma(S_K, f"s_add_u32 m0, s{S_LB}, s{S_RO}")
    A(f"s_add_u32 m0, m0, 0x1000\ns_waitcnt lgkmcnt(0)")
    for j in range(8):
        vo = V_OFF if j<4 else V_OFF2
        if j==4: A("s_add_u32 m0, m0, 0x1000\ns_nop 0")
        A(f"global_load_lds_dwordx4 v{vo}, s[{S_V}:{S_V+1}] offset:{(j%4)*1024} {VF}")
    A(f"{label}_noiss:")
    A(f"s_xor_b32 s{S_RO}, s{S_RO}, 0x4000")
    if trace: A(f"s_memrealtime s[92:93]\ns_waitcnt lgkmcnt(0)\ns_mov_b32 m0, s{S_IT}\nv_writelane_b32 v253, s92, m0")
    A(f"s_cmp_lg_u32 s{S_PH}, 0\ns_cbranch_scc1 {label}_v2")
    A(f"s_waitcnt lgkmcnt(0)\n{label}_k2:")
    kscore(VST, S2)
    A(f"""s_min_u32 s{S_T2}, s{S_IT}, {NSK}
    s_lshl_b32 s{S_T2}, s{S_T2}, 6
    v_cvt_pk_bf16_f32 v{PUB}, v{S1}, v{S2}
    v_add_u32 v{V_T+1}, s{S_T2}, v{V_SCL}
    ds_write_b32 v{V_T+1}, v{PUB}
    s_branch {label}_next
    {label}_v2:""")
    pv(VST, PA2, PB2)
    A(f"{label}_next:")
    if stamps:
        for k in ((2,4,8,12) if stamps==1 else (1,)):
            A(f"s_cmp_lg_u32 s{S_IT}, {k}\ns_cbranch_scc1 {label}_st{k}")
            stamp()
            A(f"{label}_st{k}:")
    A(f"s_add_u32 s{S_IT}, s{S_IT}, 1")
    if NB==4: A(f"s_and_b32 s{S_T}, s{S_IT}, 0x13\ns_cbranch_scc0 {label}_bsw")
    A(f"""{label}_bswx:
    s_cmp_lt_u32 s{S_IT}, s{S_NU}
    s_cbranch_scc1 {label}_loop
    s_branch {label}_tail""")
    def lred():
        for k in (8,4): A(f"s_nop 1\nv_add_f32_dpp v{LA}, v{LA}, v{LA} row_ror:{k} row_mask:0xf bank_mask:0xf")
        A(f"s_nop 1\nv_add_f32_dpp v{LA}, v{LA}, v{LA} row_bcast:15 row_mask:0xa bank_mask:0xf")
        A(f"s_nop 1\nv_add_f32_dpp v{LA}, v{LA}, v{LA} row_bcast:31 row_mask:0xc bank_mask:0xf")
    if NB==4:
        A(f"{label}_bsw:\ns_cmp_gt_u32 s{S_IT}, 12\ns_cbranch_scc1 {label}_bswx")
        lred()
        for i in range(8): A(f"v_mov_b32 v{SV+i}, v{SV+4+i}")
        A(f"""v_cvt_pk_bf16_f32 v{SV+8}, v{OA}, v{OA+1}
        v_cvt_pk_bf16_f32 v{SV+9}, v{OA+2}, v{OA+3}
        v_mov_b32 v{SV+10}, v{LA}
        v_mov_b32 v{SV+11}, v{VM}
        v_mov_b32 v{LA}, 0
        v_mov_b32 v{VM}, {hex(NEG)}
        s_mov_b32 s{S_M}, {hex(NEG)}""")
        for j in range(4): A(f"v_mov_b32 v{OA+j}, 0")
        for i in range(4): A(f"v_mov_b32 v{QW+i}, v{QLs[1]+2*i}\nv_mov_b32 v{QLs[1]+2*i}, v{QLs[2]+2*i}\nv_mov_b32 v{QLs[2]+2*i}, v{QLs[3]+2*i}")
        A(f"s_branch {label}_bswx")
    A(f"{label}_wold:")
    its=[1,2,4,5,6,7,8,9,10]
    for st,itv in enumerate(its):
        if st<8: A(f"s_cmp_lg_u32 s{S_IT}, {itv}\ns_cbranch_scc1 {label}_wo{st+1}")
        if st>0:
            for j in range(7):
                r=((st-1)*7+j)*4
                A(f"ds_read_b64_tr_b16 a[{r}:{r+1}], v{V_TRA} offset:{32*j}\nds_read_b64_tr_b16 a[{r+2}:{r+3}], v{V_TRA} offset:{32*j+896}")
        if st<8:
            base=(128*(st&1)+32*(st>>1))*896
            A(f"s_add_u32 s{S_T2}, s{S_WOP}, {base}\ns_addc_u32 s{S_T3}, s{S_WOP+1}, 0\ns_branch {label}_woiss")
            A(f"{label}_wo{st+1}:")
        else: A(f"s_branch {label}_woret")
    assert S_T3==S_T2+1
    A(f"{label}_woiss:\ns_mov_b32 s{S_K}, s{S_T2}\ns_mov_b32 s{S_K+1}, s{S_T3}\ns_mov_b32 m0, s{S_STG}\ns_waitcnt lgkmcnt(0)")
    for i in range(7):
        A(f"global_load_lds_dwordx4 v{WA+i}, s[{S_K}:{S_K+1}] {WOF}")
        if i<6: A("s_add_u32 m0, m0, 0x400\ns_nop 0")
    A(f"s_branch {label}_woret")
    A(f"{label}_xk:")
    for i in range(32): A(f"v_mov_b32 v{KST+i}, v{KX+i}")
    A(f"s_branch {label}_k1")
    A(f"{label}_xv:\ns_waitcnt vmcnt(32)")
    for i in range(32): A(f"v_mov_b32 v{VST+i}, v{VX+i}")
    A(f"s_branch {label}_k2")
    A(f"{label}_tail:")
    stamp()
    lred()
    A(f"""v_cvt_pk_bf16_f32 v{OA}, v{OA}, v{OA+1}
    v_cvt_pk_bf16_f32 v{OA+1}, v{OA+2}, v{OA+3}
    s_lshl_b32 s{S_T}, s{S_W}, 3
    s_add_u32 s{S_T}, s{S_T}, {L_ML}
    v_mov_b32 v{T}, s{S_T}""")
    for b in range(NB-1): A(f"ds_write_b64 v{V_AW}, v[{SV+4*b}:{SV+4*b+1}] offset:{AROW*b}")
    A(f"ds_write_b64 v{V_AW}, v[{OA}:{OA+1}] offset:{AROW*(NB-1)}")
    A("s_mov_b32 exec_lo, 0\ns_mov_b32 exec_hi, 0x80000000")
    for b in range(NB-1): A(f"ds_write_b64 v{T}, v[{SV+4*b+2}:{SV+4*b+3}] offset:{32*b}")
    A(f"ds_write_b64 v{T}, v[{LA}:{LA+1}] offset:{32*(NB-1)}\ns_mov_b64 exec, -1")
    CZ=W1D; CF=W1D; CY=W1D+16; CML=U; CM=XT+2
    A(f"s_cmp_ge_u32 s2, {NCONS}\ns_cbranch_scc1 {label}_nocons0")
    def zloads():
        for k in range(4):
            if k==3: A("s_mov_b32 exec_hi, 0")
            A(f"global_load_dwordx4 v[{CZ+4*k}:{CZ+4*k+3}], v{V_OFF}, s[{S_Z}:{S_Z+1}] offset:{1024*k} sc1")
        A("s_mov_b64 exec, -1")
    for k in (12,14): A(f"v_mov_b32 v{CZ+k}, 0\nv_mov_b32 v{CZ+k+1}, v{V_TAG}")
    zloads()
    A(f"""global_load_ushort v{CX}, v{COUT}, s[{P_X}:{P_X+1}]
    global_load_ushort v{CB2}, v{CCOL}, s[{P_B2}:{P_B2+1}]
    {label}_nocons0:""")
    A(f"v_lshrrev_b32 v{T+2}, 4, v{V_LANE}" if NB==4 else f"v_mov_b32 v{T+2}, 0")
    A(f"""v_lshlrev_b32 v{T}, 5, v{T+2}
    v_add_u32 v{T}, {L_ML}, v{T}
    s_lshl_b32 s{S_T2}, s{S_PART}, 4
    s_add_u32 s{S_T2}, s{S_T2}, {MLOFF}
    v_lshlrev_b32 v{T+1}, 12, v{T+2}
    v_add_u32 v{T+1}, s{S_T2}, v{T+1}
    s_mov_b32 s{S_T2}, 0x4000""")
    if NB==1 and not MLR: A(f"s_lshl_b32 s{S_T3}, s{S_B}, 10\nv_add_u32 v{T+1}, s{S_T3}, v{T+1}")
    if MLR:
        assert NB==1
        A(f"s_mul_i32 s{S_T3}, s{S_B}, {7*1024}\nv_lshl_add_u32 v{T+1}, v{V_LANE}, 10, v{T+1}\nv_add_u32 v{T+1}, s{S_T3}, v{T+1}")
    ML=U; M=T+4; AF=KST; D=VST
    A(f"v_mov_b32 v{M+1}, v{V_TAG}\nv_mov_b32 v{M+3}, v{V_TAG}")
    A("s_waitcnt lgkmcnt(0)\ns_barrier")
    if stamps==1: stamp()
    A(f"ds_read_b128 v[{ML}:{ML+3}], v{T}\nds_read_b128 v[{ML+4}:{ML+7}], v{T} offset:16")
    for s_ in range(8): A(f"ds_read_b128 v[{AF+4*s_}:{AF+4*s_+3}], v{V_AR} offset:{64*s_}")
    A("s_waitcnt lgkmcnt(7)")
    def fact():
        r=[f"v_max3_f32 v{M}, v{ML+1}, v{ML+3}, v{ML+5}", f"v_max_f32 v{M}, v{M}, v{ML+7}"]
        r+=[f"v_sub_f32 v{ML+2*w+1}, v{ML+2*w+1}, v{M}" for w in range(4)]
        r+=[f"v_exp_f32 v{ML+2*w+1}, v{ML+2*w+1}" for w in range(4)]
        r+=[f"v_mul_f32 v{M+2}, v{ML}, v{ML+1}"]+[f"v_fmac_f32 v{M+2}, v{ML+2*w}, v{ML+2*w+1}" for w in range(1,4)]
        return r
    def post(j):
        d=D+4*j
        return [f"v_mul_f32 v{d}, v{d}, v{ML+1}", f"v_fmac_f32 v{d}, v{d+1}, v{ML+3}", f"v_fmac_f32 v{d}, v{d+2}, v{ML+5}", f"v_fmac_f32 v{d}, v{d+3}, v{ML+7}",
                f"v_mov_b32 v{d+1}, v{V_TAG}", f"v_mov_b32 v{d+3}, v{V_TAG}",
                f"v_mov_b32_dpp v{d+2}, v{d} quad_perm:[1,0,3,2] row_mask:0xf bank_mask:0xf",
                f"s_mov_b32 exec_lo, 0x55555555\ns_mov_b32 exec_hi, 0x55555555\nglobal_store_dwordx4 v{V_YA}, v[{d}:{d+3}], s[{P_WS}:{P_WS+1}] sc1\ns_mov_b64 exec, -1\nv_add_u32 v{V_YA}, s{S_T2}, v{V_YA}"]
    def post1(j):
        d=D+4*j; mr=YM+4*(j//4)
        r=[f"v_mul_f32 v{d}, v{d}, v{ML+1}", f"v_fmac_f32 v{d}, v{d+1}, v{ML+3}", f"v_fmac_f32 v{d}, v{d+2}, v{ML+5}", f"v_fmac_f32 v{d}, v{d+3}, v{ML+7}",
           "s_nop 1",
           f"v_mov_b32_dpp v{mr}, v{d} quad_perm:[0,1,2,3] row_mask:{hex(1<<(j&3))} bank_mask:0xf",
           f"v_mov_b32_dpp v{mr+2}, v{d} quad_perm:[1,0,3,2] row_mask:{hex(1<<(j&3))} bank_mask:0xf"]
        if j in (3,6):
            r.append(f"v_cvt_pk_bf16_f32 v{mr}, v{mr}, v{mr+2}\ns_mov_b32 vcc_lo, 0x11111111\ns_mov_b32 vcc_hi, {'0x11111111' if j==3 else '0x1111'}\nv_mov_b32_dpp v{mr+2}, v{mr} quad_perm:[2,2,2,2] row_mask:0xf bank_mask:0xf\ns_mov_b64 exec, vcc\nglobal_store_dwordx4 v{V_YA}, v[{mr}:{mr+3}], s[{P_WS}:{P_WS+1}] sc1\ns_mov_b64 exec, -1\nv_add_u32 v{V_YA}, s{S_T2}, v{V_YA}")
        return r
    YM=BA
    if NB==1:
        post=post1
    fill=fact()
    mlpub=f"""s_cmp_lg_u32 s{S_W}, 0
    s_cbranch_scc1 {label}_noml
    s_mov_b32 exec_lo, {'0x00010001' if NB==4 else ('0x7f' if MLR else '1')}
    s_mov_b32 exec_hi, {'0x00010001' if NB==4 else '0'}
    global_store_dwordx4 v{T+1}, v[{M}:{M+3}], s[{P_WS}:{P_WS+1}] sc1
    s_mov_b64 exec, -1
    {label}_noml:"""
    for j in range(7):
        if j==1: fill=[mlpub]+([f"v_mov_b32 v{YM+i}, v{V_TAG}" for i in (1,3,5,7)] if NB==1 else [])
        if j>=2: fill=post(j-2)
        for s_ in range(8):
            if j==0 and s_>0: A(f"s_waitcnt lgkmcnt({7-s_})")
            r=(s_*7+j)*4
            c = "0" if s_==0 else f"v[{D+4*j}:{D+4*j+3}]"
            A(f"v_mfma_f32_16x16x32_bf16 v[{D+4*j}:{D+4*j+3}], v[{AF+4*s_}:{AF+4*s_+3}], a[{r}:{r+3}], {c}")
            for _ in range(2 if j==0 else 1):
                if fill: A(fill.pop(0))
        assert not fill
    for ln in post(5): A(ln)
    if NB==1: A("s_nop 0")
    for ln in post(6): A(ln)
    A(f"{label}_fin:")
    if stamps!=2: stamp()
    A(f"s_cmp_ge_u32 s2, {NCONS}\ns_cbranch_scc1 {label}_done")
    def tagacc(dst, rs, first=True):
        for i,r in enumerate(rs):
            if first and i==0: A(f"v_xor_b32 v{dst}, v{r}, v{V_TAG}")
            else: A(f"v_bitop3_b32 v{dst}, v{dst}, v{r}, v{V_TAG} bitop3:0xf6")
    def test(dst, ok):
        A(f"""v_cmp_ne_u32 vcc, 0, v{dst}
        s_add_u32 s{S_SPIN}, s{S_SPIN}, 1
        s_cmp_gt_u32 s{S_SPIN}, {SPIN_MAX}
        s_cbranch_vccz {ok}
        s_cbranch_scc1 {ok}""")
    def yloads():
        for k in range(4*NB):
            A(f"global_load_dwordx4 v[{CY+4*k}:{CY+4*k+3}], v{[V_OFF,V_OFF2,T+2,T+3][k//4]}, s[{S_Y}:{S_Y+1}] offset:{1024*(k%4)} sc1")
    def mlload():
        for k in range(NB): A(f"global_load_dwordx4 v[{CML+4*k}:{CML+4*k+3}], v{CMA}, s[{P_WS}:{P_WS+1}] offset:{1024*k} sc1")
    def red4(c):
        A(f"""s_nop 1
        v_permlane32_swap_b32 v{c}, v{c+1}
        v_permlane32_swap_b32 v{c+2}, v{c+3}
        v_add_f32 v{c}, v{c}, v{c+1}
        v_add_f32 v{c+2}, v{c+2}, v{c+3}
        s_nop 1
        v_permlane16_swap_b32 v{c}, v{c+2}
        v_add_f32 v{c}, v{c}, v{c+2}
        s_nop 1
        v_add_f32_dpp v{c}, v{c}, v{c} row_ror:4 row_mask:0xf bank_mask:0xf
        s_nop 1
        v_add_f32_dpp v{c}, v{c}, v{c} row_ror:8 row_mask:0xf bank_mask:0xf""")
    mlload()
    A(f"s_waitcnt vmcnt({NB})")
    A(f"{label}_zchk:")
    tagacc(XT, [CZ+2*i+1 for i in range(8)])
    if ABL&(2|64|128): A(f"s_branch {label}_zok")
    test(XT, f"{label}_zok")
    zloads()
    A(f"s_waitcnt vmcnt(0)\ns_branch {label}_zchk\n{label}_zok:")
    for k in range(4):
        for h in range(2):
            r=CZ+4*k+2*h
            A(f"v_and_b32 v{r+1}, 0xffff0000, v{r}\nv_lshlrev_b32 v{r}, 16, v{r}")
    for j in range(4): A(f"v_add_f32 v{CZ+j}, v{CZ+j}, v{CZ+4+j}\nv_add_f32 v{CZ+8+j}, v{CZ+8+j}, v{CZ+12+j}")
    for j in range(4): A(f"v_add_f32 v{CZ+j}, v{CZ+j}, v{CZ+8+j}")
    red4(CZ)
    A(f"""v_lshlrev_b32 v{CX}, 16, v{CX}
    v_lshlrev_b32 v{CB2}, 16, v{CB2}
    v_cvt_pk_bf16_f32 v{CG}, v{CZ}, v{CZ}
    v_lshlrev_b32 v{CG}, 16, v{CG}
    v_add_f32 v{CG}, v{CG}, v{CB2}
    v_cvt_pk_bf16_f32 v{CG}, v{CG}, v{CG}
    v_lshlrev_b32 v{CG}, 16, v{CG}
    v_mul_f32 v{XT+5}, {hex(f2u(-LOG2E))}, v{CG}
    v_exp_f32 v{XT+5}, v{XT+5}
    s_nop 0
    v_add_f32 v{XT+5}, 1.0, v{XT+5}
    v_rcp_f32 v{XT+5}, v{XT+5}
    s_nop 0
    v_mul_f32 v{CG}, v{CG}, v{XT+5}
    v_cvt_pk_bf16_f32 v{CG}, v{CG}, v{CG}
    v_lshlrev_b32 v{CG}, 16, v{CG}""")
    if FP:
        assert NB==1
        SM=[64,66,68,70,72] if not stamps else [86,88,90,92,98]
        SM=[84,86,88,90,92]
        A(f"{label}_mlw:\ns_waitcnt vmcnt(0)")
        tagacc(XT, [CML+1, CML+3])
        A(f"""v_cmp_ne_u32 vcc, 0, v{XT}
        s_add_u32 s{S_SPIN}, s{S_SPIN}, 1
        s_cmp_gt_u32 s{S_SPIN}, {SPIN_MAX}
        s_cbranch_scc1 {label}_stb
        s_bcnt1_i32_b64 s{S_T}, vcc
        s_cmp_le_u32 s{S_T}, {FP}
        s_cbranch_scc1 {label}_stb""")
        mlload()
        A(f"s_branch {label}_mlw\n{label}_stb:\ns_mov_b32 s{S_T2}, 0")
        mlload(); yloads()
        A(f"s_waitcnt vmcnt(0)\n{label}_pl:")
        A(f"v_xor_b32 v{XT+4}, v{CML+1}, v{V_TAG}")
        for k in range(4): A(f"v_xor_b32 v{XT+k}, v{CY+4*k+1}, v{V_TAG}")
        A(f"v_bitop3_b32 v{XT+4}, v{XT+4}, v{CML+3}, v{V_TAG} bitop3:0xf6")
        for k in range(4): A(f"v_bitop3_b32 v{XT+k}, v{XT+k}, v{CY+4*k+3}, v{V_TAG} bitop3:0xf6")
        A(f"v_cmp_ne_u32 s[{SM[4]}:{SM[4]+1}], 0, v{XT+4}")
        for k in range(4): A(f"v_cmp_ne_u32 s[{SM[k]}:{SM[k]+1}], 0, v{XT+k}")
        A(f"""s_cmp_lg_u32 s{S_T2}, 0
        s_cbranch_scc1 {label}_hf
        s_cmp_lg_u64 s[{SM[4]}:{SM[4]+1}], 0
        s_cbranch_scc1 {label}_iss
        s_mov_b32 s{S_T2}, 1
        s_nop 7
        v_max_f32_dpp v{XT+5}, v{CML}, v{CML} quad_perm:[1,0,3,2] row_mask:0xf bank_mask:0xf
        s_nop 1
        v_max_f32_dpp v{XT+5}, v{XT+5}, v{XT+5} quad_perm:[2,3,0,1] row_mask:0xf bank_mask:0xf
        v_sub_f32 v{XT+5}, v{CML}, v{XT+5}
        v_exp_f32 v{XT+5}, v{XT+5}
        s_nop 0
        v_mul_f32 v{XT+6}, v{CML+2}, v{XT+5}
        s_nop 1
        v_add_f32_dpp v{XT+6}, v{XT+6}, v{XT+6} quad_perm:[1,0,3,2] row_mask:0xf bank_mask:0xf
        s_nop 1
        v_add_f32_dpp v{XT+6}, v{XT+6}, v{XT+6} quad_perm:[2,3,0,1] row_mask:0xf bank_mask:0xf
        v_rcp_f32 v{XT+6}, v{XT+6}
        s_nop 0
        v_mul_f32 v{XT+5}, v{XT+5}, v{XT+6}""")
        for k in range(4): A(f"ds_bpermute_b32 v{CF+k}, v{CBP}, v{XT+5} offset:{64*k}")
        A(f"""{label}_hf:
        s_or_b64 vcc, s[{SM[0]}:{SM[0]+1}], s[{SM[1]}:{SM[1]+1}]
        s_or_b64 vcc, vcc, s[{SM[2]}:{SM[2]+1}]
        s_or_b64 vcc, vcc, s[{SM[3]}:{SM[3]+1}]
        s_cbranch_scc0 {label}_yok
        {label}_iss:
        s_add_u32 s{S_SPIN}, s{S_SPIN}, 1
        s_cmp_gt_u32 s{S_SPIN}, {SPIN_MAX*8}
        s_cbranch_scc1 {label}_yok
        s_or_b64 exec, s[{SM[4]}:{SM[4]+1}], 1""")
        mlload()
        for k in range(4):
            A(f"s_or_b64 exec, s[{SM[k]}:{SM[k]+1}], 1\nglobal_load_dwordx4 v[{CY+4*k}:{CY+4*k+3}], v{V_OFF}, s[{S_Y}:{S_Y+1}] offset:{1024*k} sc1")
        A(f"s_mov_b64 exec, -1\ns_waitcnt vmcnt({5*(PD-1)})\ns_branch {label}_pl\n{label}_yok:\ns_nop 15\ns_waitcnt lgkmcnt(0)")
        for k in range(4):
            if k==0: A(f"v_mul_f32 v{XT}, v{CY}, v{CF}\nv_mul_f32 v{XT+2}, v{CY+2}, v{CF}")
            else: A(f"v_fmac_f32 v{XT}, v{CY+4*k}, v{CF+k}\nv_fmac_f32 v{XT+2}, v{CY+4*k+2}, v{CF+k}")
    else:
        if TH==0:
            A(f"{label}_mlw:\ns_waitcnt vmcnt(0)")
            tagacc(XT, [CML+2*i+1 for i in range(2*NB)])
            test(XT, f"{label}_mlok")
            mlload()
            A(f"s_branch {label}_mlw\n{label}_mlok:")
            yloads()
        else:
            A(f"{label}_mlw:\ns_waitcnt vmcnt(0)")
            tagacc(XT, [CML+2*i+1 for i in range(2*NB)])
            test(XT, f"{label}_mlok0")
            A(f"s_bcnt1_i32_b64 s{S_T}, vcc")
            mlload()
            A(f"s_cmp_gt_u32 s{S_T}, {TH}\ns_cbranch_scc1 {label}_mlw")
            A(f"{label}_mlw2:")
            yloads()
            A(f"s_waitcnt vmcnt({4*NB})")
            tagacc(XT, [CML+2*i+1 for i in range(2*NB)])
            test(XT, f"{label}_mlok")
            mlload()
            A(f"s_branch {label}_mlw2\n{label}_mlok0:")
            yloads()
            A(f"{label}_mlok:")
        if NB==4:
            for k in range(4): A(f"v_max_f32_dpp v{CML+4*k+1}, v{CML+4*k}, v{CML+4*k} row_ror:8 row_mask:0xf bank_mask:0xf")
            for r in (4,2,1):
                for k in range(4): A(f"v_max_f32_dpp v{CML+4*k+1}, v{CML+4*k+1}, v{CML+4*k+1} row_ror:{r} row_mask:0xf bank_mask:0xf")
            for k in range(4): A(f"v_sub_f32 v{CML+4*k}, v{CML+4*k}, v{CML+4*k+1}")
            for k in range(4): A(f"v_exp_f32 v{CML+4*k}, v{CML+4*k}")
            for k in range(4): A(f"v_mul_f32 v{CML+4*k+2}, v{CML+4*k+2}, v{CML+4*k}")
            for r in (8,4,2,1):
                for k in range(4): A(f"v_add_f32_dpp v{CML+4*k+2}, v{CML+4*k+2}, v{CML+4*k+2} row_ror:{r} row_mask:0xf bank_mask:0xf")
            for k in range(4): A(f"v_rcp_f32 v{CML+4*k+2}, v{CML+4*k+2}")
            for k in range(4): A(f"v_mul_f32 v{CML+4*k}, v{CML+4*k}, v{CML+4*k+2}")
            for k in range(16): A(f"ds_bpermute_b32 v{CF+k}, v{CBP}, v{CML+4*(k//4)} offset:{64*(k%4)}")
        else:
            A(f"""v_max_f32_dpp v{CML+1}, v{CML}, v{CML} quad_perm:[1,0,3,2] row_mask:0xf bank_mask:0xf
            s_nop 1
            v_max_f32_dpp v{CML+1}, v{CML+1}, v{CML+1} quad_perm:[2,3,0,1] row_mask:0xf bank_mask:0xf
            v_sub_f32 v{CML}, v{CML}, v{CML+1}
            v_exp_f32 v{CML}, v{CML}
            s_nop 0
            v_mul_f32 v{CML+2}, v{CML+2}, v{CML}
            s_nop 1
            v_add_f32_dpp v{CML+2}, v{CML+2}, v{CML+2} quad_perm:[1,0,3,2] row_mask:0xf bank_mask:0xf
            s_nop 1
            v_add_f32_dpp v{CML+2}, v{CML+2}, v{CML+2} quad_perm:[2,3,0,1] row_mask:0xf bank_mask:0xf
            v_rcp_f32 v{CML+2}, v{CML+2}
            s_nop 0
            v_mul_f32 v{CML}, v{CML}, v{CML+2}""")
            for k in range(4): A(f"ds_bpermute_b32 v{CF+k}, v{CBP}, v{CML} offset:{64*k}")
        A("s_waitcnt lgkmcnt(0)")
        A(f"{label}_yw:")
        for k in range(4*NB):
            A(f"s_waitcnt vmcnt({4*NB-1-k})")
            tagacc(XT+4, [CY+4*k+1, CY+4*k+3], first=(k==0))
            for h in range(2):
                r=CY+4*k+2*h
                A(f"v_and_b32 v{r+1}, 0xffff0000, v{r}\nv_lshlrev_b32 v{r}, 16, v{r}")
            for j in range(4): A(f"v_{'mul' if k==0 else 'fmac'}_f32 v{XT+j}, v{CY+4*k+j}, v{CF+k}")
        test(XT+4, f"{label}_yok")
        yloads()
        A(f"s_branch {label}_yw\n{label}_yok:")
    if stamps!=2: stamp()
    red4(XT)
    A(f"""v_cvt_pk_bf16_f32 v{XT}, v{XT}, v{XT}
    v_lshlrev_b32 v{XT}, 16, v{XT}
    v_mul_f32 v{XT}, v{XT}, v{CG}
    v_cvt_pk_bf16_f32 v{XT}, v{XT}, v{XT}
    v_lshlrev_b32 v{XT}, 16, v{XT}
    v_add_f32 v{XT}, v{XT}, v{CX}
    v_cvt_pk_bf16_f32 v{XT}, v{XT}, v{XT}
    s_mov_b32 exec_lo, 0x000f000f
    s_mov_b32 exec_hi, 0x000f000f
    global_store_short v{COUT}, v{XT}, s[{P_OUT}:{P_OUT+1}] {OF}
    s_mul_i32 s{S_T}, s{S_CB}, 28
    s_cmp_lg_u32 s{S_CG}, s{S_T}
    s_cbranch_scc1 {label}_done
    v_mov_b32 v{XT+1}, 64
    s_mov_b64 exec, 1
    global_atomic_add v{V_ZERO}, v{XT+1}, s[{P_WS}:{P_WS+1}] sc1""")
    A(f"{label}_done:")
    if trace:
        A(f"""s_mov_b64 exec, -1
        s_memrealtime s[92:93]
        s_waitcnt lgkmcnt(0)
        v_writelane_b32 v253, s90, 62
        v_writelane_b32 v253, s92, 63
        s_lshl_b32 s{S_T}, s2, 2
        s_add_u32 s{S_T}, s{S_T}, s{S_W}
        s_lshl_b32 s{S_T}, s{S_T}, 8
        s_add_u32 s{S_T}, s{S_T}, 0x10000000
        v_lshlrev_b32 v254, 2, v{V_LANE}
        v_add_u32 v254, s{S_T}, v254
        global_store_dword v254, v253, s[{P_WS}:{P_WS+1}]""")
    if DELAY:
        A(f"""s_cmp_lg_u32 s2, 0
        s_cbranch_scc1 {label}_end
        {label}_dl:
        s_memrealtime s[92:93]
        s_waitcnt lgkmcnt(0)
        s_sub_u32 s92, s92, s94
        s_cmp_lt_u32 s92, {DELAY}
        s_cbranch_scc1 {label}_dl""")
    if stamps:
        A("s_mov_b64 exec, -1")
        stamp()
        assert nst[0]<=15
        A(f"s_cmp_lg_u32 s{S_W}, {STW}\ns_cbranch_scc1 {label}_end")
        A(f"s_lshl_b32 s{S_T}, s2, 7\ns_add_u32 s{S_T}, s{S_T}, 0x10000000\ns_add_u32 s{P_WS}, s{P_WS}, s{S_T}\ns_addc_u32 s{P_WS+1}, s{P_WS+1}, 0")
        A("s_waitcnt lgkmcnt(0) vmcnt(0)\nv_mov_b32 v1, 0")
        for k in range(nst[0]):
            A(f"v_mov_b32 v{KST+2*k}, s{S_ST+2*k}\nv_mov_b32 v{KST+2*k+1}, s{S_ST+2*k+1}\nglobal_store_dwordx2 v1, v[{KST+2*k}:{KST+2*k+1}], s[{P_WS}:{P_WS+1}] offset:{8*k}")
        A(f"s_mul_i32 s{S_T}, s{S_NU}, 100\ns_add_u32 s{S_T}, s{S_T}, s{S_ST}\nv_mov_b32 v{KST+40}, s{S_T}\nv_mov_b32 v{KST+41}, s{S_ST+1}\nglobal_store_dwordx2 v1, v[{KST+40}:{KST+41}], s[{P_WS}:{P_WS+1}] offset:120")
        if stamps==1: A(f"s_getreg_b32 s{S_T}, hwreg(HW_REG_XCC_ID)\ns_and_b32 s{S_T}, s{S_T}, 15\ns_mul_i32 s{S_T}, s{S_T}, 100\ns_add_u32 s{S_T}, s{S_T}, s{S_ST}\nv_mov_b32 v{KST+44}, s{S_T}\nv_mov_b32 v{KST+45}, s{S_ST+1}\nglobal_store_dwordx2 v1, v[{KST+44}:{KST+45}], s[{P_WS}:{P_WS+1}] offset:112")
        A(f"v_mov_b32 v{KST+42}, s{S_SPIN}\ns_mov_b64 exec, 1\nglobal_atomic_add v1, v{KST+42}, s[{P_DBG}:{P_DBG+1}]")
    A(f"{label}_end:\ns_endpgm")
    return A.text()

def kdesc(label, vgpr, accum, sgpr):
    return f""".amdhsa_kernel {label}
  .amdhsa_next_free_vgpr {vgpr}
  .amdhsa_next_free_sgpr {sgpr}
  .amdhsa_accum_offset {accum}
  .amdhsa_group_segment_fixed_size 0
  .amdhsa_kernarg_size 104
  .amdhsa_user_sgpr_count 2
  .amdhsa_user_sgpr_kernarg_segment_ptr 1
  .amdhsa_system_sgpr_workgroup_id_x 1
  .amdhsa_float_denorm_mode_32 3
.end_amdhsa_kernel
"""
DOC=""";
;   * hand-offs between workgroups are 8-byte {data, tag} granules written / read with sc1; the tag comes
"""
def full(stamps=0, **kw):
    ref=open(f"cdna_kernels/{NAME}.s.ref").read().split("\n")
    hdr=[l for l in ref if l.startswith(";") and "@launch" not in l]
    main=NAME+"_kernel"
    t="\n".join(hdr)+"\n"
    t+=f"; @launch grid=(256,1,1) block=(256,1,1) lds={LDS_TOTAL}\n"
    t+=DOC+'.amdgcn_target "amdgcn-amd-amdhsa--gfx950"\n.text\n'
    t+=gen_main(main, stamps, **kw)
    t+='.section .rodata,"a"\n.p2align 6\n'+kdesc(main, 256+224, 256, 102)
    return t, [(main,256)]
def variant(name, **kw):
    t,ks=full(0, **kw)
    open(f"work/{name}.s","w").write(t)
    build(t,name,ks)
    t,ks=full(1, **kw); build(t,name+"_s",ks)
    t,ks=full(2, **kw); build(t,name+"_p",ks)
    t,ks=full(3, **kw); build(t,name+"_t",ks)
if __name__=="__main__":
    for p in range(28): assert (p*37)>>8 == p//7
    for p in range(448): assert (p*4682)>>16 == p//14
    if len(sys.argv)>1:
        for spec in sys.argv[1:]:
            nm,_,args=spec.partition(":")
            variant(nm,**eval("dict(%s)"%args))
    else:
        t,ks=full(0)
        open(f"cdna_kernels/{NAME}.s","w").write(t)
    print("LDS",LDS_TOTAL)
```

```python
import sys, struct
from asmlib import build
NAME="recurrent_scan__mha_block_cached__dense_activation_squared_relu__decode"
def f2u(x): return struct.unpack("<I", struct.pack("<f", x))[0]
LOG2E=1.4426950408889634
CSC=f2u(LOG2E/16.0)
NEG=0xff7fffff
class E:
    def __init__(s): s.o=[]
    def __call__(s, t):
        for ln in t.split("\n"):
            ln=ln.strip()
            if ln: s.o.append(("" if ln.endswith(":") or ln.startswith(";") else "    ")+ln)
    def text(s): return "\n".join(s.o)+"\n"

V_TID=0; V_LANE=1; V_OFF=2; V_OFF2=3
MK=4; QW=8; OA=12; LA=16; VM=17; PA=18; PB=19
SV=20
XT=32
BA=40; BB=44
KST=48; VST=80
W1D=112
KX=W1D; VX=W1D+32
WA=200
V_TRA=207
V_T=208
QALL=232
V_LDSR=232; V_QPA=233; V_B1=234; V_TAG=235; V_ZERO=236; V_CLM=237; V_ONE=238
V_AW=239; V_AR=240; V_YA=241; CMA=242; CBP=243; CCOL=244; COUT=245; CX=246; CB2=247; CG=248
PUB=20; SG=24; S1=28; S2=29; V_SCL=30; PA2=249; PB2=250; VU=251; V_SCA=252
QN=249
QNX=W1D+64
QPL=W1D+32+0
S_W=3; S_K=4; S_V=6; S_LB=8; S_RO=9; S_IT=10; S_M=11; S_T=12; S_H=13; S_B=14; S_SP=15
P_X=16;P_K=18;P_V=20;P_WQ=22;P_WO=24;P_W1=28;P_B1=30;P_W2=32;P_B2=34;P_OUT=36;P_DBG=38;P_WS=40
S_NU=42; S_FS=43; S_C=44; S_T2=45; S_T3=46; S_J=47; S_ROT=48; S_TAG=49; S_STG=50; S_PART=51; S_WOP=52; S_ROLE=54; S_U=55; S_SPIN=56; S_REM=57
S_CB=58; S_CG=59; S_Y=60; S_Z=62; S_CNT=26; S_TG=96; S_G=97; S_PH=98; S_NI=99; S_TI=22; S_NKI=23; S_WIH=100; S_NSX=28; S_SC=30
S_ST=64
STG=131072; STGW=7168
L_SM=STG+4*STGW
L_MS=L_SM; L_ML=L_SM+64; L_H=L_SM+256; HW=512
LDS_TOTAL=L_H+4*HW
AROW=528
QXOFF=0x1000; MLOFF=0x20000; CNTOFF=0x30000; ZOFF=0x100000; YOFF=0x200000; SCOFF=0x400000
NCONS=28
SPIN_MAX=1<<18

def gen_main(label, stamps=0, WF="nt", KF="nt", VF="nt", MAP=4, STW=0, QPRE=4, QSP=0, FSP=3, ROT=None, WOF='', DELAY=0, JORD=0, NB=1, NS=12, TH=0, OF='', ROTH=0, ABL=0, MO=1, ORD=1, MUL=1, FP=0, PD=8, MLR=1, NSK=7, SF='sc1', PFW=0, VT=0):
    NSV=NSK
    assert NB==1 and KF==VF
    WPG=64 if NB==4 else 16
    POOL=256*NB-WPG*NS
    NP=64*NB
    YB=NP*64
    if ROT is None: ROT=2
    cnt=[0]
    A=E()
    nst=[0]
    trace = stamps==3
    if trace: stamps=0
    def stamp():
        if stamps:
            A(f"s_memrealtime s[{S_ST+2*nst[0]}:{S_ST+2*nst[0]+1}]"); nst[0]+=1
    def pstamp(k):
        if stamps==2:
            A(f"s_memrealtime s[{S_ST+2*k}:{S_ST+2*k+1}]"); nst[0]=max(nst[0],k+1)
    T=V_T; U=T+8
    A(f".globl {label}\n.p2align 8\n.type {label},@function\n{label}:")
    A(f"s_cmp_ge_u32 s2, 256\ns_cbranch_scc1 {label}_end")
    stamp()
    if trace: A("s_memrealtime s[90:91]\nv_mov_b32 v253, 0")
    if DELAY: A("s_memrealtime s[94:95]")
    A("s_load_dwordx16 s[16:31], s[0:1], 0\ns_load_dwordx2 s[40:41], s[0:1], 96\ns_load_dwordx8 s[32:39], s[0:1], 64")
    A(f"v_lshrrev_b32 v{XT}, 6, v0\nv_and_b32 v{V_LANE}, 63, v0\nv_lshlrev_b32 v{V_OFF}, 4, v{V_LANE}")
    A(f"v_readfirstlane_b32 s{S_W}, v{XT}")
    if MAP==0:
        A(f"""s_and_b32 s{S_H}, s2, 7
        s_lshl_b32 s{S_H}, s{S_H}, 1
        s_bfe_u32 s{S_T}, s2, 0x10003
        s_or_b32 s{S_H}, s{S_H}, s{S_T}
        s_bfe_u32 s{S_B}, s2, 0x20004
        s_lshr_b32 s{S_SP}, s2, 6""")
    elif MAP in (1,4):
        if MAP==1: A(f"s_bfe_u32 s{S_H}, s2, 0x20001\ns_mov_b32 s{S_T}, s2")
        else: A(f"""s_lshr_b32 s{S_T}, s2, 1
        s_xor_b32 s{S_H}, s2, s{S_T}
        s_and_b32 s{S_H}, s{S_H}, 1
        s_and_b32 s{S_B}, s{S_T}, 2
        s_or_b32 s{S_H}, s{S_H}, s{S_B}""")
        A(f"""s_lshl_b32 s{S_H}, s{S_H}, 2
        s_bfe_u32 s{S_B}, s2, 0x20003
        s_or_b32 s{S_H}, s{S_H}, s{S_B}
        s_bfe_u32 s{S_B}, s2, 0x20005
        s_lshr_b32 s{S_SP}, s2, 7
        s_lshl_b32 s{S_SP}, s{S_SP}, 1
        s_and_b32 s{S_T}, s{S_T}, 1
        s_or_b32 s{S_SP}, s{S_SP}, s{S_T}""")
    elif MAP==3:
        A(f"""s_bfe_u32 s{S_SP}, s2, 0x20001
        s_xor_b32 s{S_H}, s2, s{S_SP}
        s_and_b32 s{S_H}, s{S_H}, 1
        s_lshl_b32 s{S_H}, s{S_H}, 3
        s_bfe_u32 s{S_T}, s2, 0x30003
        s_or_b32 s{S_H}, s{S_H}, s{S_T}
        s_lshr_b32 s{S_B}, s2, 6""")
    A(f"v_add_u32 v{V_OFF2}, 0x1000, v{V_OFF}\nv_mov_b32 v{V_ZERO}, 0")
    if JORD==0: A(f"s_lshl_b32 s{S_J}, s{S_B}, 2\ns_add_u32 s{S_J}, s{S_J}, s{S_SP}")
    else: A(f"s_lshl_b32 s{S_J}, s{S_SP}, 2\ns_add_u32 s{S_J}, s{S_J}, s{S_B}")
    A(f"s_lshl_b32 s{S_G}, s{S_B}, 4\ns_add_u32 s{S_G}, s{S_G}, s{S_H}")
    if NB==4: A(f"s_mov_b32 s{S_G}, s{S_H}")
    else: A(f"s_mov_b32 s{S_J}, s{S_SP}")
    if JORD==2: A(f"s_lshl_b32 s{S_U}, s{S_W}, 2\ns_add_u32 s{S_U}, s{S_U}, s{S_J}")
    else: A(f"s_lshl_b32 s{S_U}, s{S_J}, 2\ns_add_u32 s{S_U}, s{S_U}, s{S_W}")
    A(f"s_mov_b32 s{S_WIH}, s{S_U}")
    if ORD==0: A(f"s_mul_i32 s{S_U}, s{S_U}, {NS}")
    if ORD==2: A(f"s_lshl_b32 s{S_U}, s{S_U}, 1")
    if ROTH: A(f"s_lshl_b32 s{S_ROT}, s{S_H}, 2\ns_add_u32 s{S_ROT}, s{S_ROT}, s{S_B}\ns_mul_i32 s{S_ROT}, s{S_ROT}, {ROT}")
    else: A(f"s_mul_i32 s{S_ROT}, s{S_G}, {ROT}")
    A(f"""s_lshl_b32 s{S_T}, s{S_G}, 21
    s_lshl_b32 s{S_LB}, s{S_W}, 15
    s_mul_i32 s{S_STG}, s{S_W}, {STGW}
    s_add_u32 s{S_STG}, s{S_STG}, {STG}
    s_lshl_b32 s{S_FS}, s{S_B}, 4
    s_add_u32 s{S_FS}, s{S_FS}, s{S_H}
    s_mov_b32 s{S_RO}, 0""")
    A(f"v_lshrrev_b32 v{T}, 4, v{V_LANE}\nv_and_b32 v{T+1}, 15, v{V_LANE}")
    def kvbase():
        A(f"""s_load_dword s{S_TAG}, s[{P_WS}:{P_WS+1}], 0
        s_add_u32 s{P_K}, s{P_K}, s{S_T}
        s_addc_u32 s{P_K+1}, s{P_K+1}, 0
        s_add_u32 s{P_V}, s{P_V}, s{S_T}
        s_addc_u32 s{P_V+1}, s{P_V+1}, 0""")
    def setptr(adv=True):
        A(f"""s_add_u32 s{S_V}, s{S_U}, s{S_ROT}
        s_and_b32 s{S_V}, s{S_V}, 0x7f
        s_lshl_b32 s{S_V}, s{S_V}, 14
        s_add_u32 s{S_K}, s{P_K if adv else S_SC}, s{S_V}
        s_addc_u32 s{S_K+1}, s{(P_K if adv else S_SC)+1}, 0
        s_add_u32 s{S_V}, s{S_K}, 0x2000
        s_addc_u32 s{S_V+1}, s{S_K+1}, 0""")
        if adv: A(f"s_add_u32 s{S_U}, s{S_U}, 16")
    def direct(reg, sb, js=range(8)):
        for j in js:
            vo = V_OFF if j<4 else V_OFF2
            A(f"global_load_dwordx4 v[{reg+4*j}:{reg+4*j+3}], v{vo}, s[{sb}:{sb+1}] offset:{(j%4)*1024} {KF if sb==S_K else VF}")
    def dma(sb, m0src):
        A(m0src+"\ns_nop 0")
        for j in range(8):
            vo = V_OFF if j<4 else V_OFF2
            if j==4: A("s_add_u32 m0, m0, 0x1000\ns_nop 0")
            A(f"global_load_lds_dwordx4 v{vo}, s[{sb}:{sb+1}] offset:{(j%4)*1024} {KF if sb==S_K else VF}")
    QL=V_T-0
    QL=W1D+64-8
    XA=W1D; XS=W1D+14; TB=W1D+28; F=VST
    S=U+4; MEAN=S+4; RD=S+5
    A(f"""s_cmp_eq_u32 s{S_SP}, {QSP}
    s_cselect_b32 s{S_ROLE}, 1, 0
    s_cmp_lg_u32 s{S_SP}, {FSP}
    s_cbranch_scc1 {label}_rset
    s_cmp_lt_u32 s{S_FS}, {0 if ABL&2 else 56}
    s_cselect_b32 s{S_ROLE}, 2, 0
    {label}_rset:
    s_cmp_lg_u32 s{S_ROLE}, 0
    s_cbranch_scc1 {label}_role
    s_waitcnt lgkmcnt(0)""")
    pstamp(1)
    kvbase(); setptr()
    if PFW!=2: direct(KST,S_K)
    if PFW:
        assert (QSP,FSP)==(0,3)
        A(f"""s_cmp_eq_u32 s{S_SP}, 3
        s_cbranch_scc1 {label}_nopf
        s_lshl_b32 s{S_T2}, s{S_G}, 3
        s_add_u32 s{S_T2}, s{S_T2}, s{S_WIH}
        s_sub_u32 s{S_T2}, s{S_T2}, 4
        s_mul_i32 s{S_T2}, s{S_T2}, 7168
        v_add_u32 v{T+2}, s{S_T2}, v{V_OFF}
        v_add_u32 v{T+3}, s{S_T2}, v{V_OFF2}""")
        for i in range(7): A(f"global_load_dwordx4 v[{VX+4*i}:{VX+4*i+3}], v{T+2 if i<4 else T+3}, s[{P_WO}:{P_WO+1}] offset:{1024*(i%4)}")
        A(f"{label}_nopf:")
    if PFW==2: direct(KST,S_K)
    A(f"s_branch {label}_stream0")
    A(f"{label}_role:")
    A(f"v_mul_u32_u24 v{T+2}, 896, v{T}\nv_mul_u32_u24 v{T+3}, 56, v{T+1}\nv_add_u32 v{T+2}, v{T+2}, v{T+3}")
    A(f"""s_mul_i32 s{S_T2}, s{S_W}, 224
    v_and_b32 v{T+6}, 3, v{V_LANE}
    v_mul_u32_u24 v{T+3}, 896, v{T+6}
    v_lshl_add_u32 v{T+3}, v{T}, 3, v{T+3}
    v_add_u32 v{T+3}, s{S_T2}, v{T+3}
    v_lshlrev_b32 v{T+6}, 6, v{T+6}
    s_add_u32 m0, s{S_LB}, 0x4000""")
    def xloads():
        for i in range(3): A(f"global_load_dwordx4 v[{XS+4*i}:{XS+4*i+3}], v{T+2}, s[{P_X}:{P_X+1}] offset:{16*i}")
        A(f"global_load_dwordx2 v[{XS+12}:{XS+13}], v{T+2}, s[{P_X}:{P_X+1}] offset:48")
        for i in range(7): A(f"global_load_dwordx2 v[{XA+2*i}:{XA+2*i+1}], v{T+3}, s[{P_X}:{P_X+1}] offset:{32*i}")
    def rsum(r):
        for k in (8,4,2,1): A(f"s_nop 1\nv_add_f32_dpp v{r}, v{r}, v{r} row_ror:{k} row_mask:0xf bank_mask:0xf")
    def stats(nyounger, FF):
        A(f"s_waitcnt vmcnt({nyounger})")
        for i in range(14): A(f"v_lshlrev_b32 v{FF+2*i}, 16, v{XS+i}\nv_and_b32 v{FF+2*i+1}, 0xffff0000, v{XS+i}")
        A(f"v_add_f32 v{S}, v{FF}, v{FF+1}\nv_add_f32 v{S+1}, v{FF+2}, v{FF+3}")
        for i in range(4,28,2): A(f"v_add_f32 v{S}, v{S}, v{FF+i}\nv_add_f32 v{S+1}, v{S+1}, v{FF+i+1}")
        A(f"v_add_f32 v{S}, v{S}, v{S+1}")
        rsum(S)
        A(f"v_mul_f32 v{S}, {hex(f2u(1.0/448))}, v{S}")
        for i in range(28): A(f"v_sub_f32 v{FF+i}, v{FF+i}, v{S}")
        A(f"v_mul_f32 v{S+1}, v{FF}, v{FF}\nv_mul_f32 v{S+2}, v{FF+1}, v{FF+1}")
        for i in range(2,28,2): A(f"v_fmac_f32 v{S+1}, v{FF+i}, v{FF+i}\nv_fmac_f32 v{S+2}, v{FF+i+1}, v{FF+i+1}")
        A(f"v_add_f32 v{S+1}, v{S+1}, v{S+2}")
        rsum(S+1)
        A(f"""v_mul_f32 v{S+1}, {hex(f2u(1.0/448))}, v{S+1}
        v_cvt_pk_bf16_f32 v{S+1}, v{S+1}, v{S}
        v_and_b32 v{MEAN}, 0xffff0000, v{S+1}
        v_lshlrev_b32 v{S+1}, 16, v{S+1}
        v_add_f32 v{S+1}, {hex(f2u(1e-5))}, v{S+1}
        v_cvt_pk_bf16_f32 v{S+1}, v{S+1}, v{S+1}
        v_lshlrev_b32 v{S+1}, 16, v{S+1}
        v_sqrt_f32 v{S+1}, v{S+1}
        s_nop 0
        v_cvt_pk_bf16_f32 v{S+1}, v{S+1}, v{S+1}
        v_lshlrev_b32 v{S+1}, 16, v{S+1}
        v_rcp_f32 v{RD}, v{S+1}
        ds_bpermute_b32 v{MEAN}, v{T+6}, v{MEAN}
        ds_bpermute_b32 v{RD}, v{T+6}, v{RD}
        s_waitcnt vmcnt({nyounger-7})""")
        for i in range(14): A(f"v_lshlrev_b32 v{FF+2*i}, 16, v{XA+i}\nv_and_b32 v{FF+2*i+1}, 0xffff0000, v{XA+i}")
        A("s_waitcnt lgkmcnt(0)")
        for i in range(28): A(f"v_sub_f32 v{FF+i}, v{FF+i}, v{MEAN}")
        for i in range(14): A(f"v_cvt_pk_bf16_f32 v{XA+i}, v{FF+2*i}, v{FF+2*i+1}")
        for i in range(14): A(f"v_lshlrev_b32 v{FF+2*i}, 16, v{XA+i}\nv_and_b32 v{FF+2*i+1}, 0xffff0000, v{XA+i}")
        for i in range(28): A(f"v_mul_f32 v{FF+i}, v{FF+i}, v{RD}")
        for i in range(14): A(f"v_cvt_pk_bf16_f32 v{XA+i}, v{FF+2*i}, v{FF+2*i+1}")
    def mktag(dst): A(f"s_lshr_b32 s{dst}, s{S_TAG}, 8\ns_add_u32 s{dst}, s{dst}, 1\ns_or_b32 s{dst}, s{dst}, 0x80000000")
    A(f"s_cmp_eq_u32 s{S_ROLE}, 2\ns_cbranch_scc1 {label}_ffn")
    A(f"""s_mul_i32 s{S_T2}, s{S_W}, {112*8192}
    s_lshl_b32 s{S_T3}, s{S_H}, 9
    s_add_u32 s{S_T2}, s{S_T2}, s{S_T3}
    s_lshl_b32 s{S_T3}, s{S_B}, 7
    s_add_u32 s{S_T2}, s{S_T2}, s{S_T3}
    v_lshrrev_b32 v{T+4}, 3, v{V_LANE}
    v_lshlrev_b32 v{T+4}, 13, v{T+4}
    v_and_b32 v{T+5}, 7, v{V_LANE}
    v_lshl_add_u32 v{T+4}, v{T+5}, 4, v{T+4}
    v_add_u32 v{T+4}, s{S_T2}, v{T+4}
    s_mov_b32 s{S_T2}, 0x10000
    v_lshrrev_b32 v{T+5}, 2, v{V_LANE}
    v_lshlrev_b32 v{T+5}, 7, v{T+5}
    v_and_b32 v{U+3}, 3, v{V_LANE}
    v_lshl_add_u32 v{T+5}, v{U+3}, 3, v{T+5}
    s_add_u32 s{S_T3}, s{S_LB}, 0x4000
    v_add_u32 v{T+5}, s{S_T3}, v{T+5}
    s_waitcnt lgkmcnt(0)""")
    pstamp(1)
    A(f"""s_or_b32 s{S_T3}, s{S_FS}, s{S_W}
    s_cbranch_scc1 {label}_noand
    v_mov_b32 v{XT+5}, 0xffffff00
    s_mov_b64 exec, 1
    global_atomic_and v{V_ZERO}, v{XT+5}, s[{P_WS}:{P_WS+1}] sc1
    s_mov_b64 exec, -1
    {label}_noand:""")
    xloads()
    for i in range(14):
        if ABL&4: A(f"global_load_lds_dwordx4 v{V_OFF}, s[{P_WQ}:{P_WQ+1}]")
        else: A(f"global_load_lds_dwordx4 v{T+4}, s[{P_WQ}:{P_WQ+1}] {WF}")
        if i<13: A(f"s_add_u32 m0, m0, 0x400\nv_add_u32 v{T+4}, s{S_T2}, v{T+4}")
    kvbase(); setptr()
    direct(KST,S_K,range(QPRE))
    A(f"""v_add_u32 v{U}, s{S_STG}, v{V_OFF}
    s_lshl_b32 s{S_T2}, s{S_W}, 9
    s_add_u32 s{S_T2}, s{S_T2}, {STG}
    v_lshlrev_b32 v{U+2}, 4, v{T+1}
    v_add_u32 v{U+2}, s{S_T2}, v{U+2}
    v_lshl_add_u32 v{U+1}, v{T}, 2, v{U+2}
    s_lshl_b32 s{S_T2}, s{S_H}, 12
    s_lshl_b32 s{S_T3}, s{S_B}, 8
    s_add_u32 s{S_T2}, s{S_T2}, s{S_T3}
    s_lshl_b32 s{S_T3}, s{S_W}, 6
    s_add_u32 s{S_T2}, s{S_T2}, s{S_T3}
    s_add_u32 s{S_T2}, s{S_T2}, {QXOFF}
    v_lshlrev_b32 v{T+2}, 10, v{T}
    v_lshl_add_u32 v{T+2}, v{T+1}, 2, v{T+2}
    v_add_u32 v{T+2}, s{S_T2}, v{T+2}
    s_lshl_b32 s{S_T2}, s{S_G}, 8
    s_add_u32 s{S_T2}, s{S_T2}, {CNTOFF}
    v_mov_b32 v{T+4}, s{S_T2}""")
    pstamp(2)
    stats(7+14+QPRE, F)
    A(f"s_waitcnt vmcnt({QPRE})")
    pstamp(3)
    QD=F
    for i in range(7):
        for k in range(4): A(f"ds_read_b64_tr_b16 v[{TB+8*i+2*k}:{TB+8*i+2*k+1}], v{T+5} offset:{2048*i+32*k}")
    for i in range(7):
        A(f"s_waitcnt lgkmcnt({min(15,4*(6-i))})")
        for k in range(4):
            c = "0" if i==0 else f"v[{QD+4*k}:{QD+4*k+3}]"
            A(f"v_mfma_f32_16x16x16_bf16 v[{QD+4*k}:{QD+4*k+3}], v[{XA+2*i}:{XA+2*i+1}], v[{TB+8*i+2*k}:{TB+8*i+2*k+1}], {c}")
    A("s_mov_b64 exec, 0xffff\ns_nop 3")
    for k in range(4): A(f"ds_write_b128 v{U}, v[{QD+4*k}:{QD+4*k+3}] offset:{512*k}")
    A("s_mov_b64 exec, -1\ns_waitcnt lgkmcnt(0)\ns_barrier")
    for w in range(4): A(f"ds_read_b32 v{XT+w}, v{U+1} offset:{STGW*w}")
    mktag(S_T2)
    A(f"""v_mov_b32 v{U+3}, s{S_T2}
    s_or_b32 s{S_T3}, s{S_W}, s{S_B if NB==4 else S_W}
    s_waitcnt lgkmcnt(0)
    v_add_f32 v{XT}, v{XT}, v{XT+1}
    v_add_f32 v{XT+2}, v{XT+2}, v{XT+3}
    v_add_f32 v{XT}, v{XT}, v{XT+2}
    v_mov_b32 v{XT+3}, v{U+3}
    v_lshlrev_b32 v{XT+4}, 12, v{U+3}
    v_mov_b32_dpp v{XT+1}, v{XT} quad_perm:[1,0,3,2] row_mask:0xf bank_mask:0xf
    v_cvt_pk_bf16_f32 v{XT+2}, v{XT}, v{XT+1}
    s_mov_b32 exec_lo, 0x55555555
    s_mov_b32 exec_hi, 0x55555555
    global_store_dwordx2 v{T+2}, v[{XT+2}:{XT+3}], s[{P_WS}:{P_WS+1}] sc1
    s_mov_b64 exec, 1
    s_cmp_lg_u32 s{S_T3}, 0
    s_cbranch_scc1 {label}_noinit
    global_store_dword v{T+4}, v{XT+4}, s[{P_WS}:{P_WS+1}] sc1
    {label}_noinit:
    s_mov_b64 exec, -1""")
    stamp()
    direct(KST,S_K,range(QPRE,8))
    A(f"s_branch {label}_stream0")
    A(f"{label}_ffn:")
    A(f"""s_mul_i32 s{S_T2}, s{S_W}, {112*3584}
    s_lshl_b32 s{S_T3}, s{S_FS}, 6
    s_add_u32 s{S_T2}, s{S_T2}, s{S_T3}
    v_lshrrev_b32 v{T+4}, 2, v{V_LANE}
    v_mul_u32_u24 v{T+4}, 3584, v{T+4}
    v_and_b32 v{T+5}, 3, v{V_LANE}
    v_lshl_add_u32 v{T+4}, v{T+5}, 4, v{T+4}
    v_add_u32 v{T+4}, s{S_T2}, v{T+4}
    s_mul_i32 s{S_T2}, s{S_FS}, {32*896}
    s_mul_i32 s{S_T3}, s{S_W}, 224
    s_add_u32 s{S_T2}, s{S_T2}, s{S_T3}""")
    for i in range(7):
        A(f"""v_add_u32 v{TB+i}, {64*i}, v{V_LANE}
        v_mul_u32_u24 v{U}, 4682, v{TB+i}
        v_lshrrev_b32 v{U}, 16, v{U}
        v_mul_u32_u24 v{U}, 672, v{U}
        v_lshl_add_u32 v{TB+i}, v{TB+i}, 4, v{U}
        v_add_u32 v{TB+i}, s{S_T2}, v{TB+i}""")
    A(f"""s_mov_b32 s{S_T2}, {16*3584}
    s_lshl_b32 s{S_T3}, s{S_FS}, 6
    v_lshlrev_b32 v{T+7}, 2, v{T+1}
    v_add_u32 v{T+7}, s{S_T3}, v{T+7}
    s_waitcnt lgkmcnt(0)""")
    kvbase(); setptr()
    direct(KST,S_K)
    xloads()
    for i in range(7):
        A(f"global_load_lds_dwordx4 v{TB+i}, s[{P_W2}:{P_W2+1}] {WF}\ns_add_u32 m0, m0, 0x400\ns_nop 0")
    A(f"s_add_u32 m0, s{S_LB}, 0x6000\ns_nop 0")
    for i in range(7):
        A(f"global_load_lds_dwordx4 v{T+4}, s[{P_W1}:{P_W1+1}] {WF}")
        if i<6: A(f"s_add_u32 m0, m0, 0x400\nv_add_u32 v{T+4}, s{S_T2}, v{T+4}")
    A(f"global_load_dword v{V_B1}, v{T+7}, s[{P_B1}:{P_B1+1}]")
    A(f"{label}_stream0:")
    direct(VST,S_V)
    setptr()
    pstamp(5)
    A(f"s_lshl_b32 s{S_T3}, s{S_H}, 12\ns_add_u32 s{S_T3}, s{S_T3}, {QXOFF}\nv_and_b32 v{V_QPA}, 31, v{V_LANE}\nv_lshlrev_b32 v{V_QPA}, 5, v{V_QPA}\nv_add_u32 v{V_QPA}, s{S_T3}, v{V_QPA}")
    if NB==1: A(f"s_lshl_b32 s{S_T3}, s{S_B}, 10\nv_add_u32 v{V_QPA}, s{S_T3}, v{V_QPA}")
    A(f"s_lshl_b32 s{S_T2}, s{S_G}, 8\ns_add_u32 s{S_T2}, s{S_T2}, {CNTOFF}\ns_add_u32 s{S_CNT}, s{P_WS}, s{S_T2}\ns_addc_u32 s{S_CNT+1}, s{P_WS+1}, 0\nv_mov_b32 v{V_ONE}, 1")
    A(f"""v_and_b32 v{U}, 1, v{V_LANE}
    v_mov_b32 v{U+1}, 0xffff
    v_lshlrev_b32 v{U}, 4, v{U}
    v_lshlrev_b32 v{U+1}, v{U}, v{U+1}
    v_lshrrev_b32 v{U+3}, 1, v{V_LANE}
    v_xor_b32 v{U+3}, v{U+3}, v{V_LANE}
    v_and_b32 v{U+3}, 8, v{U+3}
    v_bfe_u32 v{U+2}, v{V_LANE}, 1, 2
    v_or_b32 v{U+2}, v{U+2}, v{U+3}""")
    for j in range(4):
        A(f"v_cmp_eq_u32 vcc, {j}, v{U+2}\ns_nop 1\nv_cndmask_b32 v{MK+j}, 0, v{U+1}, vcc")
    A(f"v_add_u32 v{V_LDSR}, s{S_LB}, v{V_OFF}")
    A(f"v_mov_b32 v{LA}, 0\nv_mov_b32 v{VM}, {hex(NEG)}\ns_mov_b32 s{S_M}, {hex(NEG)}\ns_mov_b32 s{S_C}, {hex(CSC)}")
    for j in range(4): A(f"v_mov_b32 v{OA+j}, 0")
    A(f"s_mov_b32 s{S_IT}, 0\ns_mov_b32 s{S_NU}, 0x7fff\ns_mov_b32 s{S_SPIN}, 0\ns_waitcnt lgkmcnt(0)")
    mktag(S_TAG)
    A(f"v_mov_b32 v{V_TAG}, s{S_TAG}\ns_and_b32 s{S_TG}, s{S_TAG}, 0xfffff")
    dma(S_K, f"s_mov_b32 m0, s{S_LB}")
    pstamp(6)
    for i in range(7):
        A(f"""v_add_u32 v{WA+i}, {64*i}, v{V_LANE}
        v_mul_u32_u24 v{U}, 4682, v{WA+i}
        v_lshrrev_b32 v{U}, 16, v{U}
        v_mul_u32_u24 v{U+1}, 14, v{U}
        v_sub_u32 v{WA+i}, v{WA+i}, v{U+1}
        v_and_b32 v{U+1}, 3, v{U}
        v_lshrrev_b32 v{U}, 2, v{U}
        v_lshl_add_u32 v{U}, v{U+1}, 3, v{U}
        v_mul_u32_u24 v{U}, 896, v{U}
        v_lshl_add_u32 v{WA+i}, v{WA+i}, 4, v{U}""")
    A(f"""s_mul_i32 s{S_T}, s{S_H}, {256*896}
    s_mul_i32 s{S_T3}, s{S_W}, 224
    s_add_u32 s{S_T}, s{S_T}, s{S_T3}
    s_add_u32 s{S_WOP}, s{P_WO}, s{S_T}
    s_addc_u32 s{S_WOP+1}, s{P_WO+1}, 0
    s_lshl_b32 s{S_PART}, s{S_H}, {4 if NB==4 else 2}
    s_add_u32 s{S_PART}, s{S_PART}, s{S_J}""")
    dma(S_V, f"s_add_u32 m0, s{S_LB}, 0x2000")
    setptr()
    pstamp(7)
    A(f"s_cmp_eq_u32 s{S_ROLE}, 2\ns_cbranch_scc1 {label}_ffn2\n{label}_ffn2x:")
    dma(S_K, f"s_add_u32 m0, s{S_LB}, 0x4000")
    pstamp(8)
    A(f"""v_bfe_u32 v{V_TRA}, v{V_LANE}, 2, 2
    v_lshl_add_u32 v{V_TRA}, v{T}, 3, v{V_TRA}
    v_mul_u32_u24 v{V_TRA}, 224, v{V_TRA}
    v_and_b32 v{U}, 3, v{V_LANE}
    v_lshl_add_u32 v{V_TRA}, v{U}, 3, v{V_TRA}
    v_add_u32 v{V_TRA}, s{S_STG}, v{V_TRA}
    v_lshlrev_b32 v{V_AW}, 3, v{V_LANE}
    v_add_u32 v{V_AW}, s{S_STG}, v{V_AW}
    v_mul_u32_u24 v{V_AR}, {STGW}, v{U}
    v_bfe_u32 v{U+1}, v{V_LANE}, 2, 2
    v_mul_u32_u24 v{U+1}, {AROW if NB==4 else 0}, v{U+1}
    v_add_u32 v{V_AR}, v{V_AR}, v{U+1}
    v_lshl_add_u32 v{V_AR}, v{T}, 4, v{V_AR}
    v_add_u32 v{V_AR}, {STG}, v{V_AR}""")
    A(f"""s_mul_i32 s{S_T}, s{S_W}, {7*4096}
    s_lshl_b32 s{S_T3}, s{S_PART}, 6
    s_add_u32 s{S_T}, s{S_T}, s{S_T3}
    s_mul_i32 s{S_T3}, s{S_B}, {28*4096}
    s_add_u32 s{S_T}, s{S_T}, s{S_T3}
    s_add_u32 s{S_T}, s{S_T}, {YOFF}
    v_lshlrev_b32 v{V_YA}, 12, v{T}
    v_and_b32 v{U}, 12, v{V_LANE}
    v_lshl_add_u32 v{V_YA}, v{U}, 2, v{V_YA}
    v_add_u32 v{V_YA}, s{S_T}, v{V_YA}""")
    dma(S_V, f"s_add_u32 m0, s{S_LB}, 0x6000")
    setptr()
    A(f"""s_mul_i32 s{S_CB}, s2, 37
    s_lshr_b32 s{S_CB}, s{S_CB}, 8
    s_lshl_b32 s{S_CG}, s2, 2
    s_add_u32 s{S_CG}, s{S_CG}, s{S_W}
    s_lshl_b32 s{S_T}, s{S_CG}, {14 if NB==4 else 12}
    s_add_u32 s{S_T3}, s{S_T}, {YOFF}
    s_add_u32 s{S_Y}, s{P_WS}, s{S_T3}
    s_addc_u32 s{S_Y+1}, s{P_WS+1}, 0
    s_lshl_b32 s{S_T}, s{S_CG}, 12
    s_add_u32 s{S_T3}, s{S_T}, {ZOFF}
    s_add_u32 s{S_Z}, s{P_WS}, s{S_T3}
    s_addc_u32 s{S_Z+1}, s{P_WS+1}, 0
    s_lshl_b32 s{S_T}, s{2 if MLR else S_CB}, {12 if NB==4 else 10}
    s_add_u32 s{S_T}, s{S_T}, {MLOFF}
    v_add_u32 v{CMA}, s{S_T}, v{V_OFF}
    v_and_b32 v{COUT}, 3, v{V_LANE}
    v_lshlrev_b32 v{COUT}, 3, v{COUT}
    v_lshrrev_b32 v{CCOL}, 5, v{V_LANE}
    v_lshl_add_u32 v{COUT}, v{CCOL}, 1, v{COUT}
    v_bfe_u32 v{CCOL}, v{V_LANE}, 4, 1
    v_lshl_add_u32 v{COUT}, v{CCOL}, 2, v{COUT}
    s_lshl_b32 s{S_T}, s{S_CG}, 5
    v_add_u32 v{COUT}, s{S_T}, v{COUT}
    s_mul_i32 s{S_T}, s{S_CB}, 896
    v_subrev_u32 v{CCOL}, s{S_T}, v{COUT}
    v_and_b32 v{CBP}, 0xfc, v{V_LANE}""")
    A(f"""s_mov_b32 s{S_PH}, 0
    s_mov_b32 s{S_TI}, 4
""")
    if VT: A(f"s_mov_b64 exec, 1\nglobal_load_dword v{V_CLM}, v{V_ZERO}, s[{P_V}:{P_V+1}] nt\nglobal_load_dword v{V_CLM}, v{V_ZERO}, s[{S_WOP}:{S_WOP+1}]\ns_mov_b64 exec, -1")
    direct(KX,S_K)
    pstamp(9)
    QLs=[SV, W1D+64, W1D+72, W1D+80]
    def qpoll():
        for b in range(NB):
            A(f"global_load_dwordx4 v[{QLs[b]}:{QLs[b]+3}], v{V_QPA}, s[{P_WS}:{P_WS+1}] offset:{1024*b} sc1\nglobal_load_dwordx4 v[{QLs[b]+4}:{QLs[b]+7}], v{V_QPA}, s[{P_WS}:{P_WS+1}] offset:{1024*b+16} sc1")
    qpoll()
    direct(VX,S_V)
    pstamp(10)
    A(f"s_waitcnt vmcnt(8)")
    A(f"{label}_qchk:\nv_mov_b32 v{XT}, 0")
    for b in range(NB):
        for i in range(4): A(f"v_bitop3_b32 v{XT}, v{XT}, v{QLs[b]+2*i+1}, v{V_TAG} bitop3:0xf6")
    A(f"""v_cmp_ne_u32 vcc, 0, v{XT}
    s_add_u32 s{S_SPIN}, s{S_SPIN}, 1
    s_cmp_gt_u32 s{S_SPIN}, {SPIN_MAX}
    s_cbranch_vccz {label}_qok
    s_cbranch_scc1 {label}_qok""")
    qpoll()
    A(f"s_waitcnt vmcnt(0)\ns_branch {label}_qchk\n{label}_qok:")
    for i in range(4): A(f"v_mov_b32 v{QW+i}, v{QLs[0]+2*i}")
    A(f"""s_lshl_b32 s{S_T}, s{S_W}, 9
    s_add_u32 s{S_T}, s{S_T}, {L_H}
    v_and_b32 v{V_SCL}, 0xfc, v{V_LANE}
    v_add_u32 v{V_SCL}, s{S_T}, v{V_SCL}""")
    stamp()
    A(f"s_branch {label}_k1")
    A(f"{label}_ffn2:")
    FF=TB+28
    stats(24+7+15, FF)
    A(f"""v_lshrrev_b32 v{U}, 2, v{V_LANE}
    v_lshlrev_b32 v{U}, 6, v{U}
    v_and_b32 v{U+1}, 3, v{V_LANE}
    v_lshl_add_u32 v{U}, v{U+1}, 3, v{U}
    s_add_u32 s{S_T2}, s{S_LB}, 0x6000
    v_add_u32 v{U}, s{S_T2}, v{U}
    s_waitcnt vmcnt(24)""")
    for i in range(7):
        for k in range(2): A(f"ds_read_b64_tr_b16 v[{TB+4*i+2*k}:{TB+4*i+2*k+1}], v{U} offset:{1024*i+32*k}")
    A(f"""v_lshlrev_b32 v{U+1}, 9, v{T}
    v_lshl_add_u32 v{U+1}, v{T+1}, 2, v{U+1}
    v_add_u32 v{U+1}, s{S_STG}, v{U+1}
    v_lshlrev_b32 v{U+3}, 3, v{T+1}
    v_add_u32 v{U+3}, {STG}, v{U+3}
    v_lshl_add_u32 v{U+2}, v{T}, 7, v{U+3}
    s_waitcnt lgkmcnt(0)""")
    for i in range(7):
        for k in range(2):
            c = "0" if i==0 else f"v[{BA+4*k}:{BA+4*k+3}]"
            A(f"v_mfma_f32_16x16x16_bf16 v[{BA+4*k}:{BA+4*k+3}], v[{XA+2*i}:{XA+2*i+1}], v[{TB+4*i+2*k}:{TB+4*i+2*k+1}], {c}")
    A(f"""v_bfe_u32 v{T+4}, v{V_LANE}, 2, 2
    v_lshl_add_u32 v{T+4}, v{T}, 3, v{T+4}
    v_mul_u32_u24 v{T+4}, 224, v{T+4}
    v_and_b32 v{T+5}, 3, v{V_LANE}
    v_lshl_add_u32 v{T+4}, v{T+5}, 3, v{T+4}
    s_add_u32 s{S_T2}, s{S_LB}, 0x4000
    v_add_u32 v{T+4}, s{S_T2}, v{T+4}
    s_mov_b64 exec, 0xffff""")
    for k in range(2):
        for r in range(4): A(f"ds_write_b32 v{U+1}, v{BA+4*k+r} offset:{128*r+64*k}")
    A("s_mov_b64 exec, -1")
    for j in range(7):
        A(f"ds_read_b64_tr_b16 v[{TB+4*j}:{TB+4*j+1}], v{T+4} offset:{32*j}\nds_read_b64_tr_b16 v[{TB+4*j+2}:{TB+4*j+3}], v{T+4} offset:{32*j+896}")
    A("s_waitcnt lgkmcnt(0)\ns_barrier")
    HR=FF
    for w in range(4): A(f"ds_read_b64 v[{HR+2*w}:{HR+2*w+1}], v{U+2} offset:{STGW*w}")
    A(f"""s_lshl_b32 s{S_T2}, s{S_W}, 9
    s_add_u32 s{S_T2}, s{S_T2}, {L_H}
    v_lshlrev_b32 v{U}, 2, v{V_LANE}
    v_add_u32 v{U}, s{S_T2}, v{U}
    v_and_b32 v{U+1}, 3, v{V_LANE}
    v_lshlrev_b32 v{U+1}, 6, v{U+1}
    v_lshl_add_u32 v{U+1}, v{T}, 4, v{U+1}
    v_add_u32 v{U+1}, s{S_T2}, v{U+1}
    v_lshlrev_b32 v{XT+4}, 16, v{V_B1}
    v_and_b32 v{XT+5}, 0xffff0000, v{V_B1}
    s_waitcnt lgkmcnt(0)
    s_barrier""")
    for e in range(2):
        A(f"""v_add_f32 v{HR+e}, v{HR+e}, v{HR+2+e}
        v_add_f32 v{HR+4+e}, v{HR+4+e}, v{HR+6+e}
        v_add_f32 v{HR+e}, v{HR+e}, v{HR+4+e}""")
    A(f"""v_cvt_pk_bf16_f32 v{HR}, v{HR}, v{HR+1}
    v_and_b32 v{HR+1}, 0xffff0000, v{HR}
    v_lshlrev_b32 v{HR}, 16, v{HR}
    v_add_f32 v{HR}, v{HR}, v{XT+4}
    v_add_f32 v{HR+1}, v{HR+1}, v{XT+5}
    v_cvt_pk_bf16_f32 v{HR}, v{HR}, v{HR+1}
    v_and_b32 v{HR+1}, 0xffff0000, v{HR}
    v_lshlrev_b32 v{HR}, 16, v{HR}
    v_max_f32 v{HR}, 0, v{HR}
    v_max_f32 v{HR+1}, 0, v{HR+1}
    v_mul_f32 v{HR}, v{HR}, v{HR}
    v_mul_f32 v{HR+1}, v{HR+1}, v{HR+1}
    v_cvt_pk_bf16_f32 v{HR}, v{HR}, v{HR+1}
    ds_write_b32 v{U}, v{HR}
    ds_read_b128 v[{BA}:{BA+3}], v{U+1}""")
    A(f"""s_lshl_b32 s{S_T2}, s{S_FS}, 6
    s_mul_i32 s{S_T3}, s{S_W}, {7*4096}
    s_add_u32 s{S_T2}, s{S_T2}, s{S_T3}
    s_add_u32 s{S_T2}, s{S_T2}, {ZOFF}
    v_mul_u32_u24 v{U+2}, {28*4096}, v{T}
    v_and_b32 v{U+3}, 12, v{V_LANE}
    v_lshl_add_u32 v{U+2}, v{U+3}, 2, v{U+2}
    v_add_u32 v{U+2}, s{S_T2}, v{U+2}
    s_mov_b32 s{S_T2}, 0x1000
    s_waitcnt lgkmcnt(0)""")
    ZD=FF
    for j in range(7): A(f"v_mfma_f32_16x16x32_bf16 v[{ZD+4*j}:{ZD+4*j+3}], v[{BA}:{BA+3}], v[{TB+4*j}:{TB+4*j+3}], 0")
    A("s_nop 2")
    for j in range(7): A(f"v_permlane16_swap_b32 v{ZD+4*j}, v{ZD+4*j+1}\nv_permlane16_swap_b32 v{ZD+4*j+2}, v{ZD+4*j+3}")
    for j in range(7): A(f"v_permlane32_swap_b32 v{ZD+4*j}, v{ZD+4*j+2}")
    for j in range(7): A(f"v_mov_b32_dpp v{ZD+4*j+2}, v{ZD+4*j} quad_perm:[1,0,3,2] row_mask:0xf bank_mask:0xf\nv_mov_b32 v{ZD+4*j+1}, v{V_TAG}\nv_mov_b32 v{ZD+4*j+3}, v{V_TAG}")
    for j in range(7): A(f"v_cvt_pk_bf16_f32 v{ZD+4*j}, v{ZD+4*j}, v{ZD+4*j+2}")
    for j in range(7): A(f"v_mov_b32_dpp v{ZD+4*j+2}, v{ZD+4*j} quad_perm:[2,2,2,2] row_mask:0xf bank_mask:0xf")
    A("s_mov_b32 exec_lo, 0x11111111\ns_mov_b32 exec_hi, 0x11111111")
    for j in range(7):
        if not ABL&64 and not (ABL&128 and j>=3): A(f"global_store_dwordx4 v{U+2}, v[{ZD+4*j}:{ZD+4*j+3}], s[{P_WS}:{P_WS+1}] sc1")
        if j<6: A(f"v_add_u32 v{U+2}, s{S_T2}, v{U+2}")
    A(f"s_mov_b64 exec, -1\ns_branch {label}_ffn2x")
    def kscore(R, dst):
        for j in range(4):
            for t in range(8):
                if j==0: A(f"v_dot2_f32_bf16 v{XT+t}, v{R+4*t}, v{QW}, 0")
                else: A(f"v_dot2c_f32_bf16 v{XT+t}, v{R+4*t+j}, v{QW+j}")
        A("s_nop 2")
        for u in range(4): A(f"v_permlane16_swap_b32 v{XT+2*u}, v{XT+2*u+1}")
        for u in range(4): A(f"v_add_f32 v{XT+2*u}, v{XT+2*u}, v{XT+2*u+1}")
        y=[XT,XT+2,XT+4,XT+6]
        A(f"""s_nop 0
        v_add_f32_dpp v{y[0]}, v{y[0]}, v{y[0]} row_ror:8 row_mask:0xf bank_mask:0x3
        v_add_f32_dpp v{y[2]}, v{y[2]}, v{y[2]} row_ror:8 row_mask:0xf bank_mask:0x3
        v_add_f32_dpp v{y[0]}, v{y[1]}, v{y[1]} row_ror:8 row_mask:0xf bank_mask:0xc
        v_add_f32_dpp v{y[2]}, v{y[3]}, v{y[3]} row_ror:8 row_mask:0xf bank_mask:0xc
        s_nop 1
        v_add_f32_dpp v{y[0]}, v{y[0]}, v{y[0]} row_shl:4 row_mask:0xf bank_mask:0x5
        s_nop 0
        v_add_f32_dpp v{y[0]}, v{y[2]}, v{y[2]} row_shr:4 row_mask:0xf bank_mask:0xa
        s_nop 1
        v_add_f32_dpp v{y[0]}, v{y[0]}, v{y[0]} quad_perm:[1,0,3,2] row_mask:0xf bank_mask:0xf
        s_nop 1
        v_add_f32_dpp v{dst}, v{y[0]}, v{y[0]} quad_perm:[2,3,0,1] row_mask:0xf bank_mask:0xf""")
    def build_b(dst, src, k, mk):
        for j in range(4): A(f"v_and_b32_dpp v{dst+j}, v{src}, v{mk+j} row_newbcast:{k} row_mask:0xf bank_mask:0xf")
    def beta(t): return (t>>2) | (((t>>1)&1)<<1)
    def pv(R, pa, pb):
        build_b(BA, pa, 4*beta(0), MK)
        for t in range(8):
            cur = BA if t%2==0 else BB
            nxt = BB if t%2==0 else BA
            if t+1<8: build_b(nxt, pb if (t+1)&1 else pa, 4*beta(t+1), MK)
            else: A("s_nop 1")
            A(f"s_waitcnt lgkmcnt({7-t})")
            A(f"v_mfma_f32_16x16x32_bf16 v[{OA}:{OA+3}], v[{R+4*t}:{R+4*t+3}], v[{cur}:{cur+3}], v[{OA}:{OA+3}]")
    def scptr(ureg):
        A(f"s_lshl_b32 s{S_SC}, s{ureg}, 7\ns_add_u32 s{S_SC}, s{P_WS}, s{S_SC}\ns_addc_u32 s{S_SC+1}, s{P_WS+1}, 0")
    A(f"{label}_loop:")
    A(f"s_sub_u32 s{S_REM}, s{S_NU}, s{S_IT}")
    A(f"s_cmp_eq_u32 s{S_IT}, 3\ns_cbranch_scc1 {label}_xk")
    A(f"s_cmp_ge_u32 s{S_REM}, 2\ns_cbranch_scc1 {label}_wk24\ns_waitcnt vmcnt(8)\n{label}_wk24:\ns_waitcnt vmcnt(24)")
    A(f"""s_sub_u32 s{S_T}, s{S_IT}, {NSK}
    s_min_u32 s{S_T2}, s{S_T}, {NSK}
    s_and_b32 s{S_PH}, s{S_IT}, 1
    s_cmp_lt_u32 s{S_IT}, {2*NSK}
    s_cselect_b32 s{S_PH}, 1, s{S_PH}
    s_cmp_lt_u32 s{S_IT}, {NSK}
    s_cselect_b32 s{S_PH}, 0, s{S_PH}
    s_lshl_b32 s{S_T2}, s{S_T2}, 6
    v_add_u32 v{V_T+1}, s{S_T2}, v{V_SCL}
    v_add_u32 v{V_T}, s{S_RO}, v{V_LDSR}
    ds_read_b32 v{PUB}, v{V_T+1}""")
    for j in range(8): A(f"ds_read_b128 v[{KST+4*j}:{KST+4*j+3}], v{V_T} offset:{1024*j}")
    A(f"s_cmp_lg_u32 s{S_PH}, 0\ns_cbranch_scc1 {label}_v1")
    A(f"s_waitcnt lgkmcnt(0)\n{label}_k1:")
    kscore(KST, S1)
    A(f"s_cmp_eq_u32 s{S_IT}, 0\ns_cbranch_scc1 {label}_k2")
    A(f"s_cmp_eq_u32 s{S_IT}, 3\ns_cbranch_scc1 {label}_xv")
    A(f"s_branch {label}_sg2")
    A(f"""{label}_v1:
    s_waitcnt lgkmcnt(8)
    v_lshlrev_b32 v{S1}, 16, v{PUB}
    v_and_b32 v{S2}, 0xffff0000, v{PUB}
    v_mul_f32 v{S1}, s{S_C}, v{S1}
    v_mul_f32 v{S2}, s{S_C}, v{S2}
    v_max3_f32 v{XT+1}, v{S1}, v{S2}, s{S_M}
    s_nop 1
    v_max_f32_dpp v{XT+1}, v{XT+1}, v{XT+1} row_ror:4 row_mask:0xf bank_mask:0xf
    s_nop 1
    v_max_f32_dpp v{XT+1}, v{XT+1}, v{XT+1} row_ror:8 row_mask:0xf bank_mask:0xf
    s_nop 1
    v_max_f32_dpp v{XT+1}, v{XT+1}, v{XT+1} row_bcast:15 row_mask:0xa bank_mask:0xf
    s_nop 1
    v_max_f32_dpp v{XT+1}, v{XT+1}, v{XT+1} row_bcast:31 row_mask:0xc bank_mask:0xf
    s_nop 0
    v_readlane_b32 s{S_M}, v{XT+1}, 63
    s_nop 1
    v_subrev_f32 v{XT}, s{S_M}, v{S1}
    v_subrev_f32 v{XT+2}, s{S_M}, v{S2}
    v_subrev_f32 v{XT+1}, s{S_M}, v{VM}
    v_exp_f32 v{XT}, v{XT}
    v_exp_f32 v{XT+2}, v{XT+2}
    v_exp_f32 v{XT+1}, v{XT+1}
    v_mov_b32 v{VM}, s{S_M}
    v_cvt_pk_bf16_f32 v{PA}, v{XT}, v{XT}
    v_cvt_pk_bf16_f32 v{PA2}, v{XT+2}, v{XT+2}
    v_fma_f32 v{LA}, v{LA}, v{XT+1}, v{XT}
    v_mov_b32 v{PB}, v{PA}
    v_mov_b32 v{PB2}, v{PA2}
    v_add_f32 v{LA}, v{LA}, v{XT+2}""")
    for j in range(4): A(f"v_mul_f32 v{OA+j}, v{XT+1}, v{OA+j}")
    A(f"v_permlane16_swap_b32 v{PA}, v{PB}\nv_permlane16_swap_b32 v{PA2}, v{PB2}\ns_nop 0")
    pv(KST, PA, PB)
    A(f"{label}_sg2:")
    A(f"s_cmp_ge_u32 s{S_REM}, 2\ns_cbranch_scc1 {label}_wv16\ns_waitcnt vmcnt(0)\n{label}_wv16:\ns_waitcnt vmcnt(16)")
    A(f"v_add_u32 v{V_T}, s{S_RO}, v{V_LDSR}")
    for j in range(8): A(f"ds_read_b128 v[{VST+4*j}:{VST+4*j+3}], v{V_T} offset:{8192+1024*j}")
    if not ABL&1: A(f"s_cmp_lt_u32 s{S_IT}, 11\ns_cbranch_scc1 {label}_wold")
    A(f"{label}_woret:")
    A(f"s_cmp_lt_u32 s{S_REM}, 3\ns_cbranch_scc1 {label}_noiss")
    A(f"""s_cmp_ge_u32 s{S_TI}, {2*NSK}
    s_cbranch_scc1 {label}_dyn
    s_cmp_ge_u32 s{S_TI}, {NSK}
    s_cselect_b32 s{S_T}, {NSK}, 0
    s_cselect_b64 s[{S_SC}:{S_SC+1}], s[{P_V}:{P_V+1}], s[{P_K}:{P_K+1}]
    s_sub_u32 s{S_U}, s{S_TI}, s{S_T}
    s_lshl_b32 s{S_U}, s{S_U}, 4
    s_add_u32 s{S_U}, s{S_U}, s{S_WIH}
    s_cmp_eq_u32 s{S_TI}, {2*NSK-1}
    s_cbranch_scc1 {label}_claim
    s_branch {label}_noclaim
    {label}_dyn:
    s_mov_b64 s[{S_SC}:{S_SC+1}], s[{P_V}:{P_V+1}]
    s_and_b32 s{S_T}, s{S_TI}, 1
    s_cbranch_scc1 {label}_claim
    v_readfirstlane_b32 s{S_T}, v{V_CLM}
    s_mov_b64 s[{S_SC}:{S_SC+1}], s[{P_K}:{P_K+1}]
    s_lshr_b32 s{S_T2}, s{S_T}, 12
    s_and_b32 s{S_T}, s{S_T}, 0xfff
    s_cmp_lg_u32 s{S_T2}, s{S_TG}
    s_cselect_b32 s{S_T}, 0xfff, s{S_T}
    s_add_u32 s{S_U}, s{S_T}, {16*NSK}
    s_cmp_lt_u32 s{S_U}, 128
    s_cbranch_scc1 {label}_noclaim
    s_mov_b32 s{S_NU}, s{S_TI}
    s_branch {label}_noiss
    {label}_claim:
    s_mov_b64 exec, 1
    global_atomic_add v{V_CLM}, v{V_ZERO}, v{V_ONE}, s[{S_CNT}:{S_CNT+1}] sc0 sc1
    s_mov_b64 exec, -1
    {label}_noclaim:
    s_add_u32 s{S_TI}, s{S_TI}, 1""")
    setptr(False)
    dma(S_K, f"s_add_u32 m0, s{S_LB}, s{S_RO}")
    A(f"s_add_u32 m0, m0, 0x1000\ns_waitcnt lgkmcnt(0)")
    for j in range(8):
        vo = V_OFF if j<4 else V_OFF2
        if j==4: A("s_add_u32 m0, m0, 0x1000\ns_nop 0")
        A(f"global_load_lds_dwordx4 v{vo}, s[{S_V}:{S_V+1}] offset:{(j%4)*1024} {VF}")
    A(f"{label}_noiss:")
    A(f"s_xor_b32 s{S_RO}, s{S_RO}, 0x4000")
    if trace: A(f"s_memrealtime s[92:93]\ns_waitcnt lgkmcnt(0)\ns_mov_b32 m0, s{S_IT}\nv_writelane_b32 v253, s92, m0")
    A(f"s_cmp_lg_u32 s{S_PH}, 0\ns_cbranch_scc1 {label}_v2")
    A(f"s_waitcnt lgkmcnt(0)\n{label}_k2:")
    kscore(VST, S2)
    A(f"""s_min_u32 s{S_T2}, s{S_IT}, {NSK}
    s_lshl_b32 s{S_T2}, s{S_T2}, 6
    v_cvt_pk_bf16_f32 v{PUB}, v{S1}, v{S2}
    v_add_u32 v{V_T+1}, s{S_T2}, v{V_SCL}
    ds_write_b32 v{V_T+1}, v{PUB}
    s_branch {label}_next
    {label}_v2:""")
    pv(VST, PA2, PB2)
    A(f"{label}_next:")
    if stamps:
        for k in ((2,4,8,12) if stamps==1 else (1,)):
            A(f"s_cmp_lg_u32 s{S_IT}, {k}\ns_cbranch_scc1 {label}_st{k}")
            stamp()
            A(f"{label}_st{k}:")
    A(f"s_add_u32 s{S_IT}, s{S_IT}, 1")
    if NB==4: A(f"s_and_b32 s{S_T}, s{S_IT}, 0x13\ns_cbranch_scc0 {label}_bsw")
    A(f"""{label}_bswx:
    s_cmp_lt_u32 s{S_IT}, s{S_NU}
    s_cbranch_scc1 {label}_loop
    s_branch {label}_tail""")
    def lred():
        for k in (8,4): A(f"s_nop 1\nv_add_f32_dpp v{LA}, v{LA}, v{LA} row_ror:{k} row_mask:0xf bank_mask:0xf")
        A(f"s_nop 1\nv_add_f32_dpp v{LA}, v{LA}, v{LA} row_bcast:15 row_mask:0xa bank_mask:0xf")
        A(f"s_nop 1\nv_add_f32_dpp v{LA}, v{LA}, v{LA} row_bcast:31 row_mask:0xc bank_mask:0xf")
    if NB==4:
        A(f"{label}_bsw:\ns_cmp_gt_u32 s{S_IT}, 12\ns_cbranch_scc1 {label}_bswx")
        lred()
        for i in range(8): A(f"v_mov_b32 v{SV+i}, v{SV+4+i}")
        A(f"""v_cvt_pk_bf16_f32 v{SV+8}, v{OA}, v{OA+1}
        v_cvt_pk_bf16_f32 v{SV+9}, v{OA+2}, v{OA+3}
        v_mov_b32 v{SV+10}, v{LA}
        v_mov_b32 v{SV+11}, v{VM}
        v_mov_b32 v{LA}, 0
        v_mov_b32 v{VM}, {hex(NEG)}
        s_mov_b32 s{S_M}, {hex(NEG)}""")
        for j in range(4): A(f"v_mov_b32 v{OA+j}, 0")
        for i in range(4): A(f"v_mov_b32 v{QW+i}, v{QLs[1]+2*i}\nv_mov_b32 v{QLs[1]+2*i}, v{QLs[2]+2*i}\nv_mov_b32 v{QLs[2]+2*i}, v{QLs[3]+2*i}")
        A(f"s_branch {label}_bswx")
    A(f"{label}_wold:")
    its=[1,2,4,5,6,7,8,9,10]
    for st,itv in enumerate(its):
        if st<8: A(f"s_cmp_lg_u32 s{S_IT}, {itv}\ns_cbranch_scc1 {label}_wo{st+1}")
        if st>0:
            for j in range(7):
                r=((st-1)*7+j)*4
                A(f"ds_read_b64_tr_b16 a[{r}:{r+1}], v{V_TRA} offset:{32*j}\nds_read_b64_tr_b16 a[{r+2}:{r+3}], v{V_TRA} offset:{32*j+896}")
        if st<8:
            base=(128*(st&1)+32*(st>>1))*896
            A(f"s_add_u32 s{S_T2}, s{S_WOP}, {base}\ns_addc_u32 s{S_T3}, s{S_WOP+1}, 0\ns_branch {label}_woiss")
            A(f"{label}_wo{st+1}:")
        else: A(f"s_branch {label}_woret")
    assert S_T3==S_T2+1
    A(f"{label}_woiss:\ns_mov_b32 s{S_K}, s{S_T2}\ns_mov_b32 s{S_K+1}, s{S_T3}\ns_mov_b32 m0, s{S_STG}\ns_waitcnt lgkmcnt(0)")
    for i in range(7):
        A(f"global_load_lds_dwordx4 v{WA+i}, s[{S_K}:{S_K+1}] {WOF}")
        if i<6: A("s_add_u32 m0, m0, 0x400\ns_nop 0")
    A(f"s_branch {label}_woret")
    A(f"{label}_xk:")
    for i in range(32): A(f"v_mov_b32 v{KST+i}, v{KX+i}")
    A(f"s_branch {label}_k1")
    A(f"{label}_xv:\ns_waitcnt vmcnt(32)")
    for i in range(32): A(f"v_mov_b32 v{VST+i}, v{VX+i}")
    A(f"s_branch {label}_k2")
    A(f"{label}_tail:")
    stamp()
    lred()
    A(f"""v_cvt_pk_bf16_f32 v{OA}, v{OA}, v{OA+1}
    v_cvt_pk_bf16_f32 v{OA+1}, v{OA+2}, v{OA+3}
    s_lshl_b32 s{S_T}, s{S_W}, 3
    s_add_u32 s{S_T}, s{S_T}, {L_ML}
    v_mov_b32 v{T}, s{S_T}""")
    for b in range(NB-1): A(f"ds_write_b64 v{V_AW}, v[{SV+4*b}:{SV+4*b+1}] offset:{AROW*b}")
    A(f"ds_write_b64 v{V_AW}, v[{OA}:{OA+1}] offset:{AROW*(NB-1)}")
    A("s_mov_b32 exec_lo, 0\ns_mov_b32 exec_hi, 0x80000000")
    for b in range(NB-1): A(f"ds_write_b64 v{T}, v[{SV+4*b+2}:{SV+4*b+3}] offset:{32*b}")
    A(f"ds_write_b64 v{T}, v[{LA}:{LA+1}] offset:{32*(NB-1)}\ns_mov_b64 exec, -1")
    CZ=W1D; CF=W1D; CY=W1D+16; CML=U; CM=XT+2
    A(f"s_cmp_ge_u32 s2, {NCONS}\ns_cbranch_scc1 {label}_nocons0")
    def zloads():
        for k in range(4):
            if k==3: A("s_mov_b32 exec_hi, 0")
            A(f"global_load_dwordx4 v[{CZ+4*k}:{CZ+4*k+3}], v{V_OFF}, s[{S_Z}:{S_Z+1}] offset:{1024*k} sc1")
        A("s_mov_b64 exec, -1")
    for k in (12,14): A(f"v_mov_b32 v{CZ+k}, 0\nv_mov_b32 v{CZ+k+1}, v{V_TAG}")
    zloads()
    A(f"""global_load_ushort v{CX}, v{COUT}, s[{P_X}:{P_X+1}]
    global_load_ushort v{CB2}, v{CCOL}, s[{P_B2}:{P_B2+1}]
    {label}_nocons0:""")
    A(f"v_lshrrev_b32 v{T+2}, 4, v{V_LANE}" if NB==4 else f"v_mov_b32 v{T+2}, 0")
    A(f"""v_lshlrev_b32 v{T}, 5, v{T+2}
    v_add_u32 v{T}, {L_ML}, v{T}
    s_lshl_b32 s{S_T2}, s{S_PART}, 4
    s_add_u32 s{S_T2}, s{S_T2}, {MLOFF}
    v_lshlrev_b32 v{T+1}, 12, v{T+2}
    v_add_u32 v{T+1}, s{S_T2}, v{T+1}
    s_mov_b32 s{S_T2}, 0x4000""")
    if NB==1 and not MLR: A(f"s_lshl_b32 s{S_T3}, s{S_B}, 10\nv_add_u32 v{T+1}, s{S_T3}, v{T+1}")
    if MLR:
        assert NB==1
        A(f"s_mul_i32 s{S_T3}, s{S_B}, {7*1024}\nv_lshl_add_u32 v{T+1}, v{V_LANE}, 10, v{T+1}\nv_add_u32 v{T+1}, s{S_T3}, v{T+1}")
    ML=U; M=T+4; AF=KST; D=VST
    A(f"v_mov_b32 v{M+1}, v{V_TAG}\nv_mov_b32 v{M+3}, v{V_TAG}")
    A("s_waitcnt lgkmcnt(0)\ns_barrier")
    if stamps==1: stamp()
    A(f"ds_read_b128 v[{ML}:{ML+3}], v{T}\nds_read_b128 v[{ML+4}:{ML+7}], v{T} offset:16")
    for s_ in range(8): A(f"ds_read_b128 v[{AF+4*s_}:{AF+4*s_+3}], v{V_AR} offset:{64*s_}")
    A("s_waitcnt lgkmcnt(7)")
    def fact():
        r=[f"v_max3_f32 v{M}, v{ML+1}, v{ML+3}, v{ML+5}", f"v_max_f32 v{M}, v{M}, v{ML+7}"]
        r+=[f"v_sub_f32 v{ML+2*w+1}, v{ML+2*w+1}, v{M}" for w in range(4)]
        r+=[f"v_exp_f32 v{ML+2*w+1}, v{ML+2*w+1}" for w in range(4)]
        r+=[f"v_mul_f32 v{M+2}, v{ML}, v{ML+1}"]+[f"v_fmac_f32 v{M+2}, v{ML+2*w}, v{ML+2*w+1}" for w in range(1,4)]
        return r
    def post(j):
        d=D+4*j
        return [f"v_mul_f32 v{d}, v{d}, v{ML+1}", f"v_fmac_f32 v{d}, v{d+1}, v{ML+3}", f"v_fmac_f32 v{d}, v{d+2}, v{ML+5}", f"v_fmac_f32 v{d}, v{d+3}, v{ML+7}",
                f"v_mov_b32 v{d+1}, v{V_TAG}", f"v_mov_b32 v{d+3}, v{V_TAG}",
                f"v_mov_b32_dpp v{d+2}, v{d} quad_perm:[1,0,3,2] row_mask:0xf bank_mask:0xf",
                f"s_mov_b32 exec_lo, 0x55555555\ns_mov_b32 exec_hi, 0x55555555\nglobal_store_dwordx4 v{V_YA}, v[{d}:{d+3}], s[{P_WS}:{P_WS+1}] sc1\ns_mov_b64 exec, -1\nv_add_u32 v{V_YA}, s{S_T2}, v{V_YA}"]
    def post1(j):
        d=D+4*j; mr=YM+4*(j//4)
        r=[f"v_mul_f32 v{d}, v{d}, v{ML+1}", f"v_fmac_f32 v{d}, v{d+1}, v{ML+3}", f"v_fmac_f32 v{d}, v{d+2}, v{ML+5}", f"v_fmac_f32 v{d}, v{d+3}, v{ML+7}",
           "s_nop 1",
           f"v_mov_b32_dpp v{mr}, v{d} quad_perm:[0,1,2,3] row_mask:{hex(1<<(j&3))} bank_mask:0xf",
           f"v_mov_b32_dpp v{mr+2}, v{d} quad_perm:[1,0,3,2] row_mask:{hex(1<<(j&3))} bank_mask:0xf"]
        if j in (3,6):
            r.append(f"v_cvt_pk_bf16_f32 v{mr}, v{mr}, v{mr+2}\ns_mov_b32 vcc_lo, 0x11111111\ns_mov_b32 vcc_hi, {'0x11111111' if j==3 else '0x1111'}\nv_mov_b32_dpp v{mr+2}, v{mr} quad_perm:[2,2,2,2] row_mask:0xf bank_mask:0xf\ns_mov_b64 exec, vcc\nglobal_store_dwordx4 v{V_YA}, v[{mr}:{mr+3}], s[{P_WS}:{P_WS+1}] sc1\ns_mov_b64 exec, -1\nv_add_u32 v{V_YA}, s{S_T2}, v{V_YA}")
        return r
    YM=BA
    if NB==1:
        post=post1
    fill=fact()
    mlpub=f"""s_cmp_lg_u32 s{S_W}, 0
    s_cbranch_scc1 {label}_noml
    s_mov_b32 exec_lo, {'0x00010001' if NB==4 else ('0x7f' if MLR else '1')}
    s_mov_b32 exec_hi, {'0x00010001' if NB==4 else '0'}
    global_store_dwordx4 v{T+1}, v[{M}:{M+3}], s[{P_WS}:{P_WS+1}] sc1
    s_mov_b64 exec, -1
    {label}_noml:"""
    for j in range(7):
        if j==1: fill=[mlpub]+([f"v_mov_b32 v{YM+i}, v{V_TAG}" for i in (1,3,5,7)] if NB==1 else [])
        if j>=2: fill=post(j-2)
        for s_ in range(8):
            if j==0 and s_>0: A(f"s_waitcnt lgkmcnt({7-s_})")
            r=(s_*7+j)*4
            c = "0" if s_==0 else f"v[{D+4*j}:{D+4*j+3}]"
            A(f"v_mfma_f32_16x16x32_bf16 v[{D+4*j}:{D+4*j+3}], v[{AF+4*s_}:{AF+4*s_+3}], a[{r}:{r+3}], {c}")
            for _ in range(2 if j==0 else 1):
                if fill: A(fill.pop(0))
        assert not fill
    for ln in post(5): A(ln)
    if NB==1: A("s_nop 0")
    for ln in post(6): A(ln)
    A(f"{label}_fin:")
    if stamps!=2: stamp()
    A(f"s_cmp_ge_u32 s2, {NCONS}\ns_cbranch_scc1 {label}_done")
    def tagacc(dst, rs, first=True):
        for i,r in enumerate(rs):
            if first and i==0: A(f"v_xor_b32 v{dst}, v{r}, v{V_TAG}")
            else: A(f"v_bitop3_b32 v{dst}, v{dst}, v{r}, v{V_TAG} bitop3:0xf6")
    def test(dst, ok):
        A(f"""v_cmp_ne_u32 vcc, 0, v{dst}
        s_add_u32 s{S_SPIN}, s{S_SPIN}, 1
        s_cmp_gt_u32 s{S_SPIN}, {SPIN_MAX}
        s_cbranch_vccz {ok}
        s_cbranch_scc1 {ok}""")
    def yloads():
        for k in range(4*NB):
            A(f"global_load_dwordx4 v[{CY+4*k}:{CY+4*k+3}], v{[V_OFF,V_OFF2,T+2,T+3][k//4]}, s[{S_Y}:{S_Y+1}] offset:{1024*(k%4)} sc1")
    def mlload():
        for k in range(NB): A(f"global_load_dwordx4 v[{CML+4*k}:{CML+4*k+3}], v{CMA}, s[{P_WS}:{P_WS+1}] offset:{1024*k} sc1")
    def red4(c):
        A(f"""s_nop 1
        v_permlane32_swap_b32 v{c}, v{c+1}
        v_permlane32_swap_b32 v{c+2}, v{c+3}
        v_add_f32 v{c}, v{c}, v{c+1}
        v_add_f32 v{c+2}, v{c+2}, v{c+3}
        s_nop 1
        v_permlane16_swap_b32 v{c}, v{c+2}
        v_add_f32 v{c}, v{c}, v{c+2}
        s_nop 1
        v_add_f32_dpp v{c}, v{c}, v{c} row_ror:4 row_mask:0xf bank_mask:0xf
        s_nop 1
        v_add_f32_dpp v{c}, v{c}, v{c} row_ror:8 row_mask:0xf bank_mask:0xf""")
    mlload()
    A(f"s_waitcnt vmcnt({NB})")
    A(f"{label}_zchk:")
    tagacc(XT, [CZ+2*i+1 for i in range(8)])
    if ABL&(2|64|128): A(f"s_branch {label}_zok")
    test(XT, f"{label}_zok")
    zloads()
    A(f"s_waitcnt vmcnt(0)\ns_branch {label}_zchk\n{label}_zok:")
    for k in range(4):
        for h in range(2):
            r=CZ+4*k+2*h
            A(f"v_and_b32 v{r+1}, 0xffff0000, v{r}\nv_lshlrev_b32 v{r}, 16, v{r}")
    for j in range(4): A(f"v_add_f32 v{CZ+j}, v{CZ+j}, v{CZ+4+j}\nv_add_f32 v{CZ+8+j}, v{CZ+8+j}, v{CZ+12+j}")
    for j in range(4): A(f"v_add_f32 v{CZ+j}, v{CZ+j}, v{CZ+8+j}")
    red4(CZ)
    A(f"""v_lshlrev_b32 v{CX}, 16, v{CX}
    v_lshlrev_b32 v{CB2}, 16, v{CB2}
    v_cvt_pk_bf16_f32 v{CG}, v{CZ}, v{CZ}
    v_lshlrev_b32 v{CG}, 16, v{CG}
    v_add_f32 v{CG}, v{CG}, v{CB2}
    v_cvt_pk_bf16_f32 v{CG}, v{CG}, v{CG}
    v_lshlrev_b32 v{CG}, 16, v{CG}
    v_mul_f32 v{XT+5}, {hex(f2u(-LOG2E))}, v{CG}
    v_exp_f32 v{XT+5}, v{XT+5}
    s_nop 0
    v_add_f32 v{XT+5}, 1.0, v{XT+5}
    v_rcp_f32 v{XT+5}, v{XT+5}
    s_nop 0
    v_mul_f32 v{CG}, v{CG}, v{XT+5}
    v_cvt_pk_bf16_f32 v{CG}, v{CG}, v{CG}
    v_lshlrev_b32 v{CG}, 16, v{CG}""")
    if FP:
        assert NB==1
        SM=[64,66,68,70,72] if not stamps else [86,88,90,92,98]
        SM=[84,86,88,90,92]
        A(f"{label}_mlw:\ns_waitcnt vmcnt(0)")
        tagacc(XT, [CML+1, CML+3])
        A(f"""v_cmp_ne_u32 vcc, 0, v{XT}
        s_add_u32 s{S_SPIN}, s{S_SPIN}, 1
        s_cmp_gt_u32 s{S_SPIN}, {SPIN_MAX}
        s_cbranch_scc1 {label}_stb
        s_bcnt1_i32_b64 s{S_T}, vcc
        s_cmp_le_u32 s{S_T}, {FP}
        s_cbranch_scc1 {label}_stb""")
        mlload()
        A(f"s_branch {label}_mlw\n{label}_stb:\ns_mov_b32 s{S_T2}, 0")
        mlload(); yloads()
        A(f"s_waitcnt vmcnt(0)\n{label}_pl:")
        A(f"v_xor_b32 v{XT+4}, v{CML+1}, v{V_TAG}")
        for k in range(4): A(f"v_xor_b32 v{XT+k}, v{CY+4*k+1}, v{V_TAG}")
        A(f"v_bitop3_b32 v{XT+4}, v{XT+4}, v{CML+3}, v{V_TAG} bitop3:0xf6")
        for k in range(4): A(f"v_bitop3_b32 v{XT+k}, v{XT+k}, v{CY+4*k+3}, v{V_TAG} bitop3:0xf6")
        A(f"v_cmp_ne_u32 s[{SM[4]}:{SM[4]+1}], 0, v{XT+4}")
        for k in range(4): A(f"v_cmp_ne_u32 s[{SM[k]}:{SM[k]+1}], 0, v{XT+k}")
        A(f"""s_cmp_lg_u32 s{S_T2}, 0
        s_cbranch_scc1 {label}_hf
        s_cmp_lg_u64 s[{SM[4]}:{SM[4]+1}], 0
        s_cbranch_scc1 {label}_iss
        s_mov_b32 s{S_T2}, 1
        s_nop 7
        v_max_f32_dpp v{XT+5}, v{CML}, v{CML} quad_perm:[1,0,3,2] row_mask:0xf bank_mask:0xf
        s_nop 1
        v_max_f32_dpp v{XT+5}, v{XT+5}, v{XT+5} quad_perm:[2,3,0,1] row_mask:0xf bank_mask:0xf
        v_sub_f32 v{XT+5}, v{CML}, v{XT+5}
        v_exp_f32 v{XT+5}, v{XT+5}
        s_nop 0
        v_mul_f32 v{XT+6}, v{CML+2}, v{XT+5}
        s_nop 1
        v_add_f32_dpp v{XT+6}, v{XT+6}, v{XT+6} quad_perm:[1,0,3,2] row_mask:0xf bank_mask:0xf
        s_nop 1
        v_add_f32_dpp v{XT+6}, v{XT+6}, v{XT+6} quad_perm:[2,3,0,1] row_mask:0xf bank_mask:0xf
        v_rcp_f32 v{XT+6}, v{XT+6}
        s_nop 0
        v_mul_f32 v{XT+5}, v{XT+5}, v{XT+6}""")
        for k in range(4): A(f"ds_bpermute_b32 v{CF+k}, v{CBP}, v{XT+5} offset:{64*k}")
        A(f"""{label}_hf:
        s_or_b64 vcc, s[{SM[0]}:{SM[0]+1}], s[{SM[1]}:{SM[1]+1}]
        s_or_b64 vcc, vcc, s[{SM[2]}:{SM[2]+1}]
        s_or_b64 vcc, vcc, s[{SM[3]}:{SM[3]+1}]
        s_cbranch_scc0 {label}_yok
        {label}_iss:
        s_add_u32 s{S_SPIN}, s{S_SPIN}, 1
        s_cmp_gt_u32 s{S_SPIN}, {SPIN_MAX*8}
        s_cbranch_scc1 {label}_yok
        s_or_b64 exec, s[{SM[4]}:{SM[4]+1}], 1""")
        mlload()
        for k in range(4):
            A(f"s_or_b64 exec, s[{SM[k]}:{SM[k]+1}], 1\nglobal_load_dwordx4 v[{CY+4*k}:{CY+4*k+3}], v{V_OFF}, s[{S_Y}:{S_Y+1}] offset:{1024*k} sc1")
        A(f"s_mov_b64 exec, -1\ns_waitcnt vmcnt({5*(PD-1)})\ns_branch {label}_pl\n{label}_yok:\ns_nop 15\ns_waitcnt lgkmcnt(0)")
        for k in range(4):
            if k==0: A(f"v_mul_f32 v{XT}, v{CY}, v{CF}\nv_mul_f32 v{XT+2}, v{CY+2}, v{CF}")
            else: A(f"v_fmac_f32 v{XT}, v{CY+4*k}, v{CF+k}\nv_fmac_f32 v{XT+2}, v{CY+4*k+2}, v{CF+k}")
    else:
        if TH==0:
            A(f"{label}_mlw:\ns_waitcnt vmcnt(0)")
            tagacc(XT, [CML+2*i+1 for i in range(2*NB)])
            test(XT, f"{label}_mlok")
            mlload()
            A(f"s_branch {label}_mlw\n{label}_mlok:")
            yloads()
        else:
            A(f"{label}_mlw:\ns_waitcnt vmcnt(0)")
            tagacc(XT, [CML+2*i+1 for i in range(2*NB)])
            test(XT, f"{label}_mlok0")
            A(f"s_bcnt1_i32_b64 s{S_T}, vcc")
            mlload()
            A(f"s_cmp_gt_u32 s{S_T}, {TH}\ns_cbranch_scc1 {label}_mlw")
            A(f"{label}_mlw2:")
            yloads()
            A(f"s_waitcnt vmcnt({4*NB})")
            tagacc(XT, [CML+2*i+1 for i in range(2*NB)])
            test(XT, f"{label}_mlok")
            mlload()
            A(f"s_branch {label}_mlw2\n{label}_mlok0:")
            yloads()
            A(f"{label}_mlok:")
        if NB==4:
            for k in range(4): A(f"v_max_f32_dpp v{CML+4*k+1}, v{CML+4*k}, v{CML+4*k} row_ror:8 row_mask:0xf bank_mask:0xf")
            for r in (4,2,1):
                for k in range(4): A(f"v_max_f32_dpp v{CML+4*k+1}, v{CML+4*k+1}, v{CML+4*k+1} row_ror:{r} row_mask:0xf bank_mask:0xf")
            for k in range(4): A(f"v_sub_f32 v{CML+4*k}, v{CML+4*k}, v{CML+4*k+1}")
            for k in range(4): A(f"v_exp_f32 v{CML+4*k}, v{CML+4*k}")
            for k in range(4): A(f"v_mul_f32 v{CML+4*k+2}, v{CML+4*k+2}, v{CML+4*k}")
            for r in (8,4,2,1):
                for k in range(4): A(f"v_add_f32_dpp v{CML+4*k+2}, v{CML+4*k+2}, v{CML+4*k+2} row_ror:{r} row_mask:0xf bank_mask:0xf")
            for k in range(4): A(f"v_rcp_f32 v{CML+4*k+2}, v{CML+4*k+2}")
            for k in range(4): A(f"v_mul_f32 v{CML+4*k}, v{CML+4*k}, v{CML+4*k+2}")
            for k in range(16): A(f"ds_bpermute_b32 v{CF+k}, v{CBP}, v{CML+4*(k//4)} offset:{64*(k%4)}")
        else:
            A(f"""v_max_f32_dpp v{CML+1}, v{CML}, v{CML} quad_perm:[1,0,3,2] row_mask:0xf bank_mask:0xf
            s_nop 1
            v_max_f32_dpp v{CML+1}, v{CML+1}, v{CML+1} quad_perm:[2,3,0,1] row_mask:0xf bank_mask:0xf
            v_sub_f32 v{CML}, v{CML}, v{CML+1}
            v_exp_f32 v{CML}, v{CML}
            s_nop 0
            v_mul_f32 v{CML+2}, v{CML+2}, v{CML}
            s_nop 1
            v_add_f32_dpp v{CML+2}, v{CML+2}, v{CML+2} quad_perm:[1,0,3,2] row_mask:0xf bank_mask:0xf
            s_nop 1
            v_add_f32_dpp v{CML+2}, v{CML+2}, v{CML+2} quad_perm:[2,3,0,1] row_mask:0xf bank_mask:0xf
            v_rcp_f32 v{CML+2}, v{CML+2}
            s_nop 0
            v_mul_f32 v{CML}, v{CML}, v{CML+2}""")
            for k in range(4): A(f"ds_bpermute_b32 v{CF+k}, v{CBP}, v{CML} offset:{64*k}")
        A("s_waitcnt lgkmcnt(0)")
        A(f"{label}_yw:")
        for k in range(4*NB):
            A(f"s_waitcnt vmcnt({4*NB-1-k})")
            tagacc(XT+4, [CY+4*k+1, CY+4*k+3], first=(k==0))
            for h in range(2):
                r=CY+4*k+2*h
                A(f"v_and_b32 v{r+1}, 0xffff0000, v{r}\nv_lshlrev_b32 v{r}, 16, v{r}")
            for j in range(4): A(f"v_{'mul' if k==0 else 'fmac'}_f32 v{XT+j}, v{CY+4*k+j}, v{CF+k}")
        test(XT+4, f"{label}_yok")
        yloads()
        A(f"s_branch {label}_yw\n{label}_yok:")
    if stamps!=2: stamp()
    red4(XT)
    A(f"""v_cvt_pk_bf16_f32 v{XT}, v{XT}, v{XT}
    v_lshlrev_b32 v{XT}, 16, v{XT}
    v_mul_f32 v{XT}, v{XT}, v{CG}
    v_cvt_pk_bf16_f32 v{XT}, v{XT}, v{XT}
    v_lshlrev_b32 v{XT}, 16, v{XT}
    v_add_f32 v{XT}, v{XT}, v{CX}
    v_cvt_pk_bf16_f32 v{XT}, v{XT}, v{XT}
    s_mov_b32 exec_lo, 0x000f000f
    s_mov_b32 exec_hi, 0x000f000f
    global_store_short v{COUT}, v{XT}, s[{P_OUT}:{P_OUT+1}] {OF}
    s_mul_i32 s{S_T}, s{S_CB}, 28
    s_cmp_lg_u32 s{S_CG}, s{S_T}
    s_cbranch_scc1 {label}_done
    v_mov_b32 v{XT+1}, 64
    s_mov_b64 exec, 1
    global_atomic_add v{V_ZERO}, v{XT+1}, s[{P_WS}:{P_WS+1}] sc1""")
    A(f"{label}_done:")
    if trace:
        A(f"""s_mov_b64 exec, -1
        s_memrealtime s[92:93]
        s_waitcnt lgkmcnt(0)
        v_writelane_b32 v253, s90, 62
        v_writelane_b32 v253, s92, 63
        s_lshl_b32 s{S_T}, s2, 2
        s_add_u32 s{S_T}, s{S_T}, s{S_W}
        s_lshl_b32 s{S_T}, s{S_T}, 8
        s_add_u32 s{S_T}, s{S_T}, 0x10000000
        v_lshlrev_b32 v254, 2, v{V_LANE}
        v_add_u32 v254, s{S_T}, v254
        global_store_dword v254, v253, s[{P_WS}:{P_WS+1}]""")
    if DELAY:
        A(f"""s_cmp_lg_u32 s2, 0
        s_cbranch_scc1 {label}_end
        {label}_dl:
        s_memrealtime s[92:93]
        s_waitcnt lgkmcnt(0)
        s_sub_u32 s92, s92, s94
        s_cmp_lt_u32 s92, {DELAY}
        s_cbranch_scc1 {label}_dl""")
    if stamps:
        A("s_mov_b64 exec, -1")
        stamp()
        assert nst[0]<=15
        A(f"s_cmp_lg_u32 s{S_W}, {STW}\ns_cbranch_scc1 {label}_end")
        A(f"s_lshl_b32 s{S_T}, s2, 7\ns_add_u32 s{S_T}, s{S_T}, 0x10000000\ns_add_u32 s{P_WS}, s{P_WS}, s{S_T}\ns_addc_u32 s{P_WS+1}, s{P_WS+1}, 0")
        A("s_waitcnt lgkmcnt(0) vmcnt(0)\nv_mov_b32 v1, 0")
        for k in range(nst[0]):
            A(f"v_mov_b32 v{KST+2*k}, s{S_ST+2*k}\nv_mov_b32 v{KST+2*k+1}, s{S_ST+2*k+1}\nglobal_store_dwordx2 v1, v[{KST+2*k}:{KST+2*k+1}], s[{P_WS}:{P_WS+1}] offset:{8*k}")
        A(f"s_mul_i32 s{S_T}, s{S_NU}, 100\ns_add_u32 s{S_T}, s{S_T}, s{S_ST}\nv_mov_b32 v{KST+40}, s{S_T}\nv_mov_b32 v{KST+41}, s{S_ST+1}\nglobal_store_dwordx2 v1, v[{KST+40}:{KST+41}], s[{P_WS}:{P_WS+1}] offset:120")
        if stamps==1: A(f"s_getreg_b32 s{S_T}, hwreg(HW_REG_XCC_ID)\ns_and_b32 s{S_T}, s{S_T}, 15\ns_mul_i32 s{S_T}, s{S_T}, 100\ns_add_u32 s{S_T}, s{S_T}, s{S_ST}\nv_mov_b32 v{KST+44}, s{S_T}\nv_mov_b32 v{KST+45}, s{S_ST+1}\nglobal_store_dwordx2 v1, v[{KST+44}:{KST+45}], s[{P_WS}:{P_WS+1}] offset:112")
        A(f"v_mov_b32 v{KST+42}, s{S_SPIN}\ns_mov_b64 exec, 1\nglobal_atomic_add v1, v{KST+42}, s[{P_DBG}:{P_DBG+1}]")
    A(f"{label}_end:\ns_endpgm")
    return A.text()

def kdesc(label, vgpr, accum, sgpr):
    return f""".amdhsa_kernel {label}
  .amdhsa_next_free_vgpr {vgpr}
  .amdhsa_next_free_sgpr {sgpr}
  .amdhsa_accum_offset {accum}
  .amdhsa_group_segment_fixed_size 0
  .amdhsa_kernarg_size 104
  .amdhsa_user_sgpr_count 2
  .amdhsa_user_sgpr_kernarg_segment_ptr 1
  .amdhsa_system_sgpr_workgroup_id_x 1
  .amdhsa_float_denorm_mode_32 3
.end_amdhsa_kernel
"""
DOC=""";
;   * hand-offs between workgroups are 8-byte {data, tag} granules written / read with sc1; the tag comes
"""
def full(stamps=0, **kw):
    ref=open(f"cdna_kernels/{NAME}.s.ref").read().split("\n")
    hdr=[l for l in ref if l.startswith(";") and "@launch" not in l]
    main=NAME+"_kernel"
    t="\n".join(hdr)+"\n"
    t+=f"; @launch grid=(256,1,1) block=(256,1,1) lds={LDS_TOTAL}\n"
    t+=DOC+'.amdgcn_target "amdgcn-amd-amdhsa--gfx950"\n.text\n'
    t+=gen_main(main, stamps, **kw)
    t+='.section .rodata,"a"\n.p2align 6\n'+kdesc(main, 256+224, 256, 102)
    return t, [(main,256)]
def variant(name, **kw):
    t,ks=full(0, **kw)
    open(f"work/{name}.s","w").write(t)
    build(t,name,ks)
    t,ks=full(1, **kw); build(t,name+"_s",ks)
    t,ks=full(2, **kw); build(t,name+"_p",ks)
    t,ks=full(3, **kw); build(t,name+"_t",ks)
if __name__=="__main__":
    for p in range(28): assert (p*37)>>8 == p//7
    for p in range(448): assert (p*4682)>>16 == p//14
    if len(sys.argv)>1:
        for spec in sys.argv[1:]:
            nm,_,args=spec.partition(":")
            variant(nm,**eval("dict(%s)"%args))
    else:
        t,ks=full(0)
        open(f"cdna_kernels/{NAME}.s","w").write(t)
    print("LDS",LDS_TOTAL)
```

```python
import sys, struct
from asmlib import build
NAME="recurrent_scan__mha_block_cached__dense_activation_squared_relu__decode"
def f2u(x): return struct.unpack("<I", struct.pack("<f", x))[0]
LOG2E=1.4426950408889634
CSC=f2u(LOG2E/16.0)
NEG=0xff7fffff
class E:
    def __init__(s): s.o=[]
    def __call__(s, t):
        for ln in t.split("\n"):
            ln=ln.strip()
            if ln: s.o.append(("" if ln.endswith(":") or ln.startswith(";") else "    ")+ln)
    def text(s): return "\n".join(s.o)+"\n"

V_TID=0; V_LANE=1; V_OFF=2; V_OFF2=3
MK=4; QW=8; OA=12; LA=16; VM=17; PA=18; PB=19
SV=20
XT=32
BA=40; BB=44
KST=48; VST=80
W1D=112
KX=W1D; VX=W1D+32
WA=200
V_TRA=207
V_T=208
QALL=232
V_LDSR=232; V_QPA=233; V_B1=234; V_TAG=235; V_ZERO=236; V_CLM=237; V_ONE=238
V_AW=239; V_AR=240; V_YA=241; CMA=242; CBP=243; CCOL=244; COUT=245; CX=246; CB2=247; CG=248
PUB=20; SG=24; S1=28; S2=29; V_SCL=30; PA2=249; PB2=250; VU=251; V_SCA=252
QN=249
QNX=W1D+64
QPL=W1D+32+0
S_W=3; S_K=4; S_V=6; S_LB=8; S_RO=9; S_IT=10; S_M=11; S_T=12; S_H=13; S_B=14; S_SP=15
P_X=16;P_K=18;P_V=20;P_WQ=22;P_WO=24;P_W1=28;P_B1=30;P_W2=32;P_B2=34;P_OUT=36;P_DBG=38;P_WS=40
S_NU=42; S_FS=43; S_C=44; S_T2=45; S_T3=46; S_J=47; S_ROT=48; S_TAG=49; S_STG=50; S_PART=51; S_WOP=52; S_ROLE=54; S_U=55; S_SPIN=56; S_REM=57
S_CB=58; S_CG=59; S_Y=60; S_Z=62; S_CNT=26; S_TG=96; S_G=97; S_PH=98; S_NI=99; S_TI=22; S_NKI=23; S_WIH=100; S_NSX=28; S_SC=30
S_ST=64
STG=131072; STGW=7168
L_SM=STG+4*STGW
L_MS=L_SM; L_ML=L_SM+32; L_H=L_SM+64; HW=1008
LDS_TOTAL=L_H+4*HW
AROW=528
QXOFF=0x1000; MLOFF=0x20000; CNTOFF=0x30000; ZOFF=0x100000; YOFF=0x200000; SCOFF=0x400000
NCONS=28
SPIN_MAX=1<<18

def gen_main(label, stamps=0, WF="nt", KF="nt", VF="nt", MAP=4, STW=0, QPRE=4, QSP=0, FSP=3, ROT=None, WOF='', DELAY=0, JORD=0, NB=1, NS=12, TH=0, OF='', ROTH=0, ABL=0, MO=1, ORD=1, MUL=1, FP=0, PD=8, MLR=1, NSK=7, SF='sc1', PFW=0, VT=0, CAP=15, RX=0):
    NSV=NSK
    assert NB==1 and KF==VF
    WPG=64 if NB==4 else 16
    POOL=256*NB-WPG*NS
    NP=64*NB
    YB=NP*64
    if ROT is None: ROT=2
    cnt=[0]
    A=E()
    nst=[0]
    trace = stamps==3
    if trace: stamps=0
    def stamp():
        if stamps:
            A(f"s_memrealtime s[{S_ST+2*nst[0]}:{S_ST+2*nst[0]+1}]"); nst[0]+=1
    def pstamp(k):
        if stamps==2:
            A(f"s_memrealtime s[{S_ST+2*k}:{S_ST+2*k+1}]"); nst[0]=max(nst[0],k+1)
    T=V_T; U=T+8
    A(f".globl {label}\n.p2align 8\n.type {label},@function\n{label}:")
    A(f"s_cmp_ge_u32 s2, 256\ns_cbranch_scc1 {label}_end")
    stamp()
    if trace: A("s_memrealtime s[90:91]\nv_mov_b32 v253, 0")
    if DELAY: A("s_memrealtime s[94:95]")
    A("s_load_dwordx16 s[16:31], s[0:1], 0\ns_load_dwordx2 s[40:41], s[0:1], 96\ns_load_dwordx8 s[32:39], s[0:1], 64")
    A(f"v_lshrrev_b32 v{XT}, 6, v0\nv_and_b32 v{V_LANE}, 63, v0\nv_lshlrev_b32 v{V_OFF}, 4, v{V_LANE}")
    A(f"v_readfirstlane_b32 s{S_W}, v{XT}")
    if MAP==0:
        A(f"""s_and_b32 s{S_H}, s2, 7
        s_lshl_b32 s{S_H}, s{S_H}, 1
        s_bfe_u32 s{S_T}, s2, 0x10003
        s_or_b32 s{S_H}, s{S_H}, s{S_T}
        s_bfe_u32 s{S_B}, s2, 0x20004
        s_lshr_b32 s{S_SP}, s2, 6""")
    elif MAP in (1,4):
        if MAP==1: A(f"s_bfe_u32 s{S_H}, s2, 0x20001\ns_mov_b32 s{S_T}, s2")
        else: A(f"""s_lshr_b32 s{S_T}, s2, 1
        s_xor_b32 s{S_H}, s2, s{S_T}
        s_and_b32 s{S_H}, s{S_H}, 1
        s_and_b32 s{S_B}, s{S_T}, 2
        s_or_b32 s{S_H}, s{S_H}, s{S_B}""")
        A(f"""s_lshl_b32 s{S_H}, s{S_H}, 2
        s_bfe_u32 s{S_B}, s2, 0x20003
        s_or_b32 s{S_H}, s{S_H}, s{S_B}
        s_bfe_u32 s{S_B}, s2, 0x20005
        s_lshr_b32 s{S_SP}, s2, 7
        s_lshl_b32 s{S_SP}, s{S_SP}, 1
        s_and_b32 s{S_T}, s{S_T}, 1
        s_or_b32 s{S_SP}, s{S_SP}, s{S_T}""")
    elif MAP==3:
        A(f"""s_bfe_u32 s{S_SP}, s2, 0x20001
        s_xor_b32 s{S_H}, s2, s{S_SP}
        s_and_b32 s{S_H}, s{S_H}, 1
        s_lshl_b32 s{S_H}, s{S_H}, 3
        s_bfe_u32 s{S_T}, s2, 0x30003
        s_or_b32 s{S_H}, s{S_H}, s{S_T}
        s_lshr_b32 s{S_B}, s2, 6""")
    A(f"v_add_u32 v{V_OFF2}, 0x1000, v{V_OFF}\nv_mov_b32 v{V_ZERO}, 0")
    if JORD==0: A(f"s_lshl_b32 s{S_J}, s{S_B}, 2\ns_add_u32 s{S_J}, s{S_J}, s{S_SP}")
    else: A(f"s_lshl_b32 s{S_J}, s{S_SP}, 2\ns_add_u32 s{S_J}, s{S_J}, s{S_B}")
    A(f"s_lshl_b32 s{S_G}, s{S_B}, 4\ns_add_u32 s{S_G}, s{S_G}, s{S_H}")
    if NB==4: A(f"s_mov_b32 s{S_G}, s{S_H}")
    else: A(f"s_mov_b32 s{S_J}, s{S_SP}")
    if JORD==2: A(f"s_lshl_b32 s{S_U}, s{S_W}, 2\ns_add_u32 s{S_U}, s{S_U}, s{S_J}")
    else: A(f"s_lshl_b32 s{S_U}, s{S_J}, 2\ns_add_u32 s{S_U}, s{S_U}, s{S_W}")
    A(f"s_mov_b32 s{S_WIH}, s{S_U}")
    if ORD==0: A(f"s_mul_i32 s{S_U}, s{S_U}, {NS}")
    if ORD==2: A(f"s_lshl_b32 s{S_U}, s{S_U}, 1")
    if ROTH: A(f"s_lshl_b32 s{S_ROT}, s{S_H}, 2\ns_add_u32 s{S_ROT}, s{S_ROT}, s{S_B}\ns_mul_i32 s{S_ROT}, s{S_ROT}, {ROT}")
    else: A(f"s_mul_i32 s{S_ROT}, s{S_G}, {ROT}")
    A(f"""s_lshl_b32 s{S_T}, s{S_G}, 21
    s_lshl_b32 s{S_LB}, s{S_W}, 15
    s_mul_i32 s{S_STG}, s{S_W}, {STGW}
    s_add_u32 s{S_STG}, s{S_STG}, {STG}
    s_lshl_b32 s{S_FS}, s{S_B}, 4
    s_add_u32 s{S_FS}, s{S_FS}, s{S_H}
    s_mov_b32 s{S_RO}, 0""")
    A(f"v_lshrrev_b32 v{T}, 4, v{V_LANE}\nv_and_b32 v{T+1}, 15, v{V_LANE}")
    def kvbase():
        A(f"""s_load_dword s{S_TAG}, s[{P_WS}:{P_WS+1}], 0
        s_add_u32 s{P_K}, s{P_K}, s{S_T}
        s_addc_u32 s{P_K+1}, s{P_K+1}, 0
        s_add_u32 s{P_V}, s{P_V}, s{S_T}
        s_addc_u32 s{P_V+1}, s{P_V+1}, 0""")
    def setptr(adv=True):
        A(f"""s_add_u32 s{S_V}, s{S_U}, s{S_ROT}
        s_and_b32 s{S_V}, s{S_V}, 0x7f
        s_lshl_b32 s{S_V}, s{S_V}, 14
        s_add_u32 s{S_K}, s{P_K if adv else S_SC}, s{S_V}
        s_addc_u32 s{S_K+1}, s{(P_K if adv else S_SC)+1}, 0
        s_add_u32 s{S_V}, s{S_K}, 0x2000
        s_addc_u32 s{S_V+1}, s{S_K+1}, 0""")
        if adv: A(f"s_add_u32 s{S_U}, s{S_U}, 16")
    def direct(reg, sb, js=range(8)):
        for j in js:
            vo = V_OFF if j<4 else V_OFF2
            A(f"global_load_dwordx4 v[{reg+4*j}:{reg+4*j+3}], v{vo}, s[{sb}:{sb+1}] offset:{(j%4)*1024} {KF if sb==S_K else VF}")
    def dma(sb, m0src):
        A(m0src+"\ns_nop 0")
        for j in range(8):
            vo = V_OFF if j<4 else V_OFF2
            if j==4: A("s_add_u32 m0, m0, 0x1000\ns_nop 0")
            A(f"global_load_lds_dwordx4 v{vo}, s[{sb}:{sb+1}] offset:{(j%4)*1024} {KF if sb==S_K else VF}")
    QL=V_T-0
    QL=W1D+64-8
    XA=W1D; XS=W1D+14; TB=W1D+28; F=VST
    S=U+4; MEAN=S+4; RD=S+5
    A(f"""s_cmp_eq_u32 s{S_SP}, {QSP}
    s_cselect_b32 s{S_ROLE}, 1, 0
    s_cmp_lg_u32 s{S_SP}, {FSP}
    s_cbranch_scc1 {label}_rset
    s_cmp_lt_u32 s{S_FS}, {0 if ABL&2 else 56}
    s_cselect_b32 s{S_ROLE}, 2, 0
    {label}_rset:
    s_cmp_lg_u32 s{S_ROLE}, 0
    s_cbranch_scc1 {label}_role
    s_waitcnt lgkmcnt(0)""")
    pstamp(1)
    kvbase(); setptr()
    if PFW!=2: direct(KST,S_K)
    if PFW:
        assert (QSP,FSP)==(0,3)
        A(f"""s_cmp_eq_u32 s{S_SP}, 3
        s_cbranch_scc1 {label}_nopf
        s_lshl_b32 s{S_T2}, s{S_G}, 3
        s_add_u32 s{S_T2}, s{S_T2}, s{S_WIH}
        s_sub_u32 s{S_T2}, s{S_T2}, 4
        s_mul_i32 s{S_T2}, s{S_T2}, 7168
        v_add_u32 v{T+2}, s{S_T2}, v{V_OFF}
        v_add_u32 v{T+3}, s{S_T2}, v{V_OFF2}""")
        for i in range(7): A(f"global_load_dwordx4 v[{VX+4*i}:{VX+4*i+3}], v{T+2 if i<4 else T+3}, s[{P_WO}:{P_WO+1}] offset:{1024*(i%4)}")
        A(f"{label}_nopf:")
    if PFW==2: direct(KST,S_K)
    A(f"s_branch {label}_stream0")
    A(f"{label}_role:")
    A(f"v_mul_u32_u24 v{T+2}, 896, v{T}\nv_mul_u32_u24 v{T+3}, 56, v{T+1}\nv_add_u32 v{T+2}, v{T+2}, v{T+3}")
    A(f"""s_mul_i32 s{S_T2}, s{S_W}, 224
    v_and_b32 v{T+6}, 3, v{V_LANE}
    v_mul_u32_u24 v{T+3}, 896, v{T+6}
    v_lshl_add_u32 v{T+3}, v{T}, 3, v{T+3}
    v_add_u32 v{T+3}, s{S_T2}, v{T+3}
    v_lshlrev_b32 v{T+6}, 6, v{T+6}
    s_add_u32 m0, s{S_LB}, 0x4000""")
    def xloads():
        for i in range(3): A(f"global_load_dwordx4 v[{XS+4*i}:{XS+4*i+3}], v{T+2}, s[{P_X}:{P_X+1}] offset:{16*i}")
        A(f"global_load_dwordx2 v[{XS+12}:{XS+13}], v{T+2}, s[{P_X}:{P_X+1}] offset:48")
        for i in range(7): A(f"global_load_dwordx2 v[{XA+2*i}:{XA+2*i+1}], v{T+3}, s[{P_X}:{P_X+1}] offset:{32*i}")
    def rsum(r):
        for k in (8,4,2,1): A(f"s_nop 1\nv_add_f32_dpp v{r}, v{r}, v{r} row_ror:{k} row_mask:0xf bank_mask:0xf")
    def stats(nyounger, FF):
        A(f"s_waitcnt vmcnt({nyounger})")
        for i in range(14): A(f"v_lshlrev_b32 v{FF+2*i}, 16, v{XS+i}\nv_and_b32 v{FF+2*i+1}, 0xffff0000, v{XS+i}")
        A(f"v_add_f32 v{S}, v{FF}, v{FF+1}\nv_add_f32 v{S+1}, v{FF+2}, v{FF+3}")
        for i in range(4,28,2): A(f"v_add_f32 v{S}, v{S}, v{FF+i}\nv_add_f32 v{S+1}, v{S+1}, v{FF+i+1}")
        A(f"v_add_f32 v{S}, v{S}, v{S+1}")
        rsum(S)
        A(f"v_mul_f32 v{S}, {hex(f2u(1.0/448))}, v{S}")
        for i in range(28): A(f"v_sub_f32 v{FF+i}, v{FF+i}, v{S}")
        A(f"v_mul_f32 v{S+1}, v{FF}, v{FF}\nv_mul_f32 v{S+2}, v{FF+1}, v{FF+1}")
        for i in range(2,28,2): A(f"v_fmac_f32 v{S+1}, v{FF+i}, v{FF+i}\nv_fmac_f32 v{S+2}, v{FF+i+1}, v{FF+i+1}")
        A(f"v_add_f32 v{S+1}, v{S+1}, v{S+2}")
        rsum(S+1)
        A(f"""v_mul_f32 v{S+1}, {hex(f2u(1.0/448))}, v{S+1}
        v_cvt_pk_bf16_f32 v{S+1}, v{S+1}, v{S}
        v_and_b32 v{MEAN}, 0xffff0000, v{S+1}
        v_lshlrev_b32 v{S+1}, 16, v{S+1}
        v_add_f32 v{S+1}, {hex(f2u(1e-5))}, v{S+1}
        v_cvt_pk_bf16_f32 v{S+1}, v{S+1}, v{S+1}
        v_lshlrev_b32 v{S+1}, 16, v{S+1}
        v_sqrt_f32 v{S+1}, v{S+1}
        s_nop 0
        v_cvt_pk_bf16_f32 v{S+1}, v{S+1}, v{S+1}
        v_lshlrev_b32 v{S+1}, 16, v{S+1}
        v_rcp_f32 v{RD}, v{S+1}
        ds_bpermute_b32 v{MEAN}, v{T+6}, v{MEAN}
        ds_bpermute_b32 v{RD}, v{T+6}, v{RD}
        s_waitcnt vmcnt({nyounger-7})""")
        for i in range(14): A(f"v_lshlrev_b32 v{FF+2*i}, 16, v{XA+i}\nv_and_b32 v{FF+2*i+1}, 0xffff0000, v{XA+i}")
        A("s_waitcnt lgkmcnt(0)")
        for i in range(28): A(f"v_sub_f32 v{FF+i}, v{FF+i}, v{MEAN}")
        for i in range(14): A(f"v_cvt_pk_bf16_f32 v{XA+i}, v{FF+2*i}, v{FF+2*i+1}")
        for i in range(14): A(f"v_lshlrev_b32 v{FF+2*i}, 16, v{XA+i}\nv_and_b32 v{FF+2*i+1}, 0xffff0000, v{XA+i}")
        for i in range(28): A(f"v_mul_f32 v{FF+i}, v{FF+i}, v{RD}")
        for i in range(14): A(f"v_cvt_pk_bf16_f32 v{XA+i}, v{FF+2*i}, v{FF+2*i+1}")
    def mktag(dst): A(f"s_lshr_b32 s{dst}, s{S_TAG}, 8\ns_add_u32 s{dst}, s{dst}, 1\ns_or_b32 s{dst}, s{dst}, 0x80000000")
    A(f"s_cmp_eq_u32 s{S_ROLE}, 2\ns_cbranch_scc1 {label}_ffn")
    A(f"""s_mul_i32 s{S_T2}, s{S_W}, {112*8192}
    s_lshl_b32 s{S_T3}, s{S_H}, 9
    s_add_u32 s{S_T2}, s{S_T2}, s{S_T3}
    s_lshl_b32 s{S_T3}, s{S_B}, 7
    s_add_u32 s{S_T2}, s{S_T2}, s{S_T3}
    v_lshrrev_b32 v{T+4}, 3, v{V_LANE}
    v_lshlrev_b32 v{T+4}, 13, v{T+4}
    v_and_b32 v{T+5}, 7, v{V_LANE}
    v_lshl_add_u32 v{T+4}, v{T+5}, 4, v{T+4}
    v_add_u32 v{T+4}, s{S_T2}, v{T+4}
    s_mov_b32 s{S_T2}, 0x10000
    v_lshrrev_b32 v{T+5}, 2, v{V_LANE}
    v_lshlrev_b32 v{T+5}, 7, v{T+5}
    v_and_b32 v{U+3}, 3, v{V_LANE}
    v_lshl_add_u32 v{T+5}, v{U+3}, 3, v{T+5}
    s_add_u32 s{S_T3}, s{S_LB}, 0x4000
    v_add_u32 v{T+5}, s{S_T3}, v{T+5}
    s_waitcnt lgkmcnt(0)""")
    pstamp(1)
    A(f"""s_or_b32 s{S_T3}, s{S_FS}, s{S_W}
    s_cbranch_scc1 {label}_noand
    v_mov_b32 v{XT+5}, 0xffffff00
    s_mov_b64 exec, 1
    global_atomic_and v{V_ZERO}, v{XT+5}, s[{P_WS}:{P_WS+1}] sc1
    s_mov_b64 exec, -1
    {label}_noand:""")
    xloads()
    for i in range(14):
        if ABL&4: A(f"global_load_lds_dwordx4 v{V_OFF}, s[{P_WQ}:{P_WQ+1}]")
        else: A(f"global_load_lds_dwordx4 v{T+4}, s[{P_WQ}:{P_WQ+1}] {WF}")
        if i<13: A(f"s_add_u32 m0, m0, 0x400\nv_add_u32 v{T+4}, s{S_T2}, v{T+4}")
    kvbase(); setptr()
    direct(KST,S_K,range(QPRE))
    A(f"""v_add_u32 v{U}, s{S_STG}, v{V_OFF}
    s_lshl_b32 s{S_T2}, s{S_W}, 9
    s_add_u32 s{S_T2}, s{S_T2}, {STG}
    v_lshlrev_b32 v{U+2}, 4, v{T+1}
    v_add_u32 v{U+2}, s{S_T2}, v{U+2}
    v_lshl_add_u32 v{U+1}, v{T}, 2, v{U+2}
    s_lshl_b32 s{S_T2}, s{S_H}, 12
    s_lshl_b32 s{S_T3}, s{S_B}, 8
    s_add_u32 s{S_T2}, s{S_T2}, s{S_T3}
    s_lshl_b32 s{S_T3}, s{S_W}, 6
    s_add_u32 s{S_T2}, s{S_T2}, s{S_T3}
    s_add_u32 s{S_T2}, s{S_T2}, {QXOFF}
    v_lshlrev_b32 v{T+2}, 10, v{T}
    v_lshl_add_u32 v{T+2}, v{T+1}, 2, v{T+2}
    v_add_u32 v{T+2}, s{S_T2}, v{T+2}
    s_lshl_b32 s{S_T2}, s{S_G}, 8
    s_add_u32 s{S_T2}, s{S_T2}, {CNTOFF}
    v_mov_b32 v{T+4}, s{S_T2}""")
    pstamp(2)
    stats(7+14+QPRE, F)
    A(f"s_waitcnt vmcnt({QPRE})")
    pstamp(3)
    QD=F
    for i in range(7):
        for k in range(4): A(f"ds_read_b64_tr_b16 v[{TB+8*i+2*k}:{TB+8*i+2*k+1}], v{T+5} offset:{2048*i+32*k}")
    for i in range(7):
        A(f"s_waitcnt lgkmcnt({min(15,4*(6-i))})")
        for k in range(4):
            c = "0" if i==0 else f"v[{QD+4*k}:{QD+4*k+3}]"
            A(f"v_mfma_f32_16x16x16_bf16 v[{QD+4*k}:{QD+4*k+3}], v[{XA+2*i}:{XA+2*i+1}], v[{TB+8*i+2*k}:{TB+8*i+2*k+1}], {c}")
    A("s_mov_b64 exec, 0xffff\ns_nop 3")
    for k in range(4): A(f"ds_write_b128 v{U}, v[{QD+4*k}:{QD+4*k+3}] offset:{512*k}")
    A("s_mov_b64 exec, -1\ns_waitcnt lgkmcnt(0)\ns_barrier")
    for w in range(4): A(f"ds_read_b32 v{XT+w}, v{U+1} offset:{STGW*w}")
    mktag(S_T2)
    A(f"""v_mov_b32 v{U+3}, s{S_T2}
    s_or_b32 s{S_T3}, s{S_W}, s{S_B if NB==4 else S_W}
    s_waitcnt lgkmcnt(0)
    v_add_f32 v{XT}, v{XT}, v{XT+1}
    v_add_f32 v{XT+2}, v{XT+2}, v{XT+3}
    v_add_f32 v{XT}, v{XT}, v{XT+2}
    v_mov_b32 v{XT+3}, v{U+3}
    v_lshlrev_b32 v{XT+4}, 12, v{U+3}
    v_mov_b32_dpp v{XT+1}, v{XT} quad_perm:[1,0,3,2] row_mask:0xf bank_mask:0xf
    v_cvt_pk_bf16_f32 v{XT+2}, v{XT}, v{XT+1}
    s_mov_b32 exec_lo, 0x55555555
    s_mov_b32 exec_hi, 0x55555555
    global_store_dwordx2 v{T+2}, v[{XT+2}:{XT+3}], s[{P_WS}:{P_WS+1}] sc1
    s_mov_b64 exec, 1
    s_cmp_lg_u32 s{S_T3}, 0
    s_cbranch_scc1 {label}_noinit
    global_store_dword v{T+4}, v{XT+4}, s[{P_WS}:{P_WS+1}] sc1
    {label}_noinit:
    s_mov_b64 exec, -1""")
    stamp()
    direct(KST,S_K,range(QPRE,8))
    A(f"s_branch {label}_stream0")
    A(f"{label}_ffn:")
    A(f"""s_mul_i32 s{S_T2}, s{S_W}, {112*3584}
    s_lshl_b32 s{S_T3}, s{S_FS}, 6
    s_add_u32 s{S_T2}, s{S_T2}, s{S_T3}
    v_lshrrev_b32 v{T+4}, 2, v{V_LANE}
    v_mul_u32_u24 v{T+4}, 3584, v{T+4}
    v_and_b32 v{T+5}, 3, v{V_LANE}
    v_lshl_add_u32 v{T+4}, v{T+5}, 4, v{T+4}
    v_add_u32 v{T+4}, s{S_T2}, v{T+4}
    s_mul_i32 s{S_T2}, s{S_FS}, {32*896}
    s_mul_i32 s{S_T3}, s{S_W}, 224
    s_add_u32 s{S_T2}, s{S_T2}, s{S_T3}""")
    for i in range(7):
        A(f"""v_add_u32 v{TB+i}, {64*i}, v{V_LANE}
        v_mul_u32_u24 v{U}, 4682, v{TB+i}
        v_lshrrev_b32 v{U}, 16, v{U}
        v_mul_u32_u24 v{U}, 672, v{U}
        v_lshl_add_u32 v{TB+i}, v{TB+i}, 4, v{U}
        v_add_u32 v{TB+i}, s{S_T2}, v{TB+i}""")
    A(f"""s_mov_b32 s{S_T2}, {16*3584}
    s_lshl_b32 s{S_T3}, s{S_FS}, 6
    v_lshlrev_b32 v{T+7}, 2, v{T+1}
    v_add_u32 v{T+7}, s{S_T3}, v{T+7}
    s_waitcnt lgkmcnt(0)""")
    kvbase(); setptr()
    direct(KST,S_K)
    xloads()
    for i in range(7):
        A(f"global_load_lds_dwordx4 v{TB+i}, s[{P_W2}:{P_W2+1}] {WF}\ns_add_u32 m0, m0, 0x400\ns_nop 0")
    A(f"s_add_u32 m0, s{S_LB}, 0x6000\ns_nop 0")
    for i in range(7):
        A(f"global_load_lds_dwordx4 v{T+4}, s[{P_W1}:{P_W1+1}] {WF}")
        if i<6: A(f"s_add_u32 m0, m0, 0x400\nv_add_u32 v{T+4}, s{S_T2}, v{T+4}")
    A(f"global_load_dword v{V_B1}, v{T+7}, s[{P_B1}:{P_B1+1}]")
    A(f"{label}_stream0:")
    direct(VST,S_V)
    setptr()
    pstamp(5)
    A(f"s_lshl_b32 s{S_T3}, s{S_H}, 12\ns_add_u32 s{S_T3}, s{S_T3}, {QXOFF}\nv_and_b32 v{V_QPA}, 31, v{V_LANE}\nv_lshlrev_b32 v{V_QPA}, 5, v{V_QPA}\nv_add_u32 v{V_QPA}, s{S_T3}, v{V_QPA}")
    if NB==1: A(f"s_lshl_b32 s{S_T3}, s{S_B}, 10\nv_add_u32 v{V_QPA}, s{S_T3}, v{V_QPA}")
    A(f"s_lshl_b32 s{S_T2}, s{S_G}, 8\ns_add_u32 s{S_T2}, s{S_T2}, {CNTOFF}\ns_add_u32 s{S_CNT}, s{P_WS}, s{S_T2}\ns_addc_u32 s{S_CNT+1}, s{P_WS+1}, 0\nv_mov_b32 v{V_ONE}, 1")
    A(f"""v_and_b32 v{U}, 1, v{V_LANE}
    v_mov_b32 v{U+1}, 0xffff
    v_lshlrev_b32 v{U}, 4, v{U}
    v_lshlrev_b32 v{U+1}, v{U}, v{U+1}
    v_lshrrev_b32 v{U+3}, 1, v{V_LANE}
    v_xor_b32 v{U+3}, v{U+3}, v{V_LANE}
    v_and_b32 v{U+3}, 8, v{U+3}
    v_bfe_u32 v{U+2}, v{V_LANE}, 1, 2
    v_or_b32 v{U+2}, v{U+2}, v{U+3}""")
    for j in range(4):
        A(f"v_cmp_eq_u32 vcc, {j}, v{U+2}\ns_nop 1\nv_cndmask_b32 v{MK+j}, 0, v{U+1}, vcc")
    A(f"v_add_u32 v{V_LDSR}, s{S_LB}, v{V_OFF}")
    A(f"v_mov_b32 v{LA}, 0\nv_mov_b32 v{VM}, {hex(NEG)}\ns_mov_b32 s{S_M}, {hex(NEG)}\ns_mov_b32 s{S_C}, {hex(CSC)}")
    for j in range(4): A(f"v_mov_b32 v{OA+j}, 0")
    A(f"s_mov_b32 s{S_IT}, 0\ns_mov_b32 s{S_NU}, 0x7fff\ns_mov_b32 s{S_SPIN}, 0\ns_waitcnt lgkmcnt(0)")
    mktag(S_TAG)
    A(f"v_mov_b32 v{V_TAG}, s{S_TAG}\ns_and_b32 s{S_TG}, s{S_TAG}, 0xfffff")
    dma(S_K, f"s_mov_b32 m0, s{S_LB}")
    pstamp(6)
    for i in range(7):
        A(f"""v_add_u32 v{WA+i}, {64*i}, v{V_LANE}
        v_mul_u32_u24 v{U}, 4682, v{WA+i}
        v_lshrrev_b32 v{U}, 16, v{U}
        v_mul_u32_u24 v{U+1}, 14, v{U}
        v_sub_u32 v{WA+i}, v{WA+i}, v{U+1}
        v_and_b32 v{U+1}, 3, v{U}
        v_lshrrev_b32 v{U}, 2, v{U}
        v_lshl_add_u32 v{U}, v{U+1}, 3, v{U}
        v_mul_u32_u24 v{U}, 896, v{U}
        v_lshl_add_u32 v{WA+i}, v{WA+i}, 4, v{U}""")
    A(f"""s_mul_i32 s{S_T}, s{S_H}, {256*896}
    s_mul_i32 s{S_T3}, s{S_W}, 224
    s_add_u32 s{S_T}, s{S_T}, s{S_T3}
    s_add_u32 s{S_WOP}, s{P_WO}, s{S_T}
    s_addc_u32 s{S_WOP+1}, s{P_WO+1}, 0
    s_lshl_b32 s{S_PART}, s{S_H}, {4 if NB==4 else 2}
    s_add_u32 s{S_PART}, s{S_PART}, s{S_J}""")
    dma(S_V, f"s_add_u32 m0, s{S_LB}, 0x2000")
    setptr()
    pstamp(7)
    A(f"s_cmp_eq_u32 s{S_ROLE}, 2\ns_cbranch_scc1 {label}_ffn2\n{label}_ffn2x:")
    dma(S_K, f"s_add_u32 m0, s{S_LB}, 0x4000")
    pstamp(8)
    A(f"""v_bfe_u32 v{V_TRA}, v{V_LANE}, 2, 2
    v_lshl_add_u32 v{V_TRA}, v{T}, 3, v{V_TRA}
    v_mul_u32_u24 v{V_TRA}, 224, v{V_TRA}
    v_and_b32 v{U}, 3, v{V_LANE}
    v_lshl_add_u32 v{V_TRA}, v{U}, 3, v{V_TRA}
    v_add_u32 v{V_TRA}, s{S_STG}, v{V_TRA}
    v_lshlrev_b32 v{V_AW}, 3, v{V_LANE}
    v_add_u32 v{V_AW}, s{S_STG}, v{V_AW}
    v_mul_u32_u24 v{V_AR}, {STGW}, v{U}
    v_bfe_u32 v{U+1}, v{V_LANE}, 2, 2
    v_mul_u32_u24 v{U+1}, {AROW if NB==4 else 0}, v{U+1}
    v_add_u32 v{V_AR}, v{V_AR}, v{U+1}
    v_lshl_add_u32 v{V_AR}, v{T}, 4, v{V_AR}
    v_add_u32 v{V_AR}, {STG}, v{V_AR}""")
    A(f"""s_mul_i32 s{S_T}, s{S_W}, {7*4096}
    s_lshl_b32 s{S_T3}, s{S_PART}, 6
    s_add_u32 s{S_T}, s{S_T}, s{S_T3}
    s_mul_i32 s{S_T3}, s{S_B}, {28*4096}
    s_add_u32 s{S_T}, s{S_T}, s{S_T3}
    s_add_u32 s{S_T}, s{S_T}, {YOFF}
    v_lshlrev_b32 v{V_YA}, 12, v{T}
    v_and_b32 v{U}, 12, v{V_LANE}
    v_lshl_add_u32 v{V_YA}, v{U}, 2, v{V_YA}
    v_add_u32 v{V_YA}, s{S_T}, v{V_YA}""")
    dma(S_V, f"s_add_u32 m0, s{S_LB}, 0x6000")
    setptr()
    A(f"""s_mul_i32 s{S_CB}, s2, 37
    s_lshr_b32 s{S_CB}, s{S_CB}, 8
    s_lshl_b32 s{S_CG}, s2, 2
    s_add_u32 s{S_CG}, s{S_CG}, s{S_W}
    s_lshl_b32 s{S_T}, s{S_CG}, {14 if NB==4 else 12}
    s_add_u32 s{S_T3}, s{S_T}, {YOFF}
    s_add_u32 s{S_Y}, s{P_WS}, s{S_T3}
    s_addc_u32 s{S_Y+1}, s{P_WS+1}, 0
    s_lshl_b32 s{S_T}, s{S_CG}, 12
    s_add_u32 s{S_T3}, s{S_T}, {ZOFF}
    s_add_u32 s{S_Z}, s{P_WS}, s{S_T3}
    s_addc_u32 s{S_Z+1}, s{P_WS+1}, 0
    s_lshl_b32 s{S_T}, s{2 if MLR else S_CB}, {12 if NB==4 else 10}
    s_add_u32 s{S_T}, s{S_T}, {MLOFF}
    v_add_u32 v{CMA}, s{S_T}, v{V_OFF}
    v_and_b32 v{COUT}, 3, v{V_LANE}
    v_lshlrev_b32 v{COUT}, 3, v{COUT}
    v_lshrrev_b32 v{CCOL}, 5, v{V_LANE}
    v_lshl_add_u32 v{COUT}, v{CCOL}, 1, v{COUT}
    v_bfe_u32 v{CCOL}, v{V_LANE}, 4, 1
    v_lshl_add_u32 v{COUT}, v{CCOL}, 2, v{COUT}
    s_lshl_b32 s{S_T}, s{S_CG}, 5
    v_add_u32 v{COUT}, s{S_T}, v{COUT}
    s_mul_i32 s{S_T}, s{S_CB}, 896
    v_subrev_u32 v{CCOL}, s{S_T}, v{COUT}
    v_and_b32 v{CBP}, 0xfc, v{V_LANE}""")
    A(f"""s_mov_b32 s{S_PH}, 0
    s_mov_b32 s{S_TI}, 4
    s_mov_b32 s{S_NKI}, 0x7fff
    s_sub_u32 s{S_T}, s{S_SP}, 1
    s_cmp_lt_u32 s{S_T}, 2
    s_cselect_b32 s{S_NSX}, {NSK}, {NSK+RX}
    v_lshlrev_b32 v{VU}, 4, v{V_LANE}
    v_add_u32 v{VU}, s{S_WIH}, v{VU}
    s_and_b32 s{S_T}, s{S_WIH}, 7
    s_add_u32 s{S_T}, s{S_T}, {8*NSK}
    v_lshlrev_b32 v{U}, 3, v{V_LANE}
    v_add_u32 v{U}, s{S_T}, v{U}
    v_cmp_gt_u32 vcc, {NSK}, v{V_LANE}
    s_nop 1
    v_cndmask_b32 v{VU}, v{U}, v{VU}, vcc
""")
    if VT: A(f"s_mov_b64 exec, 1\nglobal_load_dword v{V_CLM}, v{V_ZERO}, s[{P_V}:{P_V+1}] nt\nglobal_load_dword v{V_CLM}, v{V_ZERO}, s[{S_WOP}:{S_WOP+1}]\ns_mov_b64 exec, -1")
    direct(KX,S_K)
    pstamp(9)
    QLs=[SV, W1D+64, W1D+72, W1D+80]
    def qpoll():
        for b in range(NB):
            A(f"global_load_dwordx4 v[{QLs[b]}:{QLs[b]+3}], v{V_QPA}, s[{P_WS}:{P_WS+1}] offset:{1024*b} sc1\nglobal_load_dwordx4 v[{QLs[b]+4}:{QLs[b]+7}], v{V_QPA}, s[{P_WS}:{P_WS+1}] offset:{1024*b+16} sc1")
    qpoll()
    direct(VX,S_V)
    pstamp(10)
    A(f"s_waitcnt vmcnt(8)")
    A(f"{label}_qchk:\nv_mov_b32 v{XT}, 0")
    for b in range(NB):
        for i in range(4): A(f"v_bitop3_b32 v{XT}, v{XT}, v{QLs[b]+2*i+1}, v{V_TAG} bitop3:0xf6")
    A(f"""v_cmp_ne_u32 vcc, 0, v{XT}
    s_add_u32 s{S_SPIN}, s{S_SPIN}, 1
    s_cmp_gt_u32 s{S_SPIN}, {SPIN_MAX}
    s_cbranch_vccz {label}_qok
    s_cbranch_scc1 {label}_qok""")
    qpoll()
    A(f"s_waitcnt vmcnt(0)\ns_branch {label}_qchk\n{label}_qok:")
    for i in range(4): A(f"v_mov_b32 v{QW+i}, v{QLs[0]+2*i}")
    A(f"""s_mul_i32 s{S_T}, s{S_W}, {HW}
    s_add_u32 s{S_T}, s{S_T}, {L_H}
    v_and_b32 v{V_SCL}, 0xfc, v{V_LANE}
    v_add_u32 v{V_SCL}, s{S_T}, v{V_SCL}""")
    stamp()
    A(f"s_branch {label}_k1")
    A(f"{label}_ffn2:")
    FF=TB+28
    stats(24+7+15, FF)
    A(f"""v_lshrrev_b32 v{U}, 2, v{V_LANE}
    v_lshlrev_b32 v{U}, 6, v{U}
    v_and_b32 v{U+1}, 3, v{V_LANE}
    v_lshl_add_u32 v{U}, v{U+1}, 3, v{U}
    s_add_u32 s{S_T2}, s{S_LB}, 0x6000
    v_add_u32 v{U}, s{S_T2}, v{U}
    s_waitcnt vmcnt(24)""")
    for i in range(7):
        for k in range(2): A(f"ds_read_b64_tr_b16 v[{TB+4*i+2*k}:{TB+4*i+2*k+1}], v{U} offset:{1024*i+32*k}")
    A(f"""v_lshlrev_b32 v{U+1}, 9, v{T}
    v_lshl_add_u32 v{U+1}, v{T+1}, 2, v{U+1}
    v_add_u32 v{U+1}, s{S_STG}, v{U+1}
    v_lshlrev_b32 v{U+3}, 3, v{T+1}
    v_add_u32 v{U+3}, {STG}, v{U+3}
    v_lshl_add_u32 v{U+2}, v{T}, 7, v{U+3}
    s_waitcnt lgkmcnt(0)""")
    for i in range(7):
        for k in range(2):
            c = "0" if i==0 else f"v[{BA+4*k}:{BA+4*k+3}]"
            A(f"v_mfma_f32_16x16x16_bf16 v[{BA+4*k}:{BA+4*k+3}], v[{XA+2*i}:{XA+2*i+1}], v[{TB+4*i+2*k}:{TB+4*i+2*k+1}], {c}")
    A(f"""v_bfe_u32 v{T+4}, v{V_LANE}, 2, 2
    v_lshl_add_u32 v{T+4}, v{T}, 3, v{T+4}
    v_mul_u32_u24 v{T+4}, 224, v{T+4}
    v_and_b32 v{T+5}, 3, v{V_LANE}
    v_lshl_add_u32 v{T+4}, v{T+5}, 3, v{T+4}
    s_add_u32 s{S_T2}, s{S_LB}, 0x4000
    v_add_u32 v{T+4}, s{S_T2}, v{T+4}
    s_mov_b64 exec, 0xffff""")
    for k in range(2):
        for r in range(4): A(f"ds_write_b32 v{U+1}, v{BA+4*k+r} offset:{128*r+64*k}")
    A("s_mov_b64 exec, -1")
    for j in range(7):
        A(f"ds_read_b64_tr_b16 v[{TB+4*j}:{TB+4*j+1}], v{T+4} offset:{32*j}\nds_read_b64_tr_b16 v[{TB+4*j+2}:{TB+4*j+3}], v{T+4} offset:{32*j+896}")
    A("s_waitcnt lgkmcnt(0)\ns_barrier")
    HR=FF
    for w in range(4): A(f"ds_read_b64 v[{HR+2*w}:{HR+2*w+1}], v{U+2} offset:{STGW*w}")
    A(f"""s_mul_i32 s{S_T2}, s{S_W}, {HW}
    s_add_u32 s{S_T2}, s{S_T2}, {L_H}
    v_lshlrev_b32 v{U}, 2, v{V_LANE}
    v_add_u32 v{U}, s{S_T2}, v{U}
    v_and_b32 v{U+1}, 3, v{V_LANE}
    v_lshlrev_b32 v{U+1}, 6, v{U+1}
    v_lshl_add_u32 v{U+1}, v{T}, 4, v{U+1}
    v_add_u32 v{U+1}, s{S_T2}, v{U+1}
    v_lshlrev_b32 v{XT+4}, 16, v{V_B1}
    v_and_b32 v{XT+5}, 0xffff0000, v{V_B1}
    s_waitcnt lgkmcnt(0)
    s_barrier""")
    for e in range(2):
        A(f"""v_add_f32 v{HR+e}, v{HR+e}, v{HR+2+e}
        v_add_f32 v{HR+4+e}, v{HR+4+e}, v{HR+6+e}
        v_add_f32 v{HR+e}, v{HR+e}, v{HR+4+e}""")
    A(f"""v_cvt_pk_bf16_f32 v{HR}, v{HR}, v{HR+1}
    v_and_b32 v{HR+1}, 0xffff0000, v{HR}
    v_lshlrev_b32 v{HR}, 16, v{HR}
    v_add_f32 v{HR}, v{HR}, v{XT+4}
    v_add_f32 v{HR+1}, v{HR+1}, v{XT+5}
    v_cvt_pk_bf16_f32 v{HR}, v{HR}, v{HR+1}
    v_and_b32 v{HR+1}, 0xffff0000, v{HR}
    v_lshlrev_b32 v{HR}, 16, v{HR}
    v_max_f32 v{HR}, 0, v{HR}
    v_max_f32 v{HR+1}, 0, v{HR+1}
    v_mul_f32 v{HR}, v{HR}, v{HR}
    v_mul_f32 v{HR+1}, v{HR+1}, v{HR+1}
    v_cvt_pk_bf16_f32 v{HR}, v{HR}, v{HR+1}
    ds_write_b32 v{U}, v{HR}
    ds_read_b128 v[{BA}:{BA+3}], v{U+1}""")
    A(f"""s_lshl_b32 s{S_T2}, s{S_FS}, 6
    s_mul_i32 s{S_T3}, s{S_W}, {7*4096}
    s_add_u32 s{S_T2}, s{S_T2}, s{S_T3}
    s_add_u32 s{S_T2}, s{S_T2}, {ZOFF}
    v_mul_u32_u24 v{U+2}, {28*4096}, v{T}
    v_and_b32 v{U+3}, 12, v{V_LANE}
    v_lshl_add_u32 v{U+2}, v{U+3}, 2, v{U+2}
    v_add_u32 v{U+2}, s{S_T2}, v{U+2}
    s_mov_b32 s{S_T2}, 0x1000
    s_waitcnt lgkmcnt(0)""")
    ZD=FF
    for j in range(7): A(f"v_mfma_f32_16x16x32_bf16 v[{ZD+4*j}:{ZD+4*j+3}], v[{BA}:{BA+3}], v[{TB+4*j}:{TB+4*j+3}], 0")
    A("s_nop 2")
    for j in range(7): A(f"v_permlane16_swap_b32 v{ZD+4*j}, v{ZD+4*j+1}\nv_permlane16_swap_b32 v{ZD+4*j+2}, v{ZD+4*j+3}")
    for j in range(7): A(f"v_permlane32_swap_b32 v{ZD+4*j}, v{ZD+4*j+2}")
    for j in range(7): A(f"v_mov_b32_dpp v{ZD+4*j+2}, v{ZD+4*j} quad_perm:[1,0,3,2] row_mask:0xf bank_mask:0xf\nv_mov_b32 v{ZD+4*j+1}, v{V_TAG}\nv_mov_b32 v{ZD+4*j+3}, v{V_TAG}")
    for j in range(7): A(f"v_cvt_pk_bf16_f32 v{ZD+4*j}, v{ZD+4*j}, v{ZD+4*j+2}")
    for j in range(7): A(f"v_mov_b32_dpp v{ZD+4*j+2}, v{ZD+4*j} quad_perm:[2,2,2,2] row_mask:0xf bank_mask:0xf")
    A("s_mov_b32 exec_lo, 0x11111111\ns_mov_b32 exec_hi, 0x11111111")
    for j in range(7):
        if not ABL&64 and not (ABL&128 and j>=3): A(f"global_store_dwordx4 v{U+2}, v[{ZD+4*j}:{ZD+4*j+3}], s[{P_WS}:{P_WS+1}] sc1")
        if j<6: A(f"v_add_u32 v{U+2}, s{S_T2}, v{U+2}")
    A(f"s_mov_b64 exec, -1\ns_branch {label}_ffn2x")
    def kscore(R, dst):
        for j in range(4):
            for t in range(8):
                if j==0: A(f"v_dot2_f32_bf16 v{XT+t}, v{R+4*t}, v{QW}, 0")
                else: A(f"v_dot2c_f32_bf16 v{XT+t}, v{R+4*t+j}, v{QW+j}")
        A("s_nop 2")
        for u in range(4): A(f"v_permlane16_swap_b32 v{XT+2*u}, v{XT+2*u+1}")
        for u in range(4): A(f"v_add_f32 v{XT+2*u}, v{XT+2*u}, v{XT+2*u+1}")
        y=[XT,XT+2,XT+4,XT+6]
        A(f"""s_nop 0
        v_add_f32_dpp v{y[0]}, v{y[0]}, v{y[0]} row_ror:8 row_mask:0xf bank_mask:0x3
        v_add_f32_dpp v{y[2]}, v{y[2]}, v{y[2]} row_ror:8 row_mask:0xf bank_mask:0x3
        v_add_f32_dpp v{y[0]}, v{y[1]}, v{y[1]} row_ror:8 row_mask:0xf bank_mask:0xc
        v_add_f32_dpp v{y[2]}, v{y[3]}, v{y[3]} row_ror:8 row_mask:0xf bank_mask:0xc
        s_nop 1
        v_add_f32_dpp v{y[0]}, v{y[0]}, v{y[0]} row_shl:4 row_mask:0xf bank_mask:0x5
        s_nop 0
        v_add_f32_dpp v{y[0]}, v{y[2]}, v{y[2]} row_shr:4 row_mask:0xf bank_mask:0xa
        s_nop 1
        v_add_f32_dpp v{y[0]}, v{y[0]}, v{y[0]} quad_perm:[1,0,3,2] row_mask:0xf bank_mask:0xf
        s_nop 1
        v_add_f32_dpp v{dst}, v{y[0]}, v{y[0]} quad_perm:[2,3,0,1] row_mask:0xf bank_mask:0xf""")
    def build_b(dst, src, k, mk):
        for j in range(4): A(f"v_and_b32_dpp v{dst+j}, v{src}, v{mk+j} row_newbcast:{k} row_mask:0xf bank_mask:0xf")
    def beta(t): return (t>>2) | (((t>>1)&1)<<1)
    def pv(R, pa, pb):
        build_b(BA, pa, 4*beta(0), MK)
        for t in range(8):
            cur = BA if t%2==0 else BB
            nxt = BB if t%2==0 else BA
            if t+1<8: build_b(nxt, pb if (t+1)&1 else pa, 4*beta(t+1), MK)
            else: A("s_nop 1")
            A(f"s_waitcnt lgkmcnt({7-t})")
            A(f"v_mfma_f32_16x16x32_bf16 v[{OA}:{OA+3}], v[{R+4*t}:{R+4*t+3}], v[{cur}:{cur+3}], v[{OA}:{OA+3}]")
    def scptr(ureg):
        A(f"s_lshl_b32 s{S_SC}, s{ureg}, 7\ns_add_u32 s{S_SC}, s{P_WS}, s{S_SC}\ns_addc_u32 s{S_SC+1}, s{P_WS+1}, 0")
    A(f"{label}_loop:")
    A(f"s_sub_u32 s{S_REM}, s{S_NU}, s{S_IT}")
    A(f"s_cmp_eq_u32 s{S_IT}, 3\ns_cbranch_scc1 {label}_xk")
    A(f"s_cmp_ge_u32 s{S_REM}, 2\ns_cbranch_scc1 {label}_wk24\ns_waitcnt vmcnt(8)\n{label}_wk24:\ns_waitcnt vmcnt(24)")
    A(f"""s_sub_u32 s{S_T}, s{S_IT}, s{S_NKI}
    s_min_u32 s{S_T2}, s{S_T}, {CAP-1}
    s_cmp_ge_u32 s{S_IT}, s{S_NKI}
    s_cselect_b32 s{S_PH}, 1, 0
    s_lshl_b32 s{S_T2}, s{S_T2}, 6
    v_add_u32 v{V_T+1}, s{S_T2}, v{V_SCL}
    v_add_u32 v{V_T}, s{S_RO}, v{V_LDSR}
    ds_read_b32 v{PUB}, v{V_T+1}""")
    for j in range(8): A(f"ds_read_b128 v[{KST+4*j}:{KST+4*j+3}], v{V_T} offset:{1024*j}")
    A(f"s_cmp_lg_u32 s{S_PH}, 0\ns_cbranch_scc1 {label}_v1")
    A(f"s_waitcnt lgkmcnt(0)\n{label}_k1:")
    kscore(KST, S1)
    A(f"s_cmp_eq_u32 s{S_IT}, 0\ns_cbranch_scc1 {label}_k2")
    A(f"s_cmp_eq_u32 s{S_IT}, 3\ns_cbranch_scc1 {label}_xv")
    A(f"s_branch {label}_sg2")
    A(f"""{label}_v1:
    s_waitcnt lgkmcnt(8)
    v_lshlrev_b32 v{S1}, 16, v{PUB}
    v_and_b32 v{S2}, 0xffff0000, v{PUB}
    v_mul_f32 v{S1}, s{S_C}, v{S1}
    v_mul_f32 v{S2}, s{S_C}, v{S2}
    v_max3_f32 v{XT+1}, v{S1}, v{S2}, s{S_M}
    s_nop 1
    v_max_f32_dpp v{XT+1}, v{XT+1}, v{XT+1} row_ror:4 row_mask:0xf bank_mask:0xf
    s_nop 1
    v_max_f32_dpp v{XT+1}, v{XT+1}, v{XT+1} row_ror:8 row_mask:0xf bank_mask:0xf
    s_nop 1
    v_max_f32_dpp v{XT+1}, v{XT+1}, v{XT+1} row_bcast:15 row_mask:0xa bank_mask:0xf
    s_nop 1
    v_max_f32_dpp v{XT+1}, v{XT+1}, v{XT+1} row_bcast:31 row_mask:0xc bank_mask:0xf
    s_nop 0
    v_readlane_b32 s{S_M}, v{XT+1}, 63
    s_nop 1
    v_subrev_f32 v{XT}, s{S_M}, v{S1}
    v_subrev_f32 v{XT+2}, s{S_M}, v{S2}
    v_subrev_f32 v{XT+1}, s{S_M}, v{VM}
    v_exp_f32 v{XT}, v{XT}
    v_exp_f32 v{XT+2}, v{XT+2}
    v_exp_f32 v{XT+1}, v{XT+1}
    v_mov_b32 v{VM}, s{S_M}
    v_cvt_pk_bf16_f32 v{PA}, v{XT}, v{XT}
    v_cvt_pk_bf16_f32 v{PA2}, v{XT+2}, v{XT+2}
    v_fma_f32 v{LA}, v{LA}, v{XT+1}, v{XT}
    v_mov_b32 v{PB}, v{PA}
    v_mov_b32 v{PB2}, v{PA2}
    v_add_f32 v{LA}, v{LA}, v{XT+2}""")
    for j in range(4): A(f"v_mul_f32 v{OA+j}, v{XT+1}, v{OA+j}")
    A(f"v_permlane16_swap_b32 v{PA}, v{PB}\nv_permlane16_swap_b32 v{PA2}, v{PB2}\ns_nop 0")
    pv(KST, PA, PB)
    A(f"{label}_sg2:")
    A(f"s_cmp_ge_u32 s{S_REM}, 2\ns_cbranch_scc1 {label}_wv16\ns_waitcnt vmcnt(0)\n{label}_wv16:\ns_waitcnt vmcnt(16)")
    A(f"v_add_u32 v{V_T}, s{S_RO}, v{V_LDSR}")
    for j in range(8): A(f"ds_read_b128 v[{VST+4*j}:{VST+4*j+3}], v{V_T} offset:{8192+1024*j}")
    if not ABL&1: A(f"s_cmp_lt_u32 s{S_IT}, 11\ns_cbranch_scc1 {label}_wold")
    A(f"{label}_woret:")
    A(f"s_cmp_lt_u32 s{S_REM}, 3\ns_cbranch_scc1 {label}_noiss")
    A(f"""s_cmp_ge_u32 s{S_TI}, s{S_NKI}
    s_cbranch_scc1 {label}_isv
    v_readlane_b32 s{S_U}, v{VU}, s{S_TI}
    s_mov_b64 s[{S_SC}:{S_SC+1}], s[{P_K}:{P_K+1}]
    s_cmp_lt_u32 s{S_TI}, s{S_NSX}
    s_cbranch_scc1 {label}_haveu
    v_readfirstlane_b32 s{S_T}, v{V_CLM}
    s_mov_b32 m0, s{S_TI}
    s_lshr_b32 s{S_T2}, s{S_T}, 12
    s_and_b32 s{S_T}, s{S_T}, 0xfff
    s_cmp_lg_u32 s{S_T2}, s{S_TG}
    s_cselect_b32 s{S_T}, 0xfff, s{S_T}
    s_add_u32 s{S_U}, s{S_T}, {16*NSK+8*RX}
    s_cmp_lt_u32 s{S_U}, 128
    v_writelane_b32 v{VU}, s{S_U}, m0
    s_cbranch_scc1 {label}_haveu
    s_mov_b32 s{S_NKI}, s{S_TI}
    s_lshl_b32 s{S_NU}, s{S_TI}, 1
    {label}_isv:
    s_sub_u32 s{S_T}, s{S_TI}, s{S_NKI}
    s_mov_b64 s[{S_SC}:{S_SC+1}], s[{P_V}:{P_V+1}]
    s_nop 0
    v_readlane_b32 s{S_U}, v{VU}, s{S_T}
    s_branch {label}_noclaim
    {label}_haveu:
    s_add_u32 s{S_T}, s{S_TI}, 1
    s_cmp_lt_u32 s{S_T}, s{S_NSX}
    s_cbranch_scc1 {label}_noclaim
    v_mov_b32 v{V_CLM}, -1
    s_cmp_ge_u32 s{S_T}, {CAP}
    s_cbranch_scc1 {label}_noclaim
    s_mov_b64 exec, 1
    global_atomic_add v{V_CLM}, v{V_ZERO}, v{V_ONE}, s[{S_CNT}:{S_CNT+1}] sc0 sc1
    s_mov_b64 exec, -1
    {label}_noclaim:
    s_add_u32 s{S_TI}, s{S_TI}, 1""")
    setptr(False)
    dma(S_K, f"s_add_u32 m0, s{S_LB}, s{S_RO}")
    A(f"s_add_u32 m0, m0, 0x1000\ns_waitcnt lgkmcnt(0)")
    for j in range(8):
        vo = V_OFF if j<4 else V_OFF2
        if j==4: A("s_add_u32 m0, m0, 0x1000\ns_nop 0")
        A(f"global_load_lds_dwordx4 v{vo}, s[{S_V}:{S_V+1}] offset:{(j%4)*1024} {VF}")
    A(f"{label}_noiss:")
    A(f"s_xor_b32 s{S_RO}, s{S_RO}, 0x4000")
    if trace: A(f"s_memrealtime s[92:93]\ns_waitcnt lgkmcnt(0)\ns_mov_b32 m0, s{S_IT}\nv_writelane_b32 v253, s92, m0")
    A(f"s_cmp_lg_u32 s{S_PH}, 0\ns_cbranch_scc1 {label}_v2")
    A(f"s_waitcnt lgkmcnt(0)\n{label}_k2:")
    kscore(VST, S2)
    A(f"""s_lshl_b32 s{S_T2}, s{S_IT}, 6
    v_cvt_pk_bf16_f32 v{PUB}, v{S1}, v{S2}
    v_add_u32 v{V_T+1}, s{S_T2}, v{V_SCL}
    ds_write_b32 v{V_T+1}, v{PUB}
    s_branch {label}_next
    {label}_v2:""")
    pv(VST, PA2, PB2)
    A(f"{label}_next:")
    if stamps:
        for k in ((2,4,8,12) if stamps==1 else (1,)):
            A(f"s_cmp_lg_u32 s{S_IT}, {k}\ns_cbranch_scc1 {label}_st{k}")
            stamp()
            A(f"{label}_st{k}:")
    A(f"s_add_u32 s{S_IT}, s{S_IT}, 1")
    if NB==4: A(f"s_and_b32 s{S_T}, s{S_IT}, 0x13\ns_cbranch_scc0 {label}_bsw")
    A(f"""{label}_bswx:
    s_cmp_lt_u32 s{S_IT}, s{S_NU}
    s_cbranch_scc1 {label}_loop
    s_branch {label}_tail""")
    def lred():
        for k in (8,4): A(f"s_nop 1\nv_add_f32_dpp v{LA}, v{LA}, v{LA} row_ror:{k} row_mask:0xf bank_mask:0xf")
        A(f"s_nop 1\nv_add_f32_dpp v{LA}, v{LA}, v{LA} row_bcast:15 row_mask:0xa bank_mask:0xf")
        A(f"s_nop 1\nv_add_f32_dpp v{LA}, v{LA}, v{LA} row_bcast:31 row_mask:0xc bank_mask:0xf")
    if NB==4:
        A(f"{label}_bsw:\ns_cmp_gt_u32 s{S_IT}, 12\ns_cbranch_scc1 {label}_bswx")
        lred()
        for i in range(8): A(f"v_mov_b32 v{SV+i}, v{SV+4+i}")
        A(f"""v_cvt_pk_bf16_f32 v{SV+8}, v{OA}, v{OA+1}
        v_cvt_pk_bf16_f32 v{SV+9}, v{OA+2}, v{OA+3}
        v_mov_b32 v{SV+10}, v{LA}
        v_mov_b32 v{SV+11}, v{VM}
        v_mov_b32 v{LA}, 0
        v_mov_b32 v{VM}, {hex(NEG)}
        s_mov_b32 s{S_M}, {hex(NEG)}""")
        for j in range(4): A(f"v_mov_b32 v{OA+j}, 0")
        for i in range(4): A(f"v_mov_b32 v{QW+i}, v{QLs[1]+2*i}\nv_mov_b32 v{QLs[1]+2*i}, v{QLs[2]+2*i}\nv_mov_b32 v{QLs[2]+2*i}, v{QLs[3]+2*i}")
        A(f"s_branch {label}_bswx")
    A(f"{label}_wold:")
    its=[1,2,4,5,6,7,8,9,10]
    for st,itv in enumerate(its):
        if st<8: A(f"s_cmp_lg_u32 s{S_IT}, {itv}\ns_cbranch_scc1 {label}_wo{st+1}")
        if st>0:
            for j in range(7):
                r=((st-1)*7+j)*4
                A(f"ds_read_b64_tr_b16 a[{r}:{r+1}], v{V_TRA} offset:{32*j}\nds_read_b64_tr_b16 a[{r+2}:{r+3}], v{V_TRA} offset:{32*j+896}")
        if st<8:
            base=(128*(st&1)+32*(st>>1))*896
            A(f"s_add_u32 s{S_T2}, s{S_WOP}, {base}\ns_addc_u32 s{S_T3}, s{S_WOP+1}, 0\ns_branch {label}_woiss")
            A(f"{label}_wo{st+1}:")
        else: A(f"s_branch {label}_woret")
    assert S_T3==S_T2+1
    A(f"{label}_woiss:\ns_mov_b32 s{S_K}, s{S_T2}\ns_mov_b32 s{S_K+1}, s{S_T3}\ns_mov_b32 m0, s{S_STG}\ns_waitcnt lgkmcnt(0)")
    for i in range(7):
        A(f"global_load_lds_dwordx4 v{WA+i}, s[{S_K}:{S_K+1}] {WOF}")
        if i<6: A("s_add_u32 m0, m0, 0x400\ns_nop 0")
    A(f"s_branch {label}_woret")
    A(f"{label}_xk:")
    for i in range(32): A(f"v_mov_b32 v{KST+i}, v{KX+i}")
    A(f"s_branch {label}_k1")
    A(f"{label}_xv:\ns_waitcnt vmcnt(32)")
    for i in range(32): A(f"v_mov_b32 v{VST+i}, v{VX+i}")
    A(f"s_branch {label}_k2")
    A(f"{label}_tail:")
    stamp()
    lred()
    A(f"""v_cvt_pk_bf16_f32 v{OA}, v{OA}, v{OA+1}
    v_cvt_pk_bf16_f32 v{OA+1}, v{OA+2}, v{OA+3}
    s_lshl_b32 s{S_T}, s{S_W}, 3
    s_add_u32 s{S_T}, s{S_T}, {L_ML}
    v_mov_b32 v{T}, s{S_T}""")
    for b in range(NB-1): A(f"ds_write_b64 v{V_AW}, v[{SV+4*b}:{SV+4*b+1}] offset:{AROW*b}")
    A(f"ds_write_b64 v{V_AW}, v[{OA}:{OA+1}] offset:{AROW*(NB-1)}")
    A("s_mov_b32 exec_lo, 0\ns_mov_b32 exec_hi, 0x80000000")
    for b in range(NB-1): A(f"ds_write_b64 v{T}, v[{SV+4*b+2}:{SV+4*b+3}] offset:{32*b}")
    A(f"ds_write_b64 v{T}, v[{LA}:{LA+1}] offset:{32*(NB-1)}\ns_mov_b64 exec, -1")
    CZ=W1D; CF=W1D; CY=W1D+16; CML=U; CM=XT+2
    A(f"s_cmp_ge_u32 s2, {NCONS}\ns_cbranch_scc1 {label}_nocons0")
    def zloads():
        for k in range(4):
            if k==3: A("s_mov_b32 exec_hi, 0")
            A(f"global_load_dwordx4 v[{CZ+4*k}:{CZ+4*k+3}], v{V_OFF}, s[{S_Z}:{S_Z+1}] offset:{1024*k} sc1")
        A("s_mov_b64 exec, -1")
    for k in (12,14): A(f"v_mov_b32 v{CZ+k}, 0\nv_mov_b32 v{CZ+k+1}, v{V_TAG}")
    zloads()
    A(f"""global_load_ushort v{CX}, v{COUT}, s[{P_X}:{P_X+1}]
    global_load_ushort v{CB2}, v{CCOL}, s[{P_B2}:{P_B2+1}]
    {label}_nocons0:""")
    A(f"v_lshrrev_b32 v{T+2}, 4, v{V_LANE}" if NB==4 else f"v_mov_b32 v{T+2}, 0")
    A(f"""v_lshlrev_b32 v{T}, 5, v{T+2}
    v_add_u32 v{T}, {L_ML}, v{T}
    s_lshl_b32 s{S_T2}, s{S_PART}, 4
    s_add_u32 s{S_T2}, s{S_T2}, {MLOFF}
    v_lshlrev_b32 v{T+1}, 12, v{T+2}
    v_add_u32 v{T+1}, s{S_T2}, v{T+1}
    s_mov_b32 s{S_T2}, 0x4000""")
    if NB==1 and not MLR: A(f"s_lshl_b32 s{S_T3}, s{S_B}, 10\nv_add_u32 v{T+1}, s{S_T3}, v{T+1}")
    if MLR:
        assert NB==1
        A(f"s_mul_i32 s{S_T3}, s{S_B}, {7*1024}\nv_lshl_add_u32 v{T+1}, v{V_LANE}, 10, v{T+1}\nv_add_u32 v{T+1}, s{S_T3}, v{T+1}")
    ML=U; M=T+4; AF=KST; D=VST
    A(f"v_mov_b32 v{M+1}, v{V_TAG}\nv_mov_b32 v{M+3}, v{V_TAG}")
    A("s_waitcnt lgkmcnt(0)\ns_barrier")
    if stamps==1: stamp()
    A(f"ds_read_b128 v[{ML}:{ML+3}], v{T}\nds_read_b128 v[{ML+4}:{ML+7}], v{T} offset:16")
    for s_ in range(8): A(f"ds_read_b128 v[{AF+4*s_}:{AF+4*s_+3}], v{V_AR} offset:{64*s_}")
    A("s_waitcnt lgkmcnt(7)")
    def fact():
        r=[f"v_max3_f32 v{M}, v{ML+1}, v{ML+3}, v{ML+5}", f"v_max_f32 v{M}, v{M}, v{ML+7}"]
        r+=[f"v_sub_f32 v{ML+2*w+1}, v{ML+2*w+1}, v{M}" for w in range(4)]
        r+=[f"v_exp_f32 v{ML+2*w+1}, v{ML+2*w+1}" for w in range(4)]
        r+=[f"v_mul_f32 v{M+2}, v{ML}, v{ML+1}"]+[f"v_fmac_f32 v{M+2}, v{ML+2*w}, v{ML+2*w+1}" for w in range(1,4)]
        return r
    def post(j):
        d=D+4*j
        return [f"v_mul_f32 v{d}, v{d}, v{ML+1}", f"v_fmac_f32 v{d}, v{d+1}, v{ML+3}", f"v_fmac_f32 v{d}, v{d+2}, v{ML+5}", f"v_fmac_f32 v{d}, v{d+3}, v{ML+7}",
                f"v_mov_b32 v{d+1}, v{V_TAG}", f"v_mov_b32 v{d+3}, v{V_TAG}",
                f"v_mov_b32_dpp v{d+2}, v{d} quad_perm:[1,0,3,2] row_mask:0xf bank_mask:0xf",
                f"s_mov_b32 exec_lo, 0x55555555\ns_mov_b32 exec_hi, 0x55555555\nglobal_store_dwordx4 v{V_YA}, v[{d}:{d+3}], s[{P_WS}:{P_WS+1}] sc1\ns_mov_b64 exec, -1\nv_add_u32 v{V_YA}, s{S_T2}, v{V_YA}"]
    def post1(j):
        d=D+4*j; mr=YM+4*(j//4)
        r=[f"v_mul_f32 v{d}, v{d}, v{ML+1}", f"v_fmac_f32 v{d}, v{d+1}, v{ML+3}", f"v_fmac_f32 v{d}, v{d+2}, v{ML+5}", f"v_fmac_f32 v{d}, v{d+3}, v{ML+7}",
           "s_nop 1",
           f"v_mov_b32_dpp v{mr}, v{d} quad_perm:[0,1,2,3] row_mask:{hex(1<<(j&3))} bank_mask:0xf",
           f"v_mov_b32_dpp v{mr+2}, v{d} quad_perm:[1,0,3,2] row_mask:{hex(1<<(j&3))} bank_mask:0xf"]
        if j in (3,6):
            r.append(f"v_cvt_pk_bf16_f32 v{mr}, v{mr}, v{mr+2}\ns_mov_b32 vcc_lo, 0x11111111\ns_mov_b32 vcc_hi, {'0x11111111' if j==3 else '0x1111'}\nv_mov_b32_dpp v{mr+2}, v{mr} quad_perm:[2,2,2,2] row_mask:0xf bank_mask:0xf\ns_mov_b64 exec, vcc\nglobal_store_dwordx4 v{V_YA}, v[{mr}:{mr+3}], s[{P_WS}:{P_WS+1}] sc1\ns_mov_b64 exec, -1\nv_add_u32 v{V_YA}, s{S_T2}, v{V_YA}")
        return r
    YM=BA
    if NB==1:
        post=post1
    fill=fact()
    mlpub=f"""s_cmp_lg_u32 s{S_W}, 0
    s_cbranch_scc1 {label}_noml
    s_mov_b32 exec_lo, {'0x00010001' if NB==4 else ('0x7f' if MLR else '1')}
    s_mov_b32 exec_hi, {'0x00010001' if NB==4 else '0'}
    global_store_dwordx4 v{T+1}, v[{M}:{M+3}], s[{P_WS}:{P_WS+1}] sc1
    s_mov_b64 exec, -1
    {label}_noml:"""
    for j in range(7):
        if j==1: fill=[mlpub]+([f"v_mov_b32 v{YM+i}, v{V_TAG}" for i in (1,3,5,7)] if NB==1 else [])
        if j>=2: fill=post(j-2)
        for s_ in range(8):
            if j==0 and s_>0: A(f"s_waitcnt lgkmcnt({7-s_})")
            r=(s_*7+j)*4
            c = "0" if s_==0 else f"v[{D+4*j}:{D+4*j+3}]"
            A(f"v_mfma_f32_16x16x32_bf16 v[{D+4*j}:{D+4*j+3}], v[{AF+4*s_}:{AF+4*s_+3}], a[{r}:{r+3}], {c}")
            for _ in range(2 if j==0 else 1):
                if fill: A(fill.pop(0))
        assert not fill
    for ln in post(5): A(ln)
    if NB==1: A("s_nop 0")
    for ln in post(6): A(ln)
    A(f"{label}_fin:")
    if stamps!=2: stamp()
    A(f"s_cmp_ge_u32 s2, {NCONS}\ns_cbranch_scc1 {label}_done")
    def tagacc(dst, rs, first=True):
        for i,r in enumerate(rs):
            if first and i==0: A(f"v_xor_b32 v{dst}, v{r}, v{V_TAG}")
            else: A(f"v_bitop3_b32 v{dst}, v{dst}, v{r}, v{V_TAG} bitop3:0xf6")
    def test(dst, ok):
        A(f"""v_cmp_ne_u32 vcc, 0, v{dst}
        s_add_u32 s{S_SPIN}, s{S_SPIN}, 1
        s_cmp_gt_u32 s{S_SPIN}, {SPIN_MAX}
        s_cbranch_vccz {ok}
        s_cbranch_scc1 {ok}""")
    def yloads():
        for k in range(4*NB):
            A(f"global_load_dwordx4 v[{CY+4*k}:{CY+4*k+3}], v{[V_OFF,V_OFF2,T+2,T+3][k//4]}, s[{S_Y}:{S_Y+1}] offset:{1024*(k%4)} sc1")
    def mlload():
        for k in range(NB): A(f"global_load_dwordx4 v[{CML+4*k}:{CML+4*k+3}], v{CMA}, s[{P_WS}:{P_WS+1}] offset:{1024*k} sc1")
    def red4(c):
        A(f"""s_nop 1
        v_permlane32_swap_b32 v{c}, v{c+1}
        v_permlane32_swap_b32 v{c+2}, v{c+3}
        v_add_f32 v{c}, v{c}, v{c+1}
        v_add_f32 v{c+2}, v{c+2}, v{c+3}
        s_nop 1
        v_permlane16_swap_b32 v{c}, v{c+2}
        v_add_f32 v{c}, v{c}, v{c+2}
        s_nop 1
        v_add_f32_dpp v{c}, v{c}, v{c} row_ror:4 row_mask:0xf bank_mask:0xf
        s_nop 1
        v_add_f32_dpp v{c}, v{c}, v{c} row_ror:8 row_mask:0xf bank_mask:0xf""")
    mlload()
    A(f"s_waitcnt vmcnt({NB})")
    A(f"{label}_zchk:")
    tagacc(XT, [CZ+2*i+1 for i in range(8)])
    if ABL&(2|64|128): A(f"s_branch {label}_zok")
    test(XT, f"{label}_zok")
    zloads()
    A(f"s_waitcnt vmcnt(0)\ns_branch {label}_zchk\n{label}_zok:")
    for k in range(4):
        for h in range(2):
            r=CZ+4*k+2*h
            A(f"v_and_b32 v{r+1}, 0xffff0000, v{r}\nv_lshlrev_b32 v{r}, 16, v{r}")
    for j in range(4): A(f"v_add_f32 v{CZ+j}, v{CZ+j}, v{CZ+4+j}\nv_add_f32 v{CZ+8+j}, v{CZ+8+j}, v{CZ+12+j}")
    for j in range(4): A(f"v_add_f32 v{CZ+j}, v{CZ+j}, v{CZ+8+j}")
    red4(CZ)
    A(f"""v_lshlrev_b32 v{CX}, 16, v{CX}
    v_lshlrev_b32 v{CB2}, 16, v{CB2}
    v_cvt_pk_bf16_f32 v{CG}, v{CZ}, v{CZ}
    v_lshlrev_b32 v{CG}, 16, v{CG}
    v_add_f32 v{CG}, v{CG}, v{CB2}
    v_cvt_pk_bf16_f32 v{CG}, v{CG}, v{CG}
    v_lshlrev_b32 v{CG}, 16, v{CG}
    v_mul_f32 v{XT+5}, {hex(f2u(-LOG2E))}, v{CG}
    v_exp_f32 v{XT+5}, v{XT+5}
    s_nop 0
    v_add_f32 v{XT+5}, 1.0, v{XT+5}
    v_rcp_f32 v{XT+5}, v{XT+5}
    s_nop 0
    v_mul_f32 v{CG}, v{CG}, v{XT+5}
    v_cvt_pk_bf16_f32 v{CG}, v{CG}, v{CG}
    v_lshlrev_b32 v{CG}, 16, v{CG}""")
    if FP:
        assert NB==1
        SM=[64,66,68,70,72] if not stamps else [86,88,90,92,98]
        SM=[84,86,88,90,92]
        A(f"{label}_mlw:\ns_waitcnt vmcnt(0)")
        tagacc(XT, [CML+1, CML+3])
        A(f"""v_cmp_ne_u32 vcc, 0, v{XT}
        s_add_u32 s{S_SPIN}, s{S_SPIN}, 1
        s_cmp_gt_u32 s{S_SPIN}, {SPIN_MAX}
        s_cbranch_scc1 {label}_stb
        s_bcnt1_i32_b64 s{S_T}, vcc
        s_cmp_le_u32 s{S_T}, {FP}
        s_cbranch_scc1 {label}_stb""")
        mlload()
        A(f"s_branch {label}_mlw\n{label}_stb:\ns_mov_b32 s{S_T2}, 0")
        mlload(); yloads()
        A(f"s_waitcnt vmcnt(0)\n{label}_pl:")
        A(f"v_xor_b32 v{XT+4}, v{CML+1}, v{V_TAG}")
        for k in range(4): A(f"v_xor_b32 v{XT+k}, v{CY+4*k+1}, v{V_TAG}")
        A(f"v_bitop3_b32 v{XT+4}, v{XT+4}, v{CML+3}, v{V_TAG} bitop3:0xf6")
        for k in range(4): A(f"v_bitop3_b32 v{XT+k}, v{XT+k}, v{CY+4*k+3}, v{V_TAG} bitop3:0xf6")
        A(f"v_cmp_ne_u32 s[{SM[4]}:{SM[4]+1}], 0, v{XT+4}")
        for k in range(4): A(f"v_cmp_ne_u32 s[{SM[k]}:{SM[k]+1}], 0, v{XT+k}")
        A(f"""s_cmp_lg_u32 s{S_T2}, 0
        s_cbranch_scc1 {label}_hf
        s_cmp_lg_u64 s[{SM[4]}:{SM[4]+1}], 0
        s_cbranch_scc1 {label}_iss
        s_mov_b32 s{S_T2}, 1
        s_nop 7
        v_max_f32_dpp v{XT+5}, v{CML}, v{CML} quad_perm:[1,0,3,2] row_mask:0xf bank_mask:0xf
        s_nop 1
        v_max_f32_dpp v{XT+5}, v{XT+5}, v{XT+5} quad_perm:[2,3,0,1] row_mask:0xf bank_mask:0xf
        v_sub_f32 v{XT+5}, v{CML}, v{XT+5}
        v_exp_f32 v{XT+5}, v{XT+5}
        s_nop 0
        v_mul_f32 v{XT+6}, v{CML+2}, v{XT+5}
        s_nop 1
        v_add_f32_dpp v{XT+6}, v{XT+6}, v{XT+6} quad_perm:[1,0,3,2] row_mask:0xf bank_mask:0xf
        s_nop 1
        v_add_f32_dpp v{XT+6}, v{XT+6}, v{XT+6} quad_perm:[2,3,0,1] row_mask:0xf bank_mask:0xf
        v_rcp_f32 v{XT+6}, v{XT+6}
        s_nop 0
        v_mul_f32 v{XT+5}, v{XT+5}, v{XT+6}""")
        for k in range(4): A(f"ds_bpermute_b32 v{CF+k}, v{CBP}, v{XT+5} offset:{64*k}")
        A(f"""{label}_hf:
        s_or_b64 vcc, s[{SM[0]}:{SM[0]+1}], s[{SM[1]}:{SM[1]+1}]
        s_or_b64 vcc, vcc, s[{SM[2]}:{SM[2]+1}]
        s_or_b64 vcc, vcc, s[{SM[3]}:{SM[3]+1}]
        s_cbranch_scc0 {label}_yok
        {label}_iss:
        s_add_u32 s{S_SPIN}, s{S_SPIN}, 1
        s_cmp_gt_u32 s{S_SPIN}, {SPIN_MAX*8}
        s_cbranch_scc1 {label}_yok
        s_or_b64 exec, s[{SM[4]}:{SM[4]+1}], 1""")
        mlload()
        for k in range(4):
            A(f"s_or_b64 exec, s[{SM[k]}:{SM[k]+1}], 1\nglobal_load_dwordx4 v[{CY+4*k}:{CY+4*k+3}], v{V_OFF}, s[{S_Y}:{S_Y+1}] offset:{1024*k} sc1")
        A(f"s_mov_b64 exec, -1\ns_waitcnt vmcnt({5*(PD-1)})\ns_branch {label}_pl\n{label}_yok:\ns_nop 15\ns_waitcnt lgkmcnt(0)")
        for k in range(4):
            if k==0: A(f"v_mul_f32 v{XT}, v{CY}, v{CF}\nv_mul_f32 v{XT+2}, v{CY+2}, v{CF}")
            else: A(f"v_fmac_f32 v{XT}, v{CY+4*k}, v{CF+k}\nv_fmac_f32 v{XT+2}, v{CY+4*k+2}, v{CF+k}")
    else:
        if TH==0:
            A(f"{label}_mlw:\ns_waitcnt vmcnt(0)")
            tagacc(XT, [CML+2*i+1 for i in range(2*NB)])
            test(XT, f"{label}_mlok")
            mlload()
            A(f"s_branch {label}_mlw\n{label}_mlok:")
            yloads()
        else:
            A(f"{label}_mlw:\ns_waitcnt vmcnt(0)")
            tagacc(XT, [CML+2*i+1 for i in range(2*NB)])
            test(XT, f"{label}_mlok0")
            A(f"s_bcnt1_i32_b64 s{S_T}, vcc")
            mlload()
            A(f"s_cmp_gt_u32 s{S_T}, {TH}\ns_cbranch_scc1 {label}_mlw")
            A(f"{label}_mlw2:")
            yloads()
            A(f"s_waitcnt vmcnt({4*NB})")
            tagacc(XT, [CML+2*i+1 for i in range(2*NB)])
            test(XT, f"{label}_mlok")
            mlload()
            A(f"s_branch {label}_mlw2\n{label}_mlok0:")
            yloads()
            A(f"{label}_mlok:")
        if NB==4:
            for k in range(4): A(f"v_max_f32_dpp v{CML+4*k+1}, v{CML+4*k}, v{CML+4*k} row_ror:8 row_mask:0xf bank_mask:0xf")
            for r in (4,2,1):
                for k in range(4): A(f"v_max_f32_dpp v{CML+4*k+1}, v{CML+4*k+1}, v{CML+4*k+1} row_ror:{r} row_mask:0xf bank_mask:0xf")
            for k in range(4): A(f"v_sub_f32 v{CML+4*k}, v{CML+4*k}, v{CML+4*k+1}")
            for k in range(4): A(f"v_exp_f32 v{CML+4*k}, v{CML+4*k}")
            for k in range(4): A(f"v_mul_f32 v{CML+4*k+2}, v{CML+4*k+2}, v{CML+4*k}")
            for r in (8,4,2,1):
                for k in range(4): A(f"v_add_f32_dpp v{CML+4*k+2}, v{CML+4*k+2}, v{CML+4*k+2} row_ror:{r} row_mask:0xf bank_mask:0xf")
            for k in range(4): A(f"v_rcp_f32 v{CML+4*k+2}, v{CML+4*k+2}")
            for k in range(4): A(f"v_mul_f32 v{CML+4*k}, v{CML+4*k}, v{CML+4*k+2}")
            for k in range(16): A(f"ds_bpermute_b32 v{CF+k}, v{CBP}, v{CML+4*(k//4)} offset:{64*(k%4)}")
        else:
            A(f"""v_max_f32_dpp v{CML+1}, v{CML}, v{CML} quad_perm:[1,0,3,2] row_mask:0xf bank_mask:0xf
            s_nop 1
            v_max_f32_dpp v{CML+1}, v{CML+1}, v{CML+1} quad_perm:[2,3,0,1] row_mask:0xf bank_mask:0xf
            v_sub_f32 v{CML}, v{CML}, v{CML+1}
            v_exp_f32 v{CML}, v{CML}
            s_nop 0
            v_mul_f32 v{CML+2}, v{CML+2}, v{CML}
            s_nop 1
            v_add_f32_dpp v{CML+2}, v{CML+2}, v{CML+2} quad_perm:[1,0,3,2] row_mask:0xf bank_mask:0xf
            s_nop 1
            v_add_f32_dpp v{CML+2}, v{CML+2}, v{CML+2} quad_perm:[2,3,0,1] row_mask:0xf bank_mask:0xf
            v_rcp_f32 v{CML+2}, v{CML+2}
            s_nop 0
            v_mul_f32 v{CML}, v{CML}, v{CML+2}""")
            for k in range(4): A(f"ds_bpermute_b32 v{CF+k}, v{CBP}, v{CML} offset:{64*k}")
        A("s_waitcnt lgkmcnt(0)")
        A(f"{label}_yw:")
        for k in range(4*NB):
            A(f"s_waitcnt vmcnt({4*NB-1-k})")
            tagacc(XT+4, [CY+4*k+1, CY+4*k+3], first=(k==0))
            for h in range(2):
                r=CY+4*k+2*h
                A(f"v_and_b32 v{r+1}, 0xffff0000, v{r}\nv_lshlrev_b32 v{r}, 16, v{r}")
            for j in range(4): A(f"v_{'mul' if k==0 else 'fmac'}_f32 v{XT+j}, v{CY+4*k+j}, v{CF+k}")
        test(XT+4, f"{label}_yok")
        yloads()
        A(f"s_branch {label}_yw\n{label}_yok:")
    if stamps!=2: stamp()
    red4(XT)
    A(f"""v_cvt_pk_bf16_f32 v{XT}, v{XT}, v{XT}
    v_lshlrev_b32 v{XT}, 16, v{XT}
    v_mul_f32 v{XT}, v{XT}, v{CG}
    v_cvt_pk_bf16_f32 v{XT}, v{XT}, v{XT}
    v_lshlrev_b32 v{XT}, 16, v{XT}
    v_add_f32 v{XT}, v{XT}, v{CX}
    v_cvt_pk_bf16_f32 v{XT}, v{XT}, v{XT}
    s_mov_b32 exec_lo, 0x000f000f
    s_mov_b32 exec_hi, 0x000f000f
    global_store_short v{COUT}, v{XT}, s[{P_OUT}:{P_OUT+1}] {OF}
    s_mul_i32 s{S_T}, s{S_CB}, 28
    s_cmp_lg_u32 s{S_CG}, s{S_T}
    s_cbranch_scc1 {label}_done
    v_mov_b32 v{XT+1}, 64
    s_mov_b64 exec, 1
    global_atomic_add v{V_ZERO}, v{XT+1}, s[{P_WS}:{P_WS+1}] sc1""")
    A(f"{label}_done:")
    if trace:
        A(f"""s_mov_b64 exec, -1
        s_memrealtime s[92:93]
        s_waitcnt lgkmcnt(0)
        v_writelane_b32 v253, s90, 62
        v_writelane_b32 v253, s92, 63
        s_lshl_b32 s{S_T}, s2, 2
        s_add_u32 s{S_T}, s{S_T}, s{S_W}
        s_lshl_b32 s{S_T}, s{S_T}, 8
        s_add_u32 s{S_T}, s{S_T}, 0x10000000
        v_lshlrev_b32 v254, 2, v{V_LANE}
        v_add_u32 v254, s{S_T}, v254
        global_store_dword v254, v253, s[{P_WS}:{P_WS+1}]""")
    if DELAY:
        A(f"""s_cmp_lg_u32 s2, 0
        s_cbranch_scc1 {label}_end
        {label}_dl:
        s_memrealtime s[92:93]
        s_waitcnt lgkmcnt(0)
        s_sub_u32 s92, s92, s94
        s_cmp_lt_u32 s92, {DELAY}
        s_cbranch_scc1 {label}_dl""")
    if stamps:
        A("s_mov_b64 exec, -1")
        stamp()
        assert nst[0]<=15
        A(f"s_cmp_lg_u32 s{S_W}, {STW}\ns_cbranch_scc1 {label}_end")
        A(f"s_lshl_b32 s{S_T}, s2, 7\ns_add_u32 s{S_T}, s{S_T}, 0x10000000\ns_add_u32 s{P_WS}, s{P_WS}, s{S_T}\ns_addc_u32 s{P_WS+1}, s{P_WS+1}, 0")
        A("s_waitcnt lgkmcnt(0) vmcnt(0)\nv_mov_b32 v1, 0")
        for k in range(nst[0]):
            A(f"v_mov_b32 v{KST+2*k}, s{S_ST+2*k}\nv_mov_b32 v{KST+2*k+1}, s{S_ST+2*k+1}\nglobal_store_dwordx2 v1, v[{KST+2*k}:{KST+2*k+1}], s[{P_WS}:{P_WS+1}] offset:{8*k}")
        A(f"s_mul_i32 s{S_T}, s{S_NU}, 100\ns_add_u32 s{S_T}, s{S_T}, s{S_ST}\nv_mov_b32 v{KST+40}, s{S_T}\nv_mov_b32 v{KST+41}, s{S_ST+1}\nglobal_store_dwordx2 v1, v[{KST+40}:{KST+41}], s[{P_WS}:{P_WS+1}] offset:120")
        if stamps==1: A(f"s_getreg_b32 s{S_T}, hwreg(HW_REG_XCC_ID)\ns_and_b32 s{S_T}, s{S_T}, 15\ns_mul_i32 s{S_T}, s{S_T}, 100\ns_add_u32 s{S_T}, s{S_T}, s{S_ST}\nv_mov_b32 v{KST+44}, s{S_T}\nv_mov_b32 v{KST+45}, s{S_ST+1}\nglobal_store_dwordx2 v1, v[{KST+44}:{KST+45}], s[{P_WS}:{P_WS+1}] offset:112")
        A(f"v_mov_b32 v{KST+42}, s{S_SPIN}\ns_mov_b64 exec, 1\nglobal_atomic_add v1, v{KST+42}, s[{P_DBG}:{P_DBG+1}]")
    A(f"{label}_end:\ns_endpgm")
    return A.text()

def kdesc(label, vgpr, accum, sgpr):
    return f""".amdhsa_kernel {label}
  .amdhsa_next_free_vgpr {vgpr}
  .amdhsa_next_free_sgpr {sgpr}
  .amdhsa_accum_offset {accum}
  .amdhsa_group_segment_fixed_size 0
  .amdhsa_kernarg_size 104
  .amdhsa_user_sgpr_count 2
  .amdhsa_user_sgpr_kernarg_segment_ptr 1
  .amdhsa_system_sgpr_workgroup_id_x 1
  .amdhsa_float_denorm_mode_32 3
.end_amdhsa_kernel
"""
DOC=""";
;   * hand-offs between workgroups are 8-byte {data, tag} granules written / read with sc1; the tag comes
"""
def full(stamps=0, **kw):
    ref=open(f"cdna_kernels/{NAME}.s.ref").read().split("\n")
    hdr=[l for l in ref if l.startswith(";") and "@launch" not in l]
    main=NAME+"_kernel"
    t="\n".join(hdr)+"\n"
    t+=f"; @launch grid=(256,1,1) block=(256,1,1) lds={LDS_TOTAL}\n"
    t+=DOC+'.amdgcn_target "amdgcn-amd-amdhsa--gfx950"\n.text\n'
    t+=gen_main(main, stamps, **kw)
    t+='.section .rodata,"a"\n.p2align 6\n'+kdesc(main, 256+224, 256, 102)
    return t, [(main,256)]
def variant(name, **kw):
    t,ks=full(0, **kw)
    open(f"work/{name}.s","w").write(t)
    build(t,name,ks)
    t,ks=full(1, **kw); build(t,name+"_s",ks)
    t,ks=full(2, **kw); build(t,name+"_p",ks)
    t,ks=full(3, **kw); build(t,name+"_t",ks)
if __name__=="__main__":
    for p in range(28): assert (p*37)>>8 == p//7
    for p in range(448): assert (p*4682)>>16 == p//14
    if len(sys.argv)>1:
        for spec in sys.argv[1:]:
            nm,_,args=spec.partition(":")
            variant(nm,**eval("dict(%s)"%args))
    else:
        t,ks=full(0)
        open(f"cdna_kernels/{NAME}.s","w").write(t)
    print("LDS",LDS_TOTAL)
```
